```python
import torch

def _softmax(x, axis=-1):
    return torch.softmax(x, dim=axis)
def _gelu(x):
    return torch.nn.functional.gelu(x, approximate="tanh")
def _silu(x):
    return torch.nn.functional.silu(x)
def _sigmoid(x):
    return torch.sigmoid(x)
def _layernorm(x, axis=-1, eps=1e-5):
    m = x.mean(dim=axis, keepdim=True)
    v = x.var(dim=axis, keepdim=True, unbiased=False)
    return (x - m) / torch.sqrt(v + eps)
def _scatter_add(tgt, idx, src, axis=0):
    return tgt.clone().index_add_(axis, idx, src)
def _segment_sum(src, seg, n):
    out = torch.zeros((n,) + src.shape[1:], dtype=src.dtype)
    return out.index_add_(0, seg, src)
def _pad(x, pw):
    flat = tuple(v for pair in reversed(pw) for v in pair)
    return torch.nn.functional.pad(x, flat)

kernel_name = 'gated_mix__ssm_conv_h3__geglu_ffn__prompt'

def setup_inputs():

    _w = (lambda a: (lambda t: t.to(torch.bfloat16) if t.is_floating_point() else t)(torch.as_tensor(a)))
    def _A_setup():
        B, S, D = 1, 2048, 512
        ks = 4
        return {
            "q": _w((lambda *s: torch.randn(*s, dtype=torch.bfloat16) * 0.05)(B, S, D)),
            "k": _w((lambda *s: torch.randn(*s, dtype=torch.bfloat16) * 0.2)(B, S, D)),
            "v": _w((lambda *s: torch.randn(*s, dtype=torch.bfloat16) * 0.2)(B, S, D)),
            "shift_k": _w((lambda *s: torch.randn(*s, dtype=torch.bfloat16) * 0.2)(D, ks) * 0.5),
            "ssm_k": _w((lambda *s: torch.randn(*s, dtype=torch.bfloat16) * 0.8)(D, S) * (1.0 / S ** 0.5)),
            "ssm_D": _w((lambda *s: torch.randn(*s, dtype=torch.bfloat16) * 0.2)(D)),
        }
    _A_in = _A_setup()

    def _B_setup():
        B, S, D, F = 1, 2048, 512, 1376
        return {
            "x": _w((lambda *s: torch.randn(*s, dtype=torch.bfloat16) * 0.05)(B, S, D)),
            "w_gate": _w((lambda *s: torch.randn(*s, dtype=torch.bfloat16) * 0.05)(D, F)),
            "w_up": _w((lambda *s: torch.randn(*s, dtype=torch.bfloat16) * 0.05)(D, F)),
            "w_down": _w((lambda *s: torch.randn(*s, dtype=torch.bfloat16) * 0.05)(F, D)),
        }
    _B_in = _B_setup()

    return {
        "A_q": _A_in["q"],
        "A_k": _A_in["k"],
        "A_v": _A_in["v"],
        "A_shift_k": _A_in["shift_k"],
        "A_ssm_k": _A_in["ssm_k"],
        "A_ssm_D": _A_in["ssm_D"],
        "B_x": _B_in["x"],
        "B_w_gate": _B_in["w_gate"],
        "B_w_up": _B_in["w_up"],
        "B_w_down": _B_in["w_down"],
        "gate_w": _w((lambda *s: torch.randn(*s, dtype=torch.bfloat16) * 0.05)(512) * 16.0),
    }

def reference(A_q, A_k, A_v, A_shift_k, A_ssm_k, A_ssm_D, B_x, B_w_gate, B_w_up, B_w_down, gate_w):
    def _A_ref(q, k, v, shift_k, ssm_k, ssm_D):
        B, S, D = q.shape
        ks = shift_k.shape[-1]
        k_pad = _pad(k, ((0, 0), (ks - 1, 0), (0, 0)))
        k_shift = torch.zeros_like(k)
        for t in range(ks):
            k_shift = k_shift + k_pad[:, t:t + S, :] * shift_k[:, ks - 1 - t][None, None, :]
        kv = k_shift * v
        L = 2 * S
        kv_pad = _pad(kv, ((0, 0), (0, S), (0, 0)))
        kf_pad = _pad(ssm_k, ((0, 0), (0, S)))
        kv_f = (lambda x, axes=(-2,-1): torch.fft.rfft2(x.float(), dim=axes))(kv_pad[:, None, :, :], axes=(1, 2))
        kf_f = (lambda x, axes=(-2,-1): torch.fft.rfft2(x.float(), dim=axes))(kf_pad[:, None, :], axes=(1, 2))
        kf_f = (lambda x, *d: x.permute(*d))(kf_f, 1, 2, 0)
        y_f = kv_f * kf_f[None, :, :, :]
        y = (lambda x, s, axes=(-2,-1): torch.fft.irfft2(x, s=s, dim=axes).to(torch.bfloat16))(y_f, (1, L), axes=(1, 2))[:, 0, :S, :]
        y = y + kv * ssm_D[None, None, :]
        return q * y

    def _B_ref(x, w_gate, w_up, w_down):
        return (_gelu(x @ w_gate) * (x @ w_up)) @ w_down

    x = A_q
    g = _sigmoid((x * gate_w).sum(-1, keepdims=True))
    a = _A_ref(x, A_k, A_v, A_shift_k, A_ssm_k, A_ssm_D)
    b = _B_ref(x, B_w_gate, B_w_up, B_w_down)
    return g * a + (1 - g) * b
```

```python
import re


class Ins:
    __slots__ = ("txt", "kind", "vm", "lg", "note")

    def __init__(self, txt, kind=None, vm=None, lg=None):
        self.txt = txt
        self.kind = kind
        self.vm = vm
        self.lg = lg


class Em:
    def __init__(self):
        self.L = []

    def __call__(self, txt):
        for line in txt.split("\n"):
            line = line.strip()
            if line:
                self.L.append(Ins(line))

    def vm(self, txt):
        i = Ins(txt, "vm")
        self.L.append(i)
        return i

    def lg(self, txt):
        i = Ins(txt, "lg")
        self.L.append(i)
        return i

    def wait(self, vm=None, lg=None):
        vm = [t for t in (vm if isinstance(vm, (list, tuple)) else [vm]) if t is not None]
        lg = [t for t in (lg if isinstance(lg, (list, tuple)) else [lg]) if t is not None]
        self.L.append(Ins("", "wait", vm, lg))

    def wait_all(self, vm=True, lg=True):
        self.L.append(Ins("", "sync_all", vm, lg))

    def label(self, name):
        self.L.append(Ins(name + ":", "label"))

    def mark(self):
        i = Ins("", "mark")
        self.L.append(i)
        return i

    def extend(self, other):
        self.L.extend(other.L if isinstance(other, Em) else other)


def resolve_waits(L):
    out = []
    vm_n = 0
    lg_n = 0
    vm_done = 0
    lg_done = 0
    pos = {}
    for i in L:
        if i.kind == "vm":
            pos[id(i)] = vm_n
            vm_n += 1
            out.append(i.txt)
        elif i.kind == "lg":
            pos[id(i)] = lg_n
            lg_n += 1
            out.append(i.txt)
        elif i.kind == "mark":
            pos[id(i)] = vm_n - 1
            vm_done = min(vm_done, vm_n)
        elif i.kind == "wait":
            parts = []
            if i.vm:
                idx = max(pos[id(t)] for t in i.vm)
                if idx >= vm_done:
                    n = min(vm_n - 1 - idx, 63)
                    parts.append(f"vmcnt({n})")
                    vm_done = vm_n - n
            if i.lg:
                idx = max(pos[id(t)] for t in i.lg)
                if idx >= lg_done:
                    n = min(lg_n - 1 - idx, 15)
                    parts.append(f"lgkmcnt({n})")
                    lg_done = lg_n - n
            if parts:
                out.append("s_waitcnt " + " ".join(parts))
        elif i.kind == "wait_since":
            n = min(vm_n - 1 - pos[id(i.vm[0])], 63)
            out.append(f"s_waitcnt vmcnt({n})")
        elif i.kind == "sync_all":
            parts = []
            if i.vm:
                parts.append("vmcnt(0)")
                vm_done = vm_n
            if i.lg:
                parts.append("lgkmcnt(0)")
                lg_done = lg_n
            out.append("s_waitcnt " + " ".join(parts))
        else:
            out.append(i.txt)
    return out


_REG = re.compile(r"^(-?)(?:abs\()?([vas])(?:(\d+)|\[(\d+):(\d+)\])\)?$")


def regs(tok):
    tok = tok.strip()
    if tok in ("vcc", "exec", "m0"):
        if tok == "vcc":
            return {("s", 106), ("s", 107)}
        if tok == "exec":
            return {("s", 126), ("s", 127)}
        return {("s", 124)}
    m = _REG.match(tok)
    if not m:
        return set()
    k = m.group(2)
    if m.group(3) is not None:
        return {(k, int(m.group(3)))}
    return {(k, r) for r in range(int(m.group(4)), int(m.group(5)) + 1)}


TRANS = ("v_exp_f32", "v_log_f32", "v_rcp_f32", "v_rsq_f32", "v_sqrt_f32", "v_sin_f32", "v_cos_f32")


def parse(line):
    line = line.split(";")[0].strip()
    if not line or line.endswith(":") or line.startswith("."):
        return None
    sp = line.split(None, 1)
    mn = sp[0]
    rest = sp[1] if len(sp) > 1 else ""
    ops = [o.strip() for o in rest.split(",")] if rest else []
    if ops:
        last = ops[-1].split()
        ops[-1] = last[0] if last else ""
        mods = last[1:]
    else:
        mods = []
    d = dict(mn=mn, wr=set(), rd=set(), cls="other", mods=mods, srcC=set(), srcAB=set(), passes=0, sdata=set())
    if mn.startswith("v_mfma"):
        d["cls"] = "mfma"
        d["wr"] = regs(ops[0])
        d["srcAB"] = regs(ops[1]) | regs(ops[2])
        d["srcC"] = regs(ops[3])
        d["rd"] = d["srcAB"] | d["srcC"]
        d["passes"] = 8 if "32x32" in mn else 4
    elif mn.startswith("v_"):
        d["cls"] = "valu"
        if mn.startswith("v_cmp"):
            d["wr"] = regs(ops[0])
            for o in ops[1:]:
                d["rd"] |= regs(o)
        elif (mn.startswith("v_permlane") and "swap" in mn) or mn.startswith("v_swap"):
            d["wr"] = regs(ops[0]) | regs(ops[1])
            d["rd"] = set(d["wr"])
        elif mn.startswith(("v_add_co", "v_sub_co", "v_addc_co", "v_subb_co")):
            d["wr"] = regs(ops[0]) | regs(ops[1])
            for o in ops[2:]:
                d["rd"] |= regs(o)
        else:
            d["wr"] = regs(ops[0])
            for o in ops[1:]:
                d["rd"] |= regs(o)
            if mn.startswith(("v_fmac", "v_dot2c", "v_writelane")):
                d["rd"] |= d["wr"]
            if mn.startswith("v_cndmask") and len(ops) == 3:
                d["rd"] |= regs("vcc")
        d["dpp"] = "dpp" in mn or any(m.startswith(("row_", "quad_perm")) for m in mods)
        d["trans"] = mn.replace("_e32", "").replace("_e64", "") in TRANS
    elif mn.startswith("ds_"):
        d["cls"] = "ds"
        if mn.startswith("ds_read"):
            d["wr"] = regs(ops[0])
            d["rd"] = regs(ops[1])
            if "d16" in mn:
                d["rd"] |= d["wr"]
        else:
            for o in ops:
                d["rd"] |= regs(o)
    elif mn.startswith("buffer_"):
        d["cls"] = "vmem"
        lds = "lds" in mods
        d["lds"] = lds
        if mn.startswith("buffer_load") and not lds:
            d["wr"] = regs(ops[0])
            for o in ops[1:]:
                d["rd"] |= regs(o)
        elif mn in ("buffer_inv", "buffer_wbl2"):
            pass
        else:
            for o in ops:
                d["rd"] |= regs(o)
            if mn.startswith("buffer_store") and ("x4" in mn or "x3" in mn):
                d["sdata"] = regs(ops[0])
    elif mn.startswith("s_"):
        d["cls"] = "salu"
        if mn in ("s_nop", "s_waitcnt", "s_barrier", "s_endpgm", "s_branch", "s_sleep", "s_setprio") or mn.startswith(
            ("s_cbranch", "s_cmp")
        ):
            for o in ops:
                d["rd"] |= regs(o)
        else:
            d["wr"] = regs(ops[0]) if ops else set()
            for o in ops[1:]:
                d["rd"] |= regs(o)
            if "saveexec" in mn:
                d["wr"] |= regs("exec")
    return d


def need(p, c):
    n = 0
    pv = {r for r in p["wr"] if r[0] in "va"}
    ps = {r for r in p["wr"] if r[0] == "s"}
    if p["cls"] == "valu":
        if c["cls"] == "mfma" and pv & c["rd"]:
            n = max(n, 2)
        if c["cls"] == "valu":
            if p.get("trans") and pv & (c["rd"] | c["wr"]) and not c.get("trans"):
                n = max(n, 1)
            if p.get("trans") and pv & c["rd"]:
                n = max(n, 1)
            if c["mn"].startswith(("v_readfirstlane", "v_readlane")) and pv & c["rd"]:
                n = max(n, 1)
            if c.get("dpp") and pv & c["rd"]:
                n = max(n, 2)
            if c["mn"].startswith("v_permlane") and pv & c["rd"]:
                n = max(n, 2)
            if ps & c["rd"]:
                n = max(n, 4 if c["mn"].startswith(("v_readlane", "v_writelane")) else 2)
            if "sdwa" in p["mn"] and pv & (c["rd"] | c["wr"]):
                n = max(n, 1)
        if c["cls"] == "vmem" and ps & c["rd"]:
            n = max(n, 5)
        if c["cls"] == "salu" and ps & c["rd"] and not c["mn"].startswith("s_cbranch"):
            n = max(n, 1)
    if p["cls"] == "mfma":
        big = p["passes"] == 8
        if c["cls"] == "mfma":
            if pv & c["srcAB"]:
                n = max(n, 12 if big else 8)
            if pv & c["srcC"]:
                if not (c["srcC"] == pv and c["passes"] == p["passes"]):
                    n = max(n, 10 if big else 6)
            elif pv & c["wr"]:
                n = max(n, 10 if big else 6)
        elif c["cls"] in ("valu", "ds", "vmem"):
            if pv & (c["rd"] | c["wr"]):
                n = max(n, 12 if big else 8)
        if c["cls"] == "valu" and p["srcC"] & c["wr"]:
            n = max(n, 7 if big else 3)
    if p["cls"] == "salu" and ("s", 124) in p["wr"] and c["cls"] == "vmem" and c.get("lds"):
        n = max(n, 1)
    if p["cls"] == "vmem" and p["sdata"] and c["cls"] == "valu" and p["sdata"] & c["wr"]:
        n = max(n, 2)
    if p["cls"] == "vmem" and p["sdata"] and c["cls"] in ("ds", "vmem", "mfma") and p["sdata"] & c["wr"]:
        n = max(n, 1)
    return n


def pad_hazards(lines):
    out = []
    hist = []
    npad = 0
    for line in lines:
        d = parse(line)
        if d is None:
            out.append(line)
            continue
        dist = 0
        req = 0
        for p, slots in reversed(hist[-24:]):
            k = need(p, d)
            if k > dist:
                req = max(req, k - dist)
            dist += slots
            if dist > 24:
                break
        while req > 0:
            k = min(req, 16)
            out.append(f"s_nop {k - 1}")
            hist.append((parse(f"s_nop {k - 1}"), k))
            req -= k
            npad += 1
        out.append(line)
        slots = 1
        if d["mn"] == "s_nop":
            slots = int(line.split()[1]) + 1
        hist.append((d, slots))
    return out, npad


def finalize(em):
    lines = resolve_waits(em.L)
    lines, npad = pad_hazards(lines)
    return lines, npad


def interleave(main, fill, positions=None):
    raise NotImplementedError
```

```python
import sys, struct, math
sys.path.insert(0, "work")
from asmlib import Em, Ins, finalize

KNAME = "gated_mix__ssm_conv_h3__geglu_ffn__prompt_kernel"

CFG = dict(
    EMU_PREP=True,
    STOP=None,
    STAMPS=False,
    POLL_MAX=200000,
)

WS_H = 0x0
WS_KV = 0x600000
WS_Y2 = 0x800000
WS_G = 0xA00000
WS_FLG = 0xB00000
FL_EPOCH = WS_FLG
FL_P = WS_FLG + 0x1000
FL_H = WS_FLG + 0x2000
FL_Y = WS_FLG + 0x8000
WS_STAMP = 0xC00000
WS_SIZE = 0x10000000

L_WR = 0
L_XS = 65536
L_HC = 65536
L_UR = 90368
L_EX012 = 103168
L_WDS = 115456
L_PT = 115456
L_SH = 123648
L_EX3 = 148224
L_P2 = 0
L_YT = 115456
LDS_SIZE = 163840

S_X, S_K, S_V, S_SH, S_SSM, S_WG, S_WU, S_WD, S_GW, S_OUT, S_WS, S_HST = [4 + 4 * i for i in range(12)]
S_DP = 52
S_D = 54
S_WAVE, S_GI, S_GJ, S_I2, S_N2, S_TAG = 55, 56, 57, 58, 59, 60
S_T = list(range(61, 80))
S_C0, S_C1, S_MASKHI, S_EXSAVE = 80, 81, 82, 84
S_WSOFF = 86
S_XSOFF = 87
S_XM0 = 88
S_HOFF = 89
S_FHOFF = 90
S_CH = 91
S_WDSOFF = 92
S_POLL = 93
S_U = 94
S_DF = 95
S_STAMP = 96
S_STI = 98


def srd(b):
    return f"s[{b}:{b + 3}]"


V_TID, V_LANE = 0, 1
V_L16 = 2
V_WDMA = 3
V_WTR = 4
V_XDMA = 5
V_XRD = 6
V_WDDMA = 7
V_WDTR0 = 8
V_WDTR1 = 9
V_HC0, V_HC1, V_HC2 = 10, 11, 12
V_F = 13
V_H = 14
V_SHF = 15
V_TMP = [16, 17, 18, 19, 20, 21, 22, 23]
V_H01 = 23
V_WF = 24
V_ACC = [48, 80]
V_ET = 112
V_WDX = 208


def vr(b, n=4):
    return f"v[{b}:{b + n - 1}]"


def ar(b, n=4):
    return f"a[{b}:{b + n - 1}]"


def f32hex(x):
    return "0x%08x" % struct.unpack("<I", struct.pack("<f", x))[0]


def wd_frag_reg(slot, fr):
    if slot < 8:
        return ("a", 128 + slot * 16 + fr * 4)
    return ("v", V_WDX + (slot - 8) * 16 + fr * 4)


def h_frag_reg(slot, fr):
    if slot < 8:
        return ("a", slot * 16 + fr * 4)
    return ("v", 112 + (slot - 8) * 16 + fr * 4)


def rr(k, b, n):
    return f"{k}[{b}:{b + n - 1}]"


def stamp(e, idx):
    if not CFG["STAMPS"]:
        return
    e.wait_all(vm=False, lg=True)
    e(f"s_memrealtime s[{S_STAMP}:{S_STAMP + 1}]")
    e.wait_all(vm=False, lg=True)
    e(f"v_mov_b32 v{V_TMP[0]}, s{S_STAMP}")
    e(f"v_mov_b32 v{V_TMP[1]}, s{S_STI}")
    e(f"s_mov_b64 s[{S_EXSAVE}:{S_EXSAVE + 1}], exec")
    e("s_mov_b64 exec, 1")
    e.vm(f"buffer_store_dword v{V_TMP[0]}, v{V_TMP[1]}, {srd(S_WS)}, 0 offen offset:{idx * 4}")
    e(f"s_mov_b64 exec, s[{S_EXSAVE}:{S_EXSAVE + 1}]")


def flag_store(e, s_addr):
    e(f"v_mov_b32 v{V_TMP[0]}, s{S_TAG}")
    e(f"v_mov_b32 v{V_TMP[1]}, 0")
    e(f"s_mov_b64 s[{S_EXSAVE}:{S_EXSAVE + 1}], exec")
    e("s_mov_b64 exec, 1")
    t = e.vm(f"buffer_store_dword v{V_TMP[0]}, v{V_TMP[1]}, {srd(S_WS)}, s{s_addr} offen sc1")
    e(f"s_mov_b64 exec, s[{S_EXSAVE}:{S_EXSAVE + 1}]")
    return t


_lbl = [0]


def poll_issue(e, vaddr, s_addr, vdst):
    return e.vm(f"buffer_load_dwordx4 {vr(vdst)}, v{vaddr}, {srd(S_WS)}, s{s_addr} offen sc1")


def poll_check(e, tok, vaddr, s_addr, vdst):
    n = _lbl[0]
    _lbl[0] += 1
    e.wait(vm=tok)
    e(f"s_mov_b32 s{S_POLL}, 0")
    e.label(f"L_pc{n}")
    e(f"v_xor_b32 v{vdst}, s{S_TAG}, v{vdst}")
    e(f"v_xor_b32 v{vdst + 1}, s{S_TAG}, v{vdst + 1}")
    e(f"v_xor_b32 v{vdst + 2}, s{S_TAG}, v{vdst + 2}")
    e(f"v_xor_b32 v{vdst + 3}, s{S_TAG}, v{vdst + 3}")
    e(f"v_or3_b32 v{vdst}, v{vdst}, v{vdst + 1}, v{vdst + 2}")
    e(f"v_or_b32 v{vdst}, v{vdst}, v{vdst + 3}")
    e(f"v_cmp_eq_u32 vcc, 0, v{vdst}")
    e("s_nop 1")
    e("s_cmp_eq_u64 vcc, -1")
    e(f"s_cbranch_scc1 L_pd{n}")
    e(f"s_add_u32 s{S_POLL}, s{S_POLL}, 1")
    e(f"s_cmp_ge_u32 s{S_POLL}, {CFG['POLL_MAX']}")
    e(f"s_cbranch_scc1 L_pd{n}")
    e("s_sleep 2")
    e(f"buffer_load_dwordx4 {vr(vdst)}, v{vaddr}, {srd(S_WS)}, s{s_addr} offen sc1")
    e("s_waitcnt vmcnt(0)")
    e(f"s_branch L_pc{n}")
    e.label(f"L_pd{n}")


def setup(e):
    e("s_cmp_ge_u32 s2, 256")
    e("s_cbranch_scc1 L_end")
    ptrs = [(S_X, 0), (S_K, 8), (S_V, 16), (S_SH, 24), (S_WG, 56), (S_WU, 64), (S_WS, 104), (S_SSM, 32), (S_DP, 40),
            (S_WD, 72), (S_GW, 80), (S_OUT, 88), (S_HST, 104)]
    for r, off in ptrs:
        e(f"s_load_dwordx2 s[{r}:{r + 1}], s[0:1], {off}")
    sizes = {S_X: 0x200000, S_K: 0x200000, S_V: 0x200000, S_SH: 4096, S_SSM: 0x200000, S_WG: 512 * 2752,
             S_WU: 512 * 2752, S_WD: 1376 * 1024, S_GW: 1024, S_OUT: 0x200000, S_WS: WS_SIZE, S_HST: WS_SIZE}
    for r, sz in sizes.items():
        e(f"s_mov_b32 s{r + 2}, {sz:#x}")
        e(f"s_mov_b32 s{r + 3}, 0x00020000")
    T = S_T
    e(f"v_lshrrev_b32 v{V_TMP[0]}, 6, v0")
    e(f"v_and_b32 v{V_LANE}, 63, v0")
    e(f"v_readfirstlane_b32 s{S_WAVE}, v{V_TMP[0]}")
    e(f"s_mov_b32 s{S_U}, s2")
    e(f"s_and_b32 s{T[0]}, s2, 7")
    e(f"s_lshr_b32 s{T[1]}, s2, 3")
    e(f"s_and_b32 s{T[2]}, s{T[1]}, 7")
    e(f"s_lshr_b32 s{T[3]}, s{T[1]}, 3")
    e(f"s_and_b32 s{T[4]}, s{T[0]}, 1")
    e(f"s_lshr_b32 s{T[5]}, s{T[0]}, 1")
    e(f"s_lshl_b32 s{S_GI}, s{T[4]}, 3")
    e(f"s_add_u32 s{S_GI}, s{S_GI}, s{T[2]}")
    e(f"s_lshl_b32 s{S_GJ}, s{T[5]}, 2")
    e(f"s_add_u32 s{S_GJ}, s{S_GJ}, s{T[3]}")
    e(f"s_lshl_b32 s{S_I2}, s{T[5]}, 3")
    e(f"s_add_u32 s{S_I2}, s{S_I2}, s{T[2]}")
    e(f"s_lshl_b32 s{S_N2}, s{T[4]}, 2")
    e(f"s_add_u32 s{S_N2}, s{S_N2}, s{T[3]}")
    c0 = -2.0 * math.sqrt(2.0 / math.pi) * math.log2(math.e)
    e(f"s_mov_b32 s{S_C0}, {f32hex(c0)}")
    e(f"s_mov_b32 s{S_C1}, {f32hex(c0 * 0.044715)}")
    e(f"s_mov_b32 s{S_MASKHI}, 0xffff0000")
    e(f"v_lshlrev_b32 v{V_L16}, 4, v{V_LANE}")
    if CFG["STAMPS"]:
        e(f"s_lshl_b32 s{S_STI}, s2, 2")
        e(f"s_add_u32 s{S_STI}, s{S_STI}, s{S_WAVE}")
        e(f"s_lshl_b32 s{S_STI}, s{S_STI}, 7")
        e(f"s_add_u32 s{S_STI}, s{S_STI}, {WS_STAMP:#x}")


def prep_addr(e):
    T = S_T
    a, b = V_TMP[0], V_TMP[1]
    e(f"v_and_b32 v{a}, 7, v0")
    e(f"v_lshrrev_b32 v{b}, 3, v0")
    e(f"v_lshlrev_b32 v{a}, 4, v{a}")
    e(f"v_lshl_add_u32 v{a}, v{b}, 11, v{a}")
    e(f"s_lshl_b32 s{T[0]}, s{S_I2}, 16")
    e(f"s_lshl_b32 s{T[1]}, s{S_N2}, 7")
    e(f"s_add_u32 s{T[0]}, s{T[0]}, s{T[1]}")
    e(f"s_sub_u32 s{T[0]}, s{T[0]}, 3072")
    e(f"v_add_u32 v92, s{T[0]}, v{a}")
    for m in range(1, 5):
        e(f"v_add_u32 v{92 + m}, {1024 * m}, v92")


def prep_loads(e):
    T = S_T
    toks = []
    for m in range(5):
        toks.append(e.vm(f"buffer_load_dwordx4 {vr(48 + 4 * m)}, v{92 + m}, {srd(S_K)}, 0 offen"))
    for m in range(2):
        toks.append(e.vm(f"buffer_load_dwordx4 {vr(68 + 4 * m)}, v{95 + m}, {srd(S_V)}, 0 offen"))
    e(f"s_lshl_b32 s{T[0]}, s{S_WAVE}, 10")
    e(f"s_add_u32 m0, s{T[0]}, {L_SH}")
    e(f"s_lshl_b32 s{T[1]}, s{S_N2}, 9")
    toks.append(e.vm(f"buffer_load_dwordx4 v{V_L16}, {srd(S_SH)}, s{T[1]} offen lds"))
    return toks


def unpack(e, dst, src, hi):
    if hi:
        e(f"v_and_b32 v{dst}, s{S_MASKHI}, v{src}")
    else:
        e(f"v_lshlrev_b32 v{dst}, 16, v{src}")


def round2(e, a, b, tmp):
    e(f"v_cvt_pk_bf16_f32 v{tmp}, v{a}, v{b}")
    e(f"v_lshlrev_b32 v{a}, 16, v{tmp}")
    e(f"v_and_b32 v{b}, s{S_MASKHI}, v{tmp}")


def prep_compute(e, toks):
    T = S_T
    a, b = V_TMP[0], V_TMP[1]
    e.wait(vm=toks)
    e(f"v_and_b32 v{a}, 7, v0")
    e(f"v_lshlrev_b32 v{a}, 6, v{a}")
    e(f"s_lshl_b32 s{T[0]}, s{S_WAVE}, 10")
    e(f"s_add_u32 s{T[0]}, s{T[0]}, {L_SH}")
    e(f"v_add_u32 v{a}, s{T[0]}, v{a}")
    sh = [e.lg(f"ds_read_b128 {vr(76 + 4 * m)}, v{a} offset:{16 * m}") for m in range(4)]
    w = V_TMP[2]
    e(f"v_lshrrev_b32 v{b}, 3, v0")
    e(f"v_sub_u32 v{b}, 31, v{b}")
    e(f"v_lshrrev_b32 v{w}, 2, v{b}")
    e(f"v_and_b32 v{V_TMP[3]}, 7, v0")
    e(f"v_xor_b32 v{w}, v{w}, v{V_TMP[3]}")
    e(f"v_lshlrev_b32 v{w}, 4, v{w}")
    e(f"v_and_b32 v{b}, 3, v{b}")
    e(f"v_lshl_add_u32 v{w}, v{b}, 2, v{w}")
    e(f"v_lshl_add_u32 v{w}, v{V_TMP[3]}, 10, v{w}")
    e(f"v_add_u32 v{w}, {L_PT}, v{w}")
    e.wait(lg=sh)
    wr = []
    for c in range(8):
        B = 100 + 16 * (c & 1)
        kc = [B + m for m in range(5)]
        vv = [B + 5, B + 6]
        s4 = [B + 7, B + 8, B + 9, B + 10]
        p0, p1, a0, a1, tp = B + 11, B + 12, B + 13, B + 14, B + 15
        for m in range(5):
            unpack(e, kc[m], 48 + 4 * m + (c >> 1), c & 1)
        for m in range(2):
            unpack(e, vv[m], 68 + 4 * m + (c >> 1), c & 1)
        for j in range(4):
            unpack(e, s4[j], 76 + 2 * c + (j >> 1), j & 1)
        if CFG["EMU_PREP"]:
            e(f"v_mul_f32 v{a0}, v{kc[0]}, v{s4[3]}")
            e(f"v_mul_f32 v{a1}, v{kc[1]}, v{s4[3]}")
            round2(e, a0, a1, tp)
            for tt in range(1, 4):
                e(f"v_mul_f32 v{p0}, v{kc[tt]}, v{s4[3 - tt]}")
                e(f"v_mul_f32 v{p1}, v{kc[tt + 1]}, v{s4[3 - tt]}")
                round2(e, p0, p1, tp)
                e(f"v_add_f32 v{a0}, v{a0}, v{p0}")
                e(f"v_add_f32 v{a1}, v{a1}, v{p1}")
                round2(e, a0, a1, tp)
        else:
            e(f"v_mul_f32 v{a0}, v{kc[0]}, v{s4[3]}")
            e(f"v_mul_f32 v{a1}, v{kc[1]}, v{s4[3]}")
            for tt in range(1, 4):
                e(f"v_fmac_f32 v{a0}, v{kc[tt]}, v{s4[3 - tt]}")
                e(f"v_fmac_f32 v{a1}, v{kc[tt + 1]}, v{s4[3 - tt]}")
        e(f"v_mul_f32 v{a0}, v{a0}, v{vv[0]}")
        e(f"v_mul_f32 v{a1}, v{a1}, v{vv[1]}")
        e(f"v_cvt_pk_bf16_f32 v{tp}, v{a1}, v{a0}")
        wr.append(e.lg(f"ds_write_b32 v{w}, v{tp} offset:{c * 128}"))
    e.wait(lg=wr)
    e("s_barrier")
    r = V_TMP[2]
    e(f"v_lshrrev_b32 v{b}, 3, v0")
    e(f"v_lshrrev_b32 v{a}, 6, v0")
    e(f"v_and_b32 v{r}, 7, v0")
    e(f"v_xor_b32 v{a}, v{a}, v{r}")
    e(f"v_lshlrev_b32 v{a}, 4, v{a}")
    e(f"v_lshl_add_u32 v{a}, v{b}, 7, v{a}")
    e(f"v_xor_b32 v{V_TMP[3]}, 64, v{a}")
    e(f"v_add_u32 v{a}, {L_PT}, v{a}")
    e(f"v_add_u32 v{V_TMP[3]}, {L_PT}, v{V_TMP[3]}")
    r0 = e.lg(f"ds_read_b128 {vr(48)}, v{a}")
    r1 = e.lg(f"ds_read_b128 {vr(52)}, v{V_TMP[3]} offset:4096")
    e(f"v_lshlrev_b32 v{r}, 4, v{r}")
    e(f"v_lshl_add_u32 v{r}, v{b}, 12, v{r}")
    e(f"s_lshl_b32 s{T[0]}, s{S_N2}, 18")
    e(f"s_lshl_b32 s{T[1]}, s{S_I2}, 7")
    e(f"s_sub_u32 s{T[0]}, s{T[0]}, s{T[1]}")
    e(f"s_add_u32 s{T[0]}, s{T[0]}, {WS_KV + 3968:#x}")
    e(f"s_add_u32 s{T[1]}, s{T[0]}, {32 * 4096:#x}")
    e.wait(lg=r0)
    st0 = e.vm(f"buffer_store_dwordx4 {vr(48)}, v{r}, {srd(S_WS)}, s{T[0]} offen sc1")
    e.wait(lg=r1)
    st1 = e.vm(f"buffer_store_dwordx4 {vr(52)}, v{r}, {srd(S_WS)}, s{T[1]} offen sc1")
    return [st0, st1]


def prep_flag(e, toks):
    T = S_T
    e.wait(vm=toks)
    e(f"s_lshl_b32 s{T[0]}, s{S_N2}, 9")
    e(f"s_lshl_b32 s{T[1]}, s{S_I2}, 4")
    e(f"s_add_u32 s{T[0]}, s{T[0]}, s{T[1]}")
    e(f"s_lshl_b32 s{T[1]}, s{S_WAVE}, 2")
    e(f"s_add_u32 s{T[0]}, s{T[0]}, s{T[1]}")
    e(f"s_add_u32 s{T[0]}, s{T[0]}, {FL_P:#x}")
    return flag_store(e, T[0])


def g1_addr(e):
    T = S_T
    a, b = V_TMP[0], V_TMP[1]
    e(f"v_lshrrev_b32 v{a}, 2, v{V_LANE}")
    e(f"v_mul_u32_u24 v{a}, 2752, v{a}")
    e(f"v_and_b32 v{b}, 3, v{V_LANE}")
    e(f"v_lshl_add_u32 v{V_WDMA}, v{b}, 4, v{a}")
    e(f"s_mul_i32 s{S_WSOFF}, s{S_WAVE}, {32 * 2752}")
    e(f"s_mul_i32 s{T[0]}, s{S_GJ}, 192")
    e(f"s_add_u32 s{S_WSOFF}, s{S_WSOFF}, s{T[0]}")
    e(f"v_lshrrev_b32 v{a}, 3, v{V_LANE}")
    e(f"v_lshlrev_b32 v{a}, 10, v{a}")
    e(f"v_and_b32 v{b}, 7, v{V_LANE}")
    e(f"v_lshl_add_u32 v{V_XDMA}, v{b}, 4, v{a}")
    e(f"s_lshl_b32 s{S_XSOFF}, s{S_GI}, 17")
    e(f"s_lshl_b32 s{T[0]}, s{S_WAVE}, 15")
    e(f"s_add_u32 s{S_XSOFF}, s{S_XSOFF}, s{T[0]}")
    e(f"s_mul_i32 s{S_XM0}, s{S_WAVE}, 12480")
    e(f"s_add_u32 s{S_XM0}, s{S_XM0}, {L_XS}")


def g1_addr2(e):
    T = S_T
    a, b = V_TMP[0], V_TMP[1]
    e(f"v_lshrrev_b32 v{a}, 5, v{V_LANE}")
    e(f"v_lshlrev_b32 v{a}, 9, v{a}")
    e(f"v_bfe_u32 v{b}, v{V_LANE}, 2, 2")
    e(f"v_lshl_add_u32 v{a}, v{b}, 6, v{a}")
    e(f"v_bfe_u32 v{b}, v{V_LANE}, 4, 1")
    e(f"v_lshl_add_u32 v{a}, v{b}, 5, v{a}")
    e(f"v_and_b32 v{b}, 3, v{V_LANE}")
    e(f"v_lshl_add_u32 v{V_WTR}, v{b}, 3, v{a}")
    e(f"v_bfe_u32 v{a}, v{V_LANE}, 3, 2")
    e(f"v_mul_u32_u24 v{a}, 1040, v{a}")
    e(f"v_and_b32 v{b}, 7, v{V_LANE}")
    e(f"v_lshl_add_u32 v{a}, v{b}, 7, v{a}")
    e(f"v_lshrrev_b32 v{b}, 5, v{V_LANE}")
    e(f"v_lshl_add_u32 v{a}, v{b}, 4, v{a}")
    e(f"v_add_u32 v{V_XRD}, s{S_XM0}, v{a}")
    e(f"s_lshl_b32 s{T[0]}, s{S_GI}, 2")
    e(f"s_add_u32 s{T[0]}, s{T[0]}, s{S_WAVE}")
    e(f"s_mul_i32 s{T[1]}, s{T[0]}, 43")
    e(f"s_mul_i32 s{T[2]}, s{S_GJ}, 3")
    e(f"s_add_u32 s{T[1]}, s{T[1]}, s{T[2]}")
    e(f"s_lshl_b32 s{S_HOFF}, s{T[1]}, 11")
    e(f"s_lshr_b32 s{T[1]}, s{T[0]}, 1")
    e(f"s_lshl_b32 s{T[1]}, s{T[1]}, 9")
    e(f"s_and_b32 s{T[0]}, s{T[0]}, 1")
    e(f"s_lshl_b32 s{T[2]}, s{S_GJ}, 1")
    e(f"s_add_u32 s{T[0]}, s{T[0]}, s{T[2]}")
    e(f"s_lshl_b32 s{T[0]}, s{T[0]}, 2")
    e(f"s_add_u32 s{T[0]}, s{T[0]}, s{T[1]}")
    e(f"s_add_u32 s{S_FHOFF}, s{T[0]}, {FL_H:#x}")


def w_dma(e, n):
    T = S_T
    ftl, kc = n // 4, n % 4
    slot = n % 4
    toks = []
    e(f"s_lshl_b32 s{T[1]}, s{S_WAVE}, 11")
    for mat, sr in ((0, S_WG), (1, S_WU)):
        for h in range(2):
            e(f"s_add_u32 s{T[0]}, s{S_WSOFF}, {(kc * 128 + 16 * h) * 2752 + ftl * 64}")
            e(f"s_add_u32 m0, s{T[1]}, {L_WR + slot * 16384 + mat * 8192 + h * 1024}")
            toks.append(e.vm(f"buffer_load_dwordx4 v{V_WDMA}, {srd(sr)}, s{T[0]} offen lds"))
    return toks


def x_dma(e, c):
    T = S_T
    toks = []
    for m in range(4):
        e(f"s_add_u32 s{T[0]}, s{S_XSOFF}, {m * 8192 + c * 128}")
        e(f"s_add_u32 m0, s{S_XM0}, {(c % 3) * 4160 + m * 1040}")
        toks.append(e.vm(f"buffer_load_dwordx4 v{V_XDMA}, {srd(S_X)}, s{T[0]} offen lds"))
    return toks


def x_read(e, c):
    return [e.lg(f"ds_read_b128 {ar(16 * c + 4 * q)}, v{V_XRD} offset:{(c % 3) * 4160 + q * 32}") for q in range(4)]


def w_tr(e, T_, mat):
    n, ts = T_ // 8, T_ % 8
    base = L_WR + (n % 4) * 16384 + mat * 8192 + ts * 1024
    d = V_WF + 8 * (T_ % 3) + 4 * mat
    return [e.lg(f"ds_read_b64_tr_b16 {vr(d, 2)}, v{V_WTR} offset:{base}"),
            e.lg(f"ds_read_b64_tr_b16 {vr(d + 2, 2)}, v{V_WTR} offset:{base + 256}")]


def g1_epilogue(ftl):
    e = Em()
    T = S_T
    A = V_ACC[ftl % 2]
    toks = []
    e(f"s_mul_i32 s{T[6]}, s{S_GJ}, 3")
    e(f"s_cmp_lt_u32 s{T[6]}, {43 - ftl}")
    e(f"s_cselect_b32 s{S_HST + 2}, {WS_SIZE:#x}, 0")
    e(f"s_add_u32 s{T[7]}, s{S_HOFF}, {ftl * 2048}")
    for half in range(2):
        O = V_ET + 16 + 4 * half
        for pr in range(4):
            r = 8 * half + 2 * pr
            B = V_ET + 8 * (pr & 1)
            g0, g1, u0, u1 = A + r, A + r + 1, A + 16 + r, A + 16 + r + 1
            t0, t1, tp, tq = B, B + 1, B + 2, B + 3
            round2(e, g0, g1, tp)
            round2(e, u0, u1, tq)
            e(f"v_mul_f32 v{t0}, v{g0}, v{g0}")
            e(f"v_mul_f32 v{t1}, v{g1}, v{g1}")
            e(f"v_mov_b32 v{tp}, s{S_C0}")
            e(f"v_fma_f32 v{t0}, v{t0}, s{S_C1}, v{tp}")
            e(f"v_fma_f32 v{t1}, v{t1}, s{S_C1}, v{tp}")
            e(f"v_mul_f32 v{t0}, v{t0}, v{g0}")
            e(f"v_mul_f32 v{t1}, v{t1}, v{g1}")
            e(f"v_exp_f32 v{t0}, v{t0}")
            e(f"v_exp_f32 v{t1}, v{t1}")
            e(f"v_add_f32 v{t0}, 1.0, v{t0}")
            e(f"v_add_f32 v{t1}, 1.0, v{t1}")
            e(f"v_rcp_f32 v{t0}, v{t0}")
            e(f"v_rcp_f32 v{t1}, v{t1}")
            e(f"v_mul_f32 v{t0}, v{t0}, v{g0}")
            e(f"v_mul_f32 v{t1}, v{t1}, v{g1}")
            round2(e, t0, t1, tp)
            e(f"v_mul_f32 v{t0}, v{t0}, v{u0}")
            e(f"v_mul_f32 v{t1}, v{t1}, v{u1}")
            e(f"v_cvt_pk_bf16_f32 v{O + pr}, v{t0}, v{t1}")
        toks.append(e.vm(
            f"buffer_store_dwordx4 {vr(O)}, v{V_L16}, {srd(S_HST)}, s{T[7]} offen offset:{half * 1024} sc1"))
    return e, toks


def h_flag(e, ftl, toks):
    T = S_T
    e.wait(vm=toks)
    e(f"s_add_u32 s{T[0]}, s{S_FHOFF}, {ftl * 128}")
    return flag_store(e, T[0])


def conv_addr(e):
    T = S_T
    a, b, c = V_TMP[0], V_TMP[1], V_TMP[2]
    e(f"s_lshr_b32 s{T[0]}, s{S_WAVE}, 1")
    e(f"s_lshl_b32 s{S_CH}, s{S_U}, 1")
    e(f"s_add_u32 s{S_CH}, s{S_CH}, s{T[0]}")
    e(f"s_mov_b32 s{T[1]}, 0xaaab")
    for phi, vd in enumerate((V_HC0, V_HC1, V_HC2)):
        e(f"v_add_u32 v{a}, {phi * 64}, v{V_LANE}")
        e(f"v_mul_u32_u24 v{b}, s{T[1]}, v{a}")
        e(f"v_lshrrev_b32 v{b}, 20, v{b}")
        e(f"v_mul_u32_u24 v{c}, 24, v{b}")
        e(f"v_sub_u32 v{c}, v{a}, v{c}")
        e(f"v_lshlrev_b32 v{c}, 4, v{c}")
        e(f"v_lshl_add_u32 v{vd}, v{b}, 8, v{c}")
    e(f"s_and_b32 s{T[1]}, s{S_WAVE}, 1")
    e(f"s_lshl_b32 s{T[2]}, s{S_CH}, 12")
    e(f"s_lshl_b32 s{T[3]}, s{T[1]}, 2")
    e(f"s_add_u32 s{T[2]}, s{T[2]}, s{T[3]}")
    e(f"s_sub_u32 s{T[2]}, s{T[2]}, 64")
    for vd in (V_HC0, V_HC1, V_HC2):
        e(f"v_add_u32 v{vd}, s{T[2]}, v{vd}")
    e(f"v_and_b32 v{a}, 15, v{V_LANE}")
    e(f"v_lshrrev_b32 v{b}, 4, v{V_LANE}")
    e(f"v_lshlrev_b32 v{c}, 2, v{b}")
    e(f"v_sub_u32 v{c}, v{c}, v{a}")
    e(f"v_add_u32 v{c}, 63, v{c}")
    e(f"v_mul_u32_u24 v{c}, 80, v{c}")
    e(f"s_mul_i32 s{T[2]}, s{T[0]}, 6400")
    e(f"s_mul_i32 s{T[3]}, s{T[1]}, 160")
    e(f"s_add_u32 s{T[2]}, s{T[2]}, s{T[3]}")
    e(f"s_add_u32 s{T[2]}, s{T[2]}, {L_UR - 3840}")
    e(f"v_add_u32 v{V_F}, s{T[2]}, v{c}")
    e(f"v_add_u32 v{a}, 1, v{a}")
    e(f"v_and_b32 v{V_SHF}, 1, v{a}")
    e(f"v_lshlrev_b32 v{V_SHF}, 4, v{V_SHF}")
    e(f"v_bfe_u32 v{c}, v{a}, 1, 1")
    e(f"v_mul_u32_u24 v{c}, 6208, v{c}")
    e(f"v_and_b32 v{a}, 28, v{a}")
    e(f"v_lshl_add_u32 v{c}, v{a}, 1, v{c}")
    e(f"v_mul_u32_u24 v{b}, 384, v{b}")
    e(f"v_add_u32 v{c}, v{c}, v{b}")
    e(f"s_mul_i32 s{T[2]}, s{T[0]}, 12416")
    e(f"s_lshl_b32 s{T[3]}, s{T[1]}, 7")
    e(f"s_add_u32 s{T[2]}, s{T[2]}, s{T[3]}")
    e(f"s_add_u32 s{T[2]}, s{T[2]}, {L_HC}")
    e(f"v_add_u32 v{V_H}, s{T[2]}, v{c}")
    e(f"s_lshl_b32 s{T[2]}, s{S_D}, 16")
    e(f"s_and_b32 s{T[3]}, s{S_D}, 0xffff0000")
    e(f"s_cmp_eq_u32 s{T[0]}, 0")
    e(f"s_cselect_b32 s{S_DF}, s{T[2]}, s{T[3]}")


def hc_dma(e):
    T = S_T
    parts, toks = [], []
    for eta in range(2):
        for phi, vd in enumerate((V_HC0, V_HC1, V_HC2)):
            p = Em()
            p(f"s_mul_i32 s{T[8]}, s{S_WAVE}, 6208")
            p(f"s_add_u32 m0, s{T[8]}, {L_HC + (3 * eta + phi) * 1024}")
            if eta == 0:
                toks.append(p.vm(f"buffer_load_dwordx4 v{vd}, {srd(S_SSM)}, 0 offen lds"))
            else:
                p(f"v_add_u32 v{V_TMP[4]}, 2048, v{vd}")
                toks.append(p.vm(f"buffer_load_dwordx4 v{V_TMP[4]}, {srd(S_SSM)}, 0 offen lds"))
            parts.append(p)
    p = Em()
    p(f"s_lshl_b32 s{T[8]}, s{S_CH}, 12")
    p(f"v_mov_b32 v{V_TMP[4]}, 0")
    toks.append(p.vm(f"buffer_load_dword v{V_H01}, v{V_TMP[4]}, {srd(S_SSM)}, s{T[8]} offen"))
    parts.append(p)
    return parts, toks


def hc_fix(e, toks):
    T = S_T
    a, b = V_TMP[4], V_TMP[5]
    e.wait(vm=toks)
    e(f"s_and_b32 s{T[8]}, s{S_WAVE}, 1")
    e(f"s_cmp_eq_u32 s{T[8]}, 1")
    e(f"s_cselect_b32 s{T[9]}, 15, 99")
    e(f"v_cmp_eq_u32 vcc, s{T[9]}, v{V_LANE}")
    e(f"v_cndmask_b32 v{a}, 0, v{V_H01}, vcc")
    e(f"s_mul_i32 s{T[8]}, s{S_WAVE}, 6208")
    e(f"s_add_u32 s{T[8]}, s{T[8]}, {L_HC}")
    e(f"v_lshlrev_b32 v{b}, 2, v{V_LANE}")
    e(f"v_add_u32 v{b}, s{T[8]}, v{b}")
    e(f"s_mov_b64 s[{S_EXSAVE}:{S_EXSAVE + 1}], exec")
    e("s_mov_b64 exec, 0xffff")
    t = e.lg(f"ds_write_b32 v{b}, v{a}")
    e(f"s_mov_b64 exec, s[{S_EXSAVE}:{S_EXSAVE + 1}]")
    return t


def ur_zero(e):
    a = V_TMP[4]
    Z = V_ET + 24
    for q in range(4):
        e(f"v_mov_b32 v{Z + q}, 0")
    e(f"v_lshlrev_b32 v{a}, 4, v0")
    e(f"v_add_u32 v{a}, {L_UR}, v{a}")
    e(f"v_cmp_gt_u32 vcc, 80, v0")
    e(f"s_and_saveexec_b64 s[{S_EXSAVE}:{S_EXSAVE + 1}], vcc")
    t0 = e.lg(f"ds_write_b128 v{a}, {vr(Z)} offset:5120")
    t1 = e.lg(f"ds_write_b128 v{a}, {vr(Z)} offset:{6400 + 5120}")
    e(f"s_mov_b64 exec, s[{S_EXSAVE}:{S_EXSAVE + 1}]")
    return [t0, t1]


V_PL = 140


def kv_poll_issue(e):
    T = S_T
    e(f"v_and_b32 v152, 31, v{V_LANE}")
    e(f"v_lshlrev_b32 v152, 4, v152")
    e(f"s_lshr_b32 s{T[10]}, s{S_U}, 5")
    e(f"s_lshl_b32 s{T[10]}, s{T[10]}, 9")
    e(f"s_add_u32 s{T[10]}, s{T[10]}, {FL_P:#x}")
    return poll_issue(e, 152, T[10], V_PL)


def kv_load(e, tok):
    T = S_T
    poll_check(e, tok, 152, T[10], V_PL)
    e(f"v_lshlrev_b32 v153, 4, v0")
    e(f"s_lshl_b32 s{T[11]}, s{S_U}, 13")
    e(f"s_add_u32 s{T[11]}, s{T[11]}, {WS_KV:#x}")
    e(f"s_add_u32 s{T[12]}, s{T[11]}, 4096")
    t0 = e.vm(f"buffer_load_dwordx4 {vr(144)}, v153, {srd(S_WS)}, s{T[11]} offen sc1")
    t1 = e.vm(f"buffer_load_dwordx4 {vr(148)}, v153, {srd(S_WS)}, s{T[12]} offen sc1")
    return [t0, t1]


def kv_write(e, toks):
    e(f"v_lshrrev_b32 v153, 2, v0")
    e(f"v_mul_u32_u24 v153, 80, v153")
    e(f"v_and_b32 v152, 3, v0")
    e(f"v_lshl_add_u32 v153, v152, 4, v153")
    e(f"v_add_u32 v153, {L_UR}, v153")
    e.wait(vm=toks)
    return [e.lg(f"ds_write_b128 v153, {vr(144)}"),
            e.lg(f"ds_write_b128 v153, {vr(148)} offset:6400")]


def wd_addr(e):
    T = S_T
    a, b, c = V_TMP[0], V_TMP[1], V_TMP[2]
    e(f"v_lshrrev_b32 v{a}, 3, v{V_LANE}")
    e(f"v_bfe_u32 v{b}, v{V_LANE}, 4, 1")
    e(f"v_lshlrev_b32 v{b}, 2, v{b}")
    e(f"v_and_b32 v{c}, 7, v{V_LANE}")
    e(f"v_xor_b32 v{c}, v{c}, v{b}")
    e(f"v_lshlrev_b32 v{c}, 4, v{c}")
    e(f"v_lshl_add_u32 v{V_WDDMA}, v{a}, 10, v{c}")
    e(f"s_lshl_b32 s{S_WDSOFF}, s{S_WAVE}, 15")
    e(f"s_lshl_b32 s{T[0]}, s{S_N2}, 7")
    e(f"s_add_u32 s{S_WDSOFF}, s{S_WDSOFF}, s{T[0]}")
    e(f"v_lshrrev_b32 v{a}, 5, v{V_LANE}")
    e(f"v_lshlrev_b32 v{a}, 9, v{a}")
    e(f"v_bfe_u32 v{b}, v{V_LANE}, 2, 2")
    e(f"v_lshl_add_u32 v{a}, v{b}, 7, v{a}")
    e(f"v_bfe_u32 v{b}, v{V_LANE}, 4, 1")
    e(f"v_lshl_add_u32 v{a}, v{b}, 5, v{a}")
    e(f"v_and_b32 v{b}, 3, v{V_LANE}")
    e(f"v_lshl_add_u32 v{a}, v{b}, 3, v{a}")
    e(f"v_bfe_u32 v{b}, v{V_LANE}, 3, 1")
    e(f"v_lshl_add_u32 v{V_WDTR0}, v{b}, 6, v{a}")
    e(f"v_xor_b32 v{V_WDTR1}, 64, v{V_WDTR0}")
    e(f"s_lshl_b32 s{T[0]}, s{S_WAVE}, 13")
    e(f"s_add_u32 s{T[0]}, s{T[0]}, {L_WDS}")
    e(f"v_add_u32 v{V_WDTR0}, s{T[0]}, v{V_WDTR0}")
    e(f"v_add_u32 v{V_WDTR1}, s{T[0]}, v{V_WDTR1}")


def wd_buf(slot, sched):
    return sched[slot]


def wd_dma(e, slot, buf):
    T = S_T
    toks = []
    if buf < 2:
        e(f"s_lshl_b32 s{T[9]}, s{S_WAVE}, 13")
        base = L_WDS + buf * 4096
    else:
        e(f"s_lshl_b32 s{T[9]}, s{S_WAVE}, 14")
        base = L_WR + (buf - 2) * 4096
    for m in range(4):
        e(f"s_add_u32 s{T[8]}, s{S_WDSOFF}, {slot * 131072 + m * 8192}")
        e(f"s_add_u32 m0, s{T[9]}, {base + m * 1024}")
        toks.append(e.vm(f"buffer_load_dwordx4 v{V_WDDMA}, {srd(S_WD)}, s{T[8]} offen lds"))
    return toks


V_WDTR0B, V_WDTR1B = 192, 193


def wd_addr_b(e):
    T = S_T
    e(f"s_lshl_b32 s{T[9]}, s{S_WAVE}, 13")
    e(f"s_sub_u32 s{T[9]}, s{T[9]}, {L_WDS}")
    e(f"v_add_u32 v{V_WDTR0B}, s{T[9]}, v{V_WDTR0}")
    e(f"v_add_u32 v{V_WDTR1B}, s{T[9]}, v{V_WDTR1}")


def wd_tr(e, slot, buf):
    toks = []
    if buf < 2:
        base = buf * 4096
        vb = (V_WDTR0, V_WDTR1)
    else:
        base = L_WR + (buf - 2) * 4096
        vb = (V_WDTR0B, V_WDTR1B)
    for half in range(2):
        for dt in range(2):
            k, r = wd_frag_reg(slot, half * 2 + dt)
            for q in range(2):
                toks.append(e.lg(
                    f"ds_read_b64_tr_b16 {rr(k, r + 2 * q, 2)}, v{vb[dt]} offset:{base + (16 * half + 8 * q) * 128}"))
    return toks


def gemm1(e, pre):
    NG = 192
    gaps = [Em() for _ in range(NG)]
    pre_k = [Em() for _ in range(96)]
    wtok = dict(pre["w"])
    xtok = dict(pre["x"])
    trtok = {}
    xr = {}

    e.wait(vm=xtok[0])
    xr[0] = x_read(e, 0)
    e.wait(vm=wtok[0])
    e("s_barrier")
    for T_ in (0, 1):
        trtok[(T_, 0)] = w_tr(e, T_, 0)
        trtok[(T_, 1)] = w_tr(e, T_, 1)
    e.wait(lg=xr[0])
    xtok[3] = x_dma(e, 3)

    for c in range(1, 8):
        k = 4 * c - 3
        g = gaps[2 * k]
        g.wait(vm=xtok[c])
        xr[c] = x_read(g, c)
        if c + 3 < 8:
            g2 = gaps[2 * k + 3]
            g2.wait(lg=xr[c])
            xtok[c + 3] = x_dma(g2, c + 3)

    for n in range(1, 12):
        k = 8 * (n - 1) + 6
        p = pre_k[k]
        p.wait(vm=wtok[n])
        p("s_barrier")
        if 2 <= n and n + 2 < 12:
            wtok[n + 2] = w_dma(gaps[2 * k], n + 2)

    for T_ in range(2, 96):
        trtok[(T_, 0)] = w_tr(gaps[2 * (T_ - 2)], T_, 0)
        trtok[(T_, 1)] = w_tr(gaps[2 * (T_ - 2) + 1], T_, 1)

    bg = pre["bg"]
    bg(gaps, pre_k)

    htoks = {}
    for ftl in range(2):
        ep, toks = g1_epilogue(ftl)
        htoks[ftl] = toks
        lo = 64 * (ftl + 1) + 3
        hi = 64 * (ftl + 1) + 56
        gaps[lo - 1].L.extend(ep.L[:4])
        body = ep.L[4:]
        n = len(body)
        for idx, ins in enumerate(body):
            gi = lo + idx * (hi - lo) // n
            gaps[gi].L.append(ins)
        fg = min(64 * (ftl + 2) + 20, NG - 1) if ftl == 0 else None
        if fg is not None:
            h_flag(gaps[fg], ftl, toks)

    for T_ in range(96):
        P = T_ // 32
        A = V_ACC[P % 2]
        t = T_ % 32
        e.extend(pre_k[T_])
        lgw = list(trtok[(T_, 0)])
        if P == 0:
            lgw += xr[t // 4]
        e.wait(lg=lgw)
        wf = V_WF + 8 * (T_ % 3)
        cg = "0" if t == 0 else vr(A, 16)
        cu = "0" if t == 0 else vr(A + 16, 16)
        e(f"v_mfma_f32_32x32x16_bf16 {vr(A, 16)}, {vr(wf)}, {ar(4 * t)}, {cg}")
        e.extend(gaps[2 * T_])
        e.wait(lg=trtok[(T_, 1)])
        e(f"v_mfma_f32_32x32x16_bf16 {vr(A + 16, 16)}, {vr(wf + 4)}, {ar(4 * t)}, {cu}")
        e.extend(gaps[2 * T_ + 1])
    return htoks


def g_path(e):
    T = S_T
    gw = e.vm(f"buffer_load_dwordx4 {vr(48)}, v{V_L16}, {srd(S_GW)}, 0 offen")
    xt = []
    e(f"s_lshl_b32 s{T[0]}, s{S_GI}, 17")
    e(f"s_lshl_b32 s{T[1]}, s{S_WAVE}, 15")
    e(f"s_add_u32 s{T[0]}, s{T[0]}, s{T[1]}")
    for r in range(32):
        e(f"s_add_u32 s{T[1]}, s{T[0]}, {r * 1024}")
        xt.append(e.vm(f"buffer_load_dwordx4 {vr(64 + 4 * r)}, v{V_L16}, {srd(S_X)}, s{T[1]} offen"))
    e.wait(vm=gw)
    for q in range(8):
        unpack(e, 52 + q, 48 + (q >> 1), q & 1)
    e(f"v_mov_b32 v60, 0x3f803f80")
    G = 61
    e(f"v_mov_b32 v{G}, 0")
    for r4 in range(0, 32, 4):
        e.wait(vm=xt[r4 + 3])
        accs = []
        for r in range(r4, r4 + 4):
            X = 64 + 4 * r
            tb = 192 + 4 * (r - r4)
            acc = tb + 3
            for q in range(4):
                e(f"v_lshlrev_b32 v{tb}, 16, v{X + q}")
                e(f"v_and_b32 v{tb + 1}, s{S_MASKHI}, v{X + q}")
                e(f"v_mul_f32 v{tb}, v{tb}, v{52 + 2 * q}")
                e(f"v_mul_f32 v{tb + 1}, v{tb + 1}, v{53 + 2 * q}")
                e(f"v_cvt_pk_bf16_f32 v{tb + 2}, v{tb}, v{tb + 1}")
                e(f"v_lshlrev_b32 v{tb}, 16, v{tb + 2}")
                e(f"v_and_b32 v{tb + 1}, s{S_MASKHI}, v{tb + 2}")
                if q == 0:
                    e(f"v_add_f32 v{acc}, v{tb}, v{tb + 1}")
                else:
                    e(f"v_add_f32 v{tb}, v{tb}, v{tb + 1}")
                    e(f"v_add_f32 v{acc}, v{acc}, v{tb}")
            accs.append(acc)
        for mod in ("row_shr:1 row_mask:0xf bank_mask:0xf bound_ctrl:0",
                    "row_shr:2 row_mask:0xf bank_mask:0xf bound_ctrl:0",
                    "row_shr:4 row_mask:0xf bank_mask:0xf bound_ctrl:0",
                    "row_shr:8 row_mask:0xf bank_mask:0xf bound_ctrl:0",
                    "row_bcast:15 row_mask:0xa bank_mask:0xf",
                    "row_bcast:31 row_mask:0xc bank_mask:0xf"):
            for acc in accs:
                e(f"v_add_f32_dpp v{acc}, v{acc}, v{acc} {mod}")
        for i, acc in enumerate(accs):
            e(f"v_readlane_b32 s{T[2 + i]}, v{acc}, 63")
        for i, acc in enumerate(accs):
            e(f"v_writelane_b32 v{G}, s{T[2 + i]}, {r4 + i}")
    a, b, c = 192, 193, 194
    e(f"v_cvt_pk_bf16_f32 v{a}, v{G}, v{G}")
    e(f"v_lshlrev_b32 v{a}, 16, v{a}")
    e(f"v_mul_f32 v{a}, {f32hex(-math.log2(math.e))}, v{a}")
    e(f"v_exp_f32 v{a}, v{a}")
    e(f"v_add_f32 v{a}, 1.0, v{a}")
    e(f"v_rcp_f32 v{a}, v{a}")
    e(f"v_cvt_pk_bf16_f32 v{a}, v{a}, v{a}")
    e(f"v_lshlrev_b32 v{a}, 16, v{a}")
    e(f"v_sub_f32 v{b}, 1.0, v{a}")
    e(f"v_cvt_pk_bf16_f32 v{a}, v{a}, v{b}")
    e(f"v_lshlrev_b32 v{c}, 2, v{V_LANE}")
    e(f"s_lshl_b32 s{T[0]}, s{S_GI}, 9")
    e(f"s_lshl_b32 s{T[1]}, s{S_WAVE}, 7")
    e(f"s_add_u32 s{T[0]}, s{T[0]}, s{T[1]}")
    e(f"s_add_u32 s{T[0]}, s{T[0]}, {WS_G:#x}")
    e(f"s_mov_b64 s[{S_EXSAVE}:{S_EXSAVE + 1}], exec")
    e("s_mov_b64 exec, 0xffffffff")
    st = e.vm(f"buffer_store_dword v{a}, v{c}, {srd(S_WS)}, s{T[0]} offen sc1")
    e(f"s_mov_b64 exec, s[{S_EXSAVE}:{S_EXSAVE + 1}]")
    return st


def epoch_update(e):
    T = S_T
    e(f"s_cmp_lg_u32 s{S_GI}, 0")
    e("s_cbranch_scc1 L_noepoch")
    e(f"s_cmp_lg_u32 s{S_WAVE}, 0")
    e("s_cbranch_scc1 L_noepoch")
    for q in range(4):
        e(f"s_mov_b32 s{T[10]}, {FL_P + q * 1024:#x}")
        t = poll_issue(e, V_L16, T[10], V_PL)
        poll_check(e, t, V_L16, T[10], V_PL)
    e(f"s_sub_u32 s{T[0]}, s{S_TAG}, {0x9E3779B9 - 1:#x}")
    e(f"v_mov_b32 v{V_TMP[0]}, s{T[0]}")
    e(f"v_mov_b32 v{V_TMP[1]}, 0")
    e(f"s_mov_b32 s{T[1]}, {FL_EPOCH:#x}")
    e(f"s_mov_b64 s[{S_EXSAVE}:{S_EXSAVE + 1}], exec")
    e("s_mov_b64 exec, 1")
    e.vm(f"buffer_store_dword v{V_TMP[0]}, v{V_TMP[1]}, {srd(S_WS)}, s{T[1]} offen sc1")
    e(f"s_mov_b64 exec, s[{S_EXSAVE}:{S_EXSAVE + 1}]")
    e.label("L_noepoch")


C_ACC = 48
C_F = 80
C_H = 112


def conv_hraw(e, p, nn):
    d = C_H + 20 * p + 4 * (nn % 5)
    off = p * 1536 + 16 * nn
    return [e.lg(f"ds_read_b64 {vr(d, 2)}, v{V_H} offset:{off}"),
            e.lg(f"ds_read_b64 {vr(d + 2, 2)}, v{V_H} offset:{off + 8}")]


def conv_align(e, p, nn):
    d = C_H + 20 * p + 4 * (nn % 5)
    nx = C_H + 20 * p + 4 * ((nn + 1) % 5)
    for k in range(3):
        e(f"v_alignbit_b32 v{d + k}, v{d + k + 1}, v{d + k}, v{V_SHF}")
    e(f"v_alignbit_b32 v{d + 3}, v{nx}, v{d + 3}, v{V_SHF}")


def conv_f(e, tt, delta):
    d = C_F + 16 * (tt % 2) + 4 * delta
    off = 1280 * (3 - delta) + 80 * (tt >> 2) + 16 * (tt & 3)
    return e.lg(f"ds_read_b128 {vr(d)}, v{V_F} offset:{off}")


def conv(e, bg):
    hr = {}
    for nn in range(4):
        for p in range(4):
            hr[(p, nn)] = conv_hraw(e, p, nn)
            if len(hr) % 6 == 0:
                pass
    ft = {}
    for dl in range(4):
        ft[(0, dl)] = conv_f(e, 0, dl)
    for nn in range(3):
        for p in range(4):
            e.wait(lg=hr[(p, nn)] + hr[(p, nn + 1)][:1])
            conv_align(e, p, nn)
    gaps = [Em() for _ in range(160)]
    for tt in range(8):
        g0 = 20 * tt
        if tt + 4 <= 10:
            for p in range(4):
                hr[(p, tt + 4)] = conv_hraw(gaps[g0 + p], p, tt + 4)
        if tt + 1 < 8:
            for dl in range(4):
                ft[(tt + 1, dl)] = conv_f(gaps[g0 + 4 + dl], tt + 1, dl)
            for p in range(4):
                g = gaps[g0 + 12 + 2 * p]
                g.wait(lg=hr[(p, tt + 3)] + hr[(p, tt + 4)][:1])
                conv_align(g, p, tt + 3)
    bg(gaps)
    for tt in range(8):
        idx = 0
        for dl in range(4):
            e.wait(lg=ft[(tt, dl)])
            for p in range(4 - dl):
                j = p + dl
                for bb in range(2):
                    acc = C_ACC + 8 * j + 4 * bb
                    h = C_H + 20 * p + 4 * ((tt + 2 * bb) % 5)
                    f = C_F + 16 * (tt % 2) + 4 * dl
                    c = "0" if (tt == 0 and dl == 0) else vr(acc)
                    e(f"v_mfma_f32_16x16x32_bf16 {vr(acc)}, {vr(h)}, {vr(f)}, {c}")
                    e.extend(gaps[20 * tt + idx])
                    idx += 1


def conv_epilogue(e):
    T = S_T
    a, b, c, u = V_TMP[0], V_TMP[1], V_TMP[2], V_TMP[3]
    def exbase(dst, wreg):
        e(f"s_lshl_b32 s{dst}, s{wreg}, 12")
        e(f"s_add_u32 s{dst}, s{dst}, {L_EX012}")
        e(f"s_cmp_eq_u32 s{wreg}, 3")
        e(f"s_cselect_b32 s{dst}, {L_EX3}, s{dst}")
    e(f"s_xor_b32 s{T[2]}, s{S_WAVE}, 1")
    exbase(T[0], S_WAVE)
    exbase(T[1], T[2])
    e(f"v_add_u32 v{a}, s{T[0]}, v{V_L16}")
    e(f"v_add_u32 v{b}, s{T[1]}, v{V_L16}")
    e(f"s_and_b32 s{T[3]}, s{S_WAVE}, 1")
    e(f"s_cmp_eq_u32 s{T[3]}, 0")
    e("s_cbranch_scc1 L_cv_noswap")
    for q in range(16):
        e(f"v_swap_b32 v{48 + q}, v{64 + q}")
    e.label("L_cv_noswap")
    e("s_nop 1")
    wr = [e.lg(f"ds_write_b128 v{b}, {vr(64 + 4 * q)} offset:{q * 1024}") for q in range(4)]
    e(f"v_and_b32 v{c}, 15, v{V_LANE}")
    e(f"v_sub_u32 v{u}, 47, v{c}")
    e(f"v_mul_u32_u24 v{u}, 80, v{u}")
    e(f"v_lshrrev_b32 v{V_TMP[4]}, 4, v{V_LANE}")
    e(f"v_lshlrev_b32 v{V_TMP[5]}, 3, v{V_TMP[4]}")
    e(f"v_sub_u32 v{u}, v{u}, v{V_TMP[5]}")
    e(f"s_lshr_b32 s{T[4]}, s{S_WAVE}, 1")
    e(f"s_mul_i32 s{T[4]}, s{T[4]}, 6400")
    e(f"s_mul_i32 s{T[5]}, s{T[3]}, 2560")
    e(f"s_sub_u32 s{T[4]}, s{T[4]}, s{T[5]}")
    e(f"s_add_u32 s{T[4]}, s{T[4]}, {L_UR + 24}")
    e(f"v_add_u32 v{u}, s{T[4]}, v{u}")
    ur = {}
    for jj in range(2):
        for bb in range(2):
            ur[(jj, bb)] = e.lg(
                f"ds_read_b64 {vr(96 + 4 * jj + 2 * bb, 2)}, v{u} offset:{(1 - jj) * 1280 + (1 - bb) * 32}")
    e(f"v_lshlrev_b32 v{c}, 6, v{c}")
    e(f"v_add_u32 v{c}, v{c}, v{V_TMP[5]}")
    e(f"v_add_u32 v{c}, s{T[0]}, v{c}")
    e.wait(lg=wr)
    e("s_barrier")
    rd = [e.lg(f"ds_read_b128 {vr(80 + 4 * q)}, v{a} offset:{q * 1024}") for q in range(4)]
    outs = []
    for q in range(4):
        jj, bb = q >> 1, q & 1
        e.wait(lg=[rd[q], ur[(jj, bb)]])
        A = 48 + 4 * q
        U = 96 + 4 * jj + 2 * bb
        t = 104
        for r in range(4):
            e(f"v_add_f32 v{A + r}, v{A + r}, v{80 + 4 * q + r}")
        round2(e, A, A + 1, t + 4)
        round2(e, A + 2, A + 3, t + 5)
        unpack(e, t, U + 1, 1)
        unpack(e, t + 1, U + 1, 0)
        unpack(e, t + 2, U, 1)
        unpack(e, t + 3, U, 0)
        for r in range(4):
            e(f"v_mul_f32 v{t + r}, s{S_DF}, v{t + r}")
        round2(e, t, t + 1, t + 4)
        round2(e, t + 2, t + 3, t + 5)
        for r in range(4):
            e(f"v_add_f32 v{A + r}, v{A + r}, v{t + r}")
        O = 64 + 2 * q
        e(f"v_cvt_pk_bf16_f32 v{O}, v{A}, v{A + 1}")
        e(f"v_cvt_pk_bf16_f32 v{O + 1}, v{A + 2}, v{A + 3}")
        outs.append(O)
    e.wait(lg=rd)
    ws_ = [e.lg(f"ds_write_b64 v{c}, {vr(outs[q], 2)} offset:{(q >> 1) * 1024 + (q & 1) * 32}") for q in range(4)]
    e.wait(lg=ws_)
    r0 = e.lg(f"ds_read_b128 {vr(80)}, v{a}")
    r1 = e.lg(f"ds_read_b128 {vr(84)}, v{a} offset:1024")
    e(f"s_lshl_b32 s{T[4]}, s{S_CH}, 12")
    e(f"s_lshl_b32 s{T[5]}, s{T[3]}, 11")
    e(f"s_add_u32 s{T[4]}, s{T[4]}, s{T[5]}")
    e(f"s_add_u32 s{T[4]}, s{T[4]}, {WS_Y2:#x}")
    e.wait(lg=r0)
    s0 = e.vm(f"buffer_store_dwordx4 {vr(80)}, v{V_L16}, {srd(S_WS)}, s{T[4]} offen sc1")
    e.wait(lg=r1)
    s1 = e.vm(f"buffer_store_dwordx4 {vr(84)}, v{V_L16}, {srd(S_WS)}, s{T[4]} offen offset:1024 sc1")
    return [s0, s1]


def y_flag(e, toks):
    T = S_T
    e.wait(vm=toks)
    e(f"s_lshl_b32 s{T[0]}, s{S_U}, 4")
    e(f"s_lshl_b32 s{T[1]}, s{S_WAVE}, 2")
    e(f"s_add_u32 s{T[0]}, s{T[0]}, s{T[1]}")
    e(f"s_add_u32 s{T[0]}, s{T[0]}, {FL_Y:#x}")
    return flag_store(e, T[0])


V_P2 = 196


def h_poll_issue(e):
    T = S_T
    e(f"v_min_u32 v194, 23, v{V_LANE}")
    e(f"v_lshlrev_b32 v194, 4, v194")
    e(f"s_lshl_b32 s{T[13]}, s{S_I2}, 9")
    e(f"s_add_u32 s{T[13]}, s{T[13]}, {FL_H:#x}")
    return poll_issue(e, 194, T[13], V_P2)


def h_loads(e, slots):
    T = S_T
    toks = {}
    e(f"s_mul_i32 s{T[14]}, s{S_I2}, 86")
    e(f"s_add_u32 s{T[14]}, s{T[14]}, s{S_WAVE}")
    e(f"s_lshl_b32 s{T[14]}, s{T[14]}, 11")
    for m in slots:
        for st in range(2):
            e(f"s_add_u32 s{T[15]}, s{T[14]}, {(st * 43 + 4 * m) * 2048}")
            if m == 10:
                e(f"s_cmp_eq_u32 s{S_WAVE}, 3")
                e(f"s_cselect_b32 s{T[15]}, {WS_SIZE:#x}, s{T[15]}")
            for half in range(2):
                k, r = h_frag_reg(m, st * 2 + half)
                toks[(m, st, half)] = e.vm(
                    f"buffer_load_dwordx4 {rr(k, r, 4)}, v{V_L16}, {srd(S_WS)}, s{T[15]} offen offset:{half * 1024} sc1")
    return toks


G2ACC = 48


def gemm2(e, htok, wdtok, pre_slot):
    for m in range(11):
        if m in pre_slot:
            e.extend(pre_slot[m])
        for half in range(2):
            for st in range(2):
                e.wait(vm=htok[(m, st, half)])
                for dt in range(2):
                    if m in wdtok:
                        e.wait(lg=wdtok[m])
                    ka, ra = wd_frag_reg(m, half * 2 + dt)
                    kb, rb = h_frag_reg(m, st * 2 + half)
                    acc = G2ACC + 32 * dt + 16 * st
                    c = "0" if (m == 0 and half == 0) else vr(acc, 16)
                    e(f"v_mfma_f32_32x32x16_bf16 {vr(acc, 16)}, {rr(ka, ra, 4)}, {rr(kb, rb, 4)}, {c}")


def blend_prefetch(e):
    T = S_T
    a, b = V_TMP[0], V_TMP[1]
    e(f"v_lshrrev_b32 v{a}, 3, v0")
    e(f"v_and_b32 v{b}, 7, v0")
    e(f"v_lshlrev_b32 v{b}, 4, v{b}")
    e(f"v_lshl_add_u32 v195, v{a}, 10, v{b}")
    e(f"s_lshl_b32 s{T[16]}, s{S_I2}, 16")
    e(f"s_lshl_b32 s{T[17]}, s{S_N2}, 7")
    e(f"s_add_u32 s{T[16]}, s{T[16]}, s{T[17]}")
    e(f"s_add_u32 s{T[17]}, s{T[16]}, 32768")
    q0 = e.vm(f"buffer_load_dwordx4 {vr(200)}, v195, {srd(S_X)}, s{T[16]} offen")
    q1 = e.vm(f"buffer_load_dwordx4 {vr(204)}, v195, {srd(S_X)}, s{T[17]} offen")
    return [q0, q1]


def g_loads(e):
    T = S_T
    a, b = V_TMP[0], V_TMP[1]
    e(f"v_lshrrev_b32 v{a}, 3, v0")
    e(f"v_and_b32 v{b}, 7, v0")
    e(f"v_lshlrev_b32 v{b}, 4, v{b}")
    e(f"v_lshl_add_u32 v166, v{a}, 12, v{b}")
    e(f"v_lshlrev_b32 v167, 2, v{a}")
    e(f"s_lshl_b32 s{T[0]}, s{S_I2}, 8")
    e(f"s_add_u32 s{T[0]}, s{T[0]}, {WS_G:#x}")
    g0 = e.vm(f"buffer_load_dword v176, v167, {srd(S_WS)}, s{T[0]} offen sc1")
    g1 = e.vm(f"buffer_load_dword v177, v167, {srd(S_WS)}, s{T[0]} offen offset:128 sc1")
    return [g0, g1]


def y_poll_issue(e):
    T = S_T
    e(f"v_and_b32 v194, 31, v{V_LANE}")
    e(f"v_lshlrev_b32 v194, 4, v194")
    e(f"s_lshl_b32 s{T[13]}, s{S_N2}, 9")
    e(f"s_add_u32 s{T[13]}, s{T[13]}, {FL_Y:#x}")
    return poll_issue(e, 194, T[13], V_P2)


def y_loads(e, tok):
    T = S_T
    poll_check(e, tok, 194, T[13], V_P2)
    e(f"s_lshl_b32 s{T[0]}, s{S_N2}, 18")
    e(f"s_lshl_b32 s{T[1]}, s{S_I2}, 7")
    e(f"s_add_u32 s{T[0]}, s{T[0]}, s{T[1]}")
    e(f"s_add_u32 s{T[0]}, s{T[0]}, {WS_Y2:#x}")
    e(f"s_add_u32 s{T[1]}, s{T[0]}, {32 * 4096:#x}")
    y0 = e.vm(f"buffer_load_dwordx4 {vr(180)}, v166, {srd(S_WS)}, s{T[0]} offen sc1")
    y1 = e.vm(f"buffer_load_dwordx4 {vr(184)}, v166, {srd(S_WS)}, s{T[1]} offen sc1")
    return [y0, y1]


def blend(e, qt, gt, yt):
    T = S_T
    a, b, c, d = V_TMP[0], V_TMP[1], V_TMP[2], V_TMP[3]
    e("s_barrier")
    e(f"v_and_b32 v{a}, 31, v{V_LANE}")
    e(f"v_mul_u32_u24 v{a}, 272, v{a}")
    e(f"v_lshrrev_b32 v{b}, 5, v{V_LANE}")
    e(f"v_lshl_add_u32 v{a}, v{b}, 4, v{a}")
    e(f"s_mul_i32 s{T[0]}, s{S_WAVE}, 17408")
    e(f"v_add_u32 v{a}, s{T[0]}, v{a}")
    wr = []
    for dt in range(2):
        for st in range(2):
            for q in range(4):
                wr.append(e.lg(f"ds_write_b128 v{a}, {vr(G2ACC + 32 * dt + 16 * st + 4 * q)} "
                               f"offset:{L_P2 + st * 32 * 272 + dt * 128 + q * 32}"))
    e(f"v_lshrrev_b32 v{b}, 3, v0")
    e(f"v_lshrrev_b32 v{c}, 6, v0")
    e(f"v_and_b32 v{d}, 7, v0")
    e(f"v_xor_b32 v{c}, v{c}, v{d}")
    e(f"v_lshlrev_b32 v{c}, 4, v{c}")
    e(f"v_lshl_add_u32 v{c}, v{b}, 7, v{c}")
    e(f"v_xor_b32 v{V_TMP[4]}, 64, v{c}")
    e(f"v_add_u32 v{c}, {L_YT}, v{c}")
    e(f"v_add_u32 v{V_TMP[4]}, {L_YT}, v{V_TMP[4]}")
    e.wait(vm=yt)
    wr.append(e.lg(f"ds_write_b128 v{c}, {vr(180)}"))
    wr.append(e.lg(f"ds_write_b128 v{V_TMP[4]}, {vr(184)} offset:4096"))
    e(f"v_mul_u32_u24 v{a}, 272, v{b}")
    e(f"v_lshl_add_u32 v{a}, v{d}, 5, v{a}")
    e(f"v_xor_b32 v{c}, s{S_WAVE}, v{d}")
    e(f"v_lshlrev_b32 v{c}, 4, v{c}")
    e(f"v_lshl_add_u32 v{c}, v{d}, 10, v{c}")
    e(f"v_and_b32 v{b}, 7, v{b}")
    e(f"v_lshl_add_u32 v{c}, v{b}, 1, v{c}")
    e(f"v_xor_b32 v{V_TMP[4]}, 64, v{c}")
    e(f"v_add_u32 v{c}, {L_YT}, v{c}")
    e(f"v_add_u32 v{V_TMP[4]}, {L_YT}, v{V_TMP[4]}")
    for q in range(16):
        e(f"v_mov_b32 v{112 + q}, 0")
    e.wait(lg=wr)
    e("s_barrier")
    sts = []
    for pi in range(2):
        P = 48 + 32 * pi
        rd = []
        for wv in range(4):
            for h in range(2):
                rd.append(e.lg(f"ds_read_b128 {vr(P + 8 * wv + 4 * h)}, v{a} "
                               f"offset:{L_P2 + wv * 17408 + pi * 32 * 272 + h * 16}"))
        Y = 112 + 8 * pi
        yv = c if pi == 0 else V_TMP[4]
        yr = [e.lg(f"ds_read_u16_d16_hi v{Y + cc}, v{yv} offset:{cc * 128}") for cc in range(8)]
        e.wait(lg=rd)
        for r in range(8):
            e(f"v_add_f32 v{P + r}, v{P + r}, v{P + 8 + r}")
            e(f"v_add_f32 v{P + 16 + r}, v{P + 16 + r}, v{P + 24 + r}")
        for r in range(8):
            e(f"v_add_f32 v{P + r}, v{P + r}, v{P + 16 + r}")
        e.wait(vm=qt + gt, lg=yr)
        Gv = 176 + pi
        e(f"v_lshlrev_b32 v{P + 8}, 16, v{Gv}")
        e(f"v_and_b32 v{P + 9}, s{S_MASKHI}, v{Gv}")
        Q = 200 + 4 * pi
        for pr in range(4):
            b0, b1 = P + 2 * pr, P + 2 * pr + 1
            q0, q1, tp = P + 10, P + 11, P + 12
            unpack(e, q0, Q + pr, 0)
            unpack(e, q1, Q + pr, 1)
            round2(e, b0, b1, tp)
            e(f"v_mul_f32 v{q0}, v{q0}, v{Y + 2 * pr}")
            e(f"v_mul_f32 v{q1}, v{q1}, v{Y + 2 * pr + 1}")
            round2(e, q0, q1, tp)
            e(f"v_mul_f32 v{q0}, v{q0}, v{P + 8}")
            e(f"v_mul_f32 v{q1}, v{q1}, v{P + 8}")
            round2(e, q0, q1, tp)
            e(f"v_mul_f32 v{b0}, v{b0}, v{P + 9}")
            e(f"v_mul_f32 v{b1}, v{b1}, v{P + 9}")
            round2(e, b0, b1, tp)
            e(f"v_add_f32 v{b0}, v{b0}, v{q0}")
            e(f"v_add_f32 v{b1}, v{b1}, v{q1}")
            e(f"v_cvt_pk_bf16_f32 v{P + 16 + pr}, v{b0}, v{b1}")
        sts.append(e.vm(f"buffer_store_dwordx4 {vr(P + 16)}, v195, {srd(S_OUT)}, s{T[16 + pi]} offen"))
    return sts


def build():
    e = Em()
    T = S_T
    setup(e)
    prep_addr(e)
    g1_addr(e)
    e.wait_all(vm=False, lg=True)
    e(f"s_mov_b32 s{T[1]}, {FL_EPOCH:#x}")
    e(f"s_load_dword s{S_TAG}, s[{S_WS}:{S_WS + 1}], s{T[1]}")
    e(f"s_lshl_b32 s{T[0]}, s2, 2")
    e(f"s_load_dword s{S_D}, s[{S_DP}:{S_DP + 1}], s{T[0]}")
    ptoks = prep_loads(e)
    e(f"s_cmp_eq_u32 s{S_GJ}, 15")
    e("s_cbranch_scc1 L_gpath_a")
    pre = dict(w={}, x={})
    pre["w"][0] = w_dma(e, 0)
    pre["x"][0] = x_dma(e, 0)
    pre["x"][1] = x_dma(e, 1)
    pre["w"][1] = w_dma(e, 1)
    pre["x"][2] = x_dma(e, 2)
    pre["w"][2] = w_dma(e, 2)
    pre["w"][3] = w_dma(e, 3)
    e.label("L_gpath_a")
    g1_addr2(e)
    e.wait_all(vm=False, lg=True)
    e(f"s_add_u32 s{S_TAG}, s{S_TAG}, 0x9E3779B9")
    conv_addr(e)
    wd_addr(e)
    return e, pre, ptoks


def main_body():
    e, pre, ptoks = build()
    T = S_T
    e(f"s_cmp_lg_u32 s{S_GJ}, 15")
    e("s_cbranch_scc1 L_prep_go")
    e("s_waitcnt vmcnt(0)")
    e.label("L_prep_go")
    stamp(e, 0)
    pst = prep_compute(e, ptoks)
    stamp(e, 1)
    if CFG["STOP"] == "prep":
        prep_flag(e, pst)
        e.wait_all()
        e("s_branch L_end")
        return e

    e(f"s_cmp_eq_u32 s{S_GJ}, 15")
    e("s_cbranch_scc1 L_gpath")

    st = {}
    WD_EARLY = [0, 1, 2, 3]

    def bg(gaps, pre_k):
        prep_flag(gaps[24], pst)
        parts, st["hc"] = hc_dma(None)
        for i, p in enumerate(parts):
            gaps[2 * 39 + 2 * i].extend(p)
        st["uz"] = ur_zero(gaps[2 * 47])
        st["hcfix"] = hc_fix(gaps[2 * 60], st["hc"])
        sched = [(0, 0, 48, 58), (1, 1, 52, 64), (2, 0, 60, 72), (3, 1, 66, 80)]
        st["wdtr"] = {}
        for slot, buf, k_issue, k_read in sched:
            g = gaps[2 * k_issue + 1]
            if slot >= 2:
                g.wait(lg=st["wdtr"][slot - 2])
            tk = wd_dma(g, slot, buf)
            g2 = gaps[2 * k_read + 1]
            g2.wait(vm=tk)
            st["wdtr"][slot] = wd_tr(g2, slot, buf)
        pt = kv_poll_issue(gaps[2 * 68])
        kt = kv_load(gaps[2 * 76], pt)
        st["kvw"] = kv_write(gaps[2 * 90], kt)

    pre["bg"] = bg
    htoks = gemm1(e, pre)
    stamp(e, 2)
    ep, toks2 = g1_epilogue(2)
    e("s_barrier")
    wdq = {}
    for slot, buf in ((4, 2), (5, 3), (6, 4), (7, 5), (8, 0), (9, 1)):
        wdq[slot] = (buf, wd_dma(e, slot, buf))
    e.extend(ep)
    h_flag(e, 1, htoks[1])
    e("s_branch L_join")

    e.label("L_gpath")
    ge = Em()
    ge.wait_all()
    prep_flag(ge, pst)
    gst = g_path(ge)
    parts, hct = hc_dma(None)
    for p in parts:
        ge.extend(p)
    ur_zero(ge)
    for slot in range(4):
        if slot >= 2:
            ge.wait_all(vm=False, lg=True)
        tk = wd_dma(ge, slot, slot & 1)
        ge.wait(vm=tk)
        wd_tr(ge, slot, slot & 1)
    hc_fix(ge, hct)
    ge.wait(vm=gst)
    for ftl in range(2):
        ge(f"s_add_u32 s{T[0]}, s{S_FHOFF}, {ftl * 128}")
        flag_store(ge, T[0])
    pt = kv_poll_issue(ge)
    kt = kv_load(ge, pt)
    kv_write(ge, kt)
    epoch_update(ge)
    ge.wait_all()
    ge("s_barrier")
    for slot, buf in ((4, 2), (5, 3), (6, 4), (7, 5), (8, 0), (9, 1)):
        wd_dma(ge, slot, buf)
    ge.wait_all()
    e.L.append(("SUB", ge))

    e.label("L_join")
    stamp(e, 3)
    if CFG["STOP"] == "gemm1":
        h_flag(e, 2, toks2)
        e.wait_all()
        e("s_branch L_end")
        return e
    wd_addr_b(e)
    e.wait_all(vm=False, lg=True)
    e("s_barrier")

    cst = {}

    def cbg(gaps):
        h_flag(gaps[30], 2, toks2)
        pos = {4: 20, 5: 40, 6: 60, 7: 80, 8: 95, 9: 110}
        for slot in range(4, 10):
            buf, tk = wdq[slot]
            g = gaps[pos[slot]]
            g.wait(vm=tk)
            cst[slot] = wd_tr(g, slot, buf)
        g = gaps[50]
        g.wait(lg=cst[4])
        tk = wd_dma(g, 10, 2)
        g = gaps[130]
        g.wait(vm=tk)
        cst[10] = wd_tr(g, 10, 2)
        cst["q"] = blend_prefetch(gaps[100])
        cst["hp"] = h_poll_issue(gaps[120])

    conv(e, cbg)
    stamp(e, 4)
    poll_check(e, cst["hp"], 194, T[13], V_P2)
    htok = h_loads(e, range(11))
    gt = g_loads(e)
    yst = conv_epilogue(e)
    stamp(e, 5)
    if CFG["STOP"] == "conv":
        y_flag(e, yst)
        e.wait_all()
        e("s_branch L_end")
        return e
    pre_slot = {}
    p = Em()
    y_flag(p, yst)
    pre_slot[2] = p
    p = Em()
    yp = y_poll_issue(p)
    pre_slot[8] = p
    gemm2(e, htok, {m: cst[m] for m in range(4, 11)}, pre_slot)
    stamp(e, 6)
    yt = y_loads(e, yp)
    blend(e, cst["q"], gt, yt)
    stamp(e, 7)
    return e


def flatten(e):
    from asmlib import resolve_waits, pad_hazards
    subs = {}
    L = []
    for i in e.L:
        if isinstance(i, tuple):
            key = f";;SUB{len(subs)}"
            subs[key] = i[1]
            L.append(Ins(key))
        else:
            L.append(i)
    lines = resolve_waits(L)
    out = []
    for ln in lines:
        if ln in subs:
            out.extend(resolve_waits_sub(subs[ln]))
        else:
            out.append(ln)
    out, npad = pad_hazards(out)
    return out, npad


def resolve_waits_sub(ge):
    from asmlib import resolve_waits
    own = {id(i) for i in ge.L}
    L = []
    for i in ge.L:
        if i.kind == "wait":
            vm = [t for t in i.vm if id(t) in own]
            lg = [t for t in i.lg if id(t) in own]
            L.append(Ins("", "wait", vm, lg))
        else:
            L.append(i)
    return resolve_waits(L)


def emit(path):
    _lbl[0] = 0
    e = main_body()
    lines, npad = flatten(e)
    hdr = open("gated_mix__ssm_conv_h3__geglu_ffn__prompt.s.ref").read().split("; @launch")[0]
    txt = hdr
    txt += f"; @launch grid=(256,1,1) block=(256,1,1) lds={LDS_SIZE}\n"
    txt += '.amdgcn_target "amdgcn-amd-amdhsa--gfx950"\n.text\n'
    txt += f".globl {KNAME}\n.p2align 8\n.type {KNAME},@function\n{KNAME}:\n"
    for ln in lines:
        txt += ("" if ln.endswith(":") else "    ") + ln + "\n"
    txt += "L_end:\n    s_endpgm\n"
    txt += f""".section .rodata,"a"
.p2align 6
.amdhsa_kernel {KNAME}
  .amdhsa_next_free_vgpr 512
  .amdhsa_next_free_sgpr 102
  .amdhsa_accum_offset 256
  .amdhsa_group_segment_fixed_size 0
  .amdhsa_kernarg_size 112
  .amdhsa_user_sgpr_count 2
  .amdhsa_user_sgpr_kernarg_segment_ptr 1
  .amdhsa_system_sgpr_workgroup_id_x 1
.end_amdhsa_kernel
"""
    open(path, "w").write(txt)
    return len(lines), npad


if __name__ == "__main__":
    out = sys.argv[1] if len(sys.argv) > 1 else "k.s"
    for a in sys.argv[2:]:
        k, v = a.split("=")
        CFG[k] = eval(v)
    print(emit(out))
```

```python
import sys, struct, math
sys.path.insert(0, "work")
from asmlib import Em, Ins, resolve_waits, pad_hazards

KNAME = "gated_mix__ssm_conv_h3__geglu_ffn__prompt_kernel"

CFG = dict(
    EMU_PREP=True,
    STAMPS=False,
    POLL_MAX=200000,
    TOUCH=True,
    EMU_G1=True,
    ROT=True,
    SLEEP=8,
)

WS_H = 0x0
WS_KV = 0x600000
WS_Y2 = 0x800000
WS_G = 0xA00000
WS_FLG = 0xB00000
FL_EPOCH = WS_FLG
FL_P = WS_FLG + 0x1000
FL_H = WS_FLG + 0x2000
FL_Y = WS_FLG + 0x8000
WS_STAMP = 0xC00000
WS_SIZE = 0x10000000
TAGK = 0x9E3779B9

L_WR = 0
WSLOT = 24576
L_XS = 98304
L_HC = 114944
L_UR = 139776
L_PT = 152576
L_SH = 160768
L_EX = 81920
L_P2 = 0
L_YT = 98304
LDS_SIZE = 163840

S_X, S_K, S_V, S_SH, S_SSM, S_WG, S_WU, S_WD, S_GW, S_OUT, S_WS, S_HST, S_DD = [4 + 4 * i for i in range(13)]
S_WAVE, S_GI, S_GJ, S_I2, S_N2, S_TAG = 56, 57, 58, 59, 60, 61
T = list(range(62, 76))
S_C1, S_MASKHI = 76, 77
S_EXSAVE = 78
S_WSOFF, S_XSOFF, S_XM0, S_HOFF, S_FHOFF, S_CH, S_POLL, S_U, S_DF = 80, 81, 82, 83, 84, 85, 86, 87, 88
S_W4K = 89
S_RHO = 3
S_WRB = 2
S_FT = 90
S_STI = 101
S_STAMP = 2
S_OUTO = 3


def srd(b):
    return f"s[{b}:{b + 3}]"


V_LANE, V_L16 = 1, 2
V_WDMA = 3
V_WTR = 6
V_XDMA = 8
V_XRD, V_XWR = 12, 13
V_WDDMA = 14
V_WDTR = 18
V_HC = 22
V_F, V_H, V_SHF, V_C0 = 25, 26, 27, 28
V_EPO, V_H01 = 253, 254
V_OUTO = 3
TMP = [29, 30, 31, 32, 33, 34]
V_PA = 35
V_PD = 36
V_WF = 40
ACC_OF = {0: 128, 1: 96, 2: 64}
V_R = 128
V_ET = 208


def vr(b, n=4):
    return f"v[{b}:{b + n - 1}]"


def ar(b, n=4):
    return f"a[{b}:{b + n - 1}]"


def rr(k, b, n):
    return f"{k}[{b}:{b + n - 1}]"


def f32hex(x):
    return "0x%08x" % struct.unpack("<I", struct.pack("<f", x))[0]


def wd_frag_reg(slot, fr):
    if slot < 8:
        return ("a", 128 + slot * 16 + fr * 4)
    return ("v", V_ET + (slot - 8) * 16 + fr * 4)


def h_frag_reg(slot, fr):
    if slot < 8:
        return ("a", slot * 16 + fr * 4)
    return ("v", V_R + (slot - 8) * 16 + fr * 4)


def stamp(e, idx, force=False):
    if not CFG["STAMPS"] or (CFG.get("PROF") and not force and idx != 0):
        return
    e.wait_all(vm=False, lg=True)
    e(f"s_memrealtime s[0:1]")
    e(f"s_memtime s[{S_EXSAVE}:{S_EXSAVE + 1}]")
    e.wait_all(vm=False, lg=True)
    e(f"v_mov_b32 v{TMP[0]}, s0")
    e(f"v_mov_b32 v{TMP[1]}, s{S_STI}")
    e(f"v_mov_b32 v{TMP[2]}, s{S_EXSAVE}")
    e(f"s_mov_b64 s[{S_EXSAVE}:{S_EXSAVE + 1}], exec")
    e("s_mov_b64 exec, 1")
    e.vm(f"buffer_store_dword v{TMP[0]}, v{TMP[1]}, {srd(S_WS)}, 0 offen offset:{idx * 4}")
    e.vm(f"buffer_store_dword v{TMP[2]}, v{TMP[1]}, {srd(S_WS)}, 0 offen offset:{128 + idx * 4}")
    e(f"s_mov_b64 exec, s[{S_EXSAVE}:{S_EXSAVE + 1}]")


def flag_store(e, s_addr):
    e(f"v_mov_b32 v{TMP[0]}, s{S_TAG}")
    e(f"v_mov_b32 v{TMP[1]}, 0")
    e("s_mov_b64 exec, 1")
    t = e.vm(f"buffer_store_dword v{TMP[0]}, v{TMP[1]}, {srd(S_WS)}, s{s_addr} offen sc1")
    e("s_mov_b64 exec, -1")
    return t


_lbl = [0]


def poll_issue(e, vaddr, s_addr, vdst):
    return e.vm(f"buffer_load_dwordx4 {vr(vdst)}, v{vaddr}, {srd(S_WS)}, s{s_addr} offen sc1")


def poll_check(e, tok, vaddr, s_addr, vdst, slp=None):
    n = _lbl[0]
    _lbl[0] += 1
    e.wait(vm=tok)
    e(f"s_mov_b32 s{S_POLL}, 0")
    e.label(f"L_pc{n}")
    e(f"v_xor_b32 v{vdst}, s{S_TAG}, v{vdst}")
    e(f"v_xor_b32 v{vdst + 1}, s{S_TAG}, v{vdst + 1}")
    e(f"v_xor_b32 v{vdst + 2}, s{S_TAG}, v{vdst + 2}")
    e(f"v_xor_b32 v{vdst + 3}, s{S_TAG}, v{vdst + 3}")
    e(f"v_or3_b32 v{vdst}, v{vdst}, v{vdst + 1}, v{vdst + 2}")
    e(f"v_or_b32 v{vdst}, v{vdst}, v{vdst + 3}")
    e(f"v_cmp_eq_u32 vcc, 0, v{vdst}")
    e("s_nop 1")
    e("s_cmp_eq_u64 vcc, -1")
    e(f"s_cbranch_scc1 L_pd{n}")
    e(f"s_add_u32 s{S_POLL}, s{S_POLL}, 1")
    e(f"s_cmp_ge_u32 s{S_POLL}, {CFG['POLL_MAX']}")
    e(f"s_cbranch_scc1 L_pd{n}")
    e(f"s_sleep {slp if slp is not None else CFG['SLEEP']}")
    e(f"buffer_load_dwordx4 {vr(vdst)}, v{vaddr}, {srd(S_WS)}, s{s_addr} offen sc1")
    e("s_waitcnt vmcnt(0)")
    e(f"s_branch L_pc{n}")
    e.label(f"L_pd{n}")


def unpack(e, dst, src, hi):
    if hi:
        e(f"v_and_b32 v{dst}, s{S_MASKHI}, v{src}")
    else:
        e(f"v_lshlrev_b32 v{dst}, 16, v{src}")


def round2(e, a, b, tmp):
    e(f"v_cvt_pk_bf16_f32 v{tmp}, v{a}, v{b}")
    e(f"v_lshlrev_b32 v{a}, 16, v{tmp}")
    e(f"v_and_b32 v{b}, s{S_MASKHI}, v{tmp}")


def spread(gaps, L, lo, hi):
    n = len(L)
    for idx, ins in enumerate(L):
        gaps[lo + idx * (hi - lo) // n].L.append(ins)


P_K, P_V, P_SH, P_AD, P_T = 160, 180, 188, 232, 237


def setup(e):
    e("s_cmp_ge_u32 s2, 256")
    e("s_cbranch_scc1 L_end")
    ptrs = [(S_K, 8), (S_V, 16), (S_SH, 24), (S_WG, 56), (S_WU, 64), (S_X, 0), (S_WS, 104), (S_SSM, 32), (S_DD, 40),
            (S_WD, 72), (S_GW, 80), (S_OUT, 88), (S_HST, 104)]
    for r, off in ptrs:
        e(f"s_load_dwordx2 s[{r}:{r + 1}], s[0:1], {off}")
    sizes = {S_X: 0x200000, S_K: 0x200000, S_V: 0x200000, S_SH: 4096, S_SSM: 0x200000, S_WG: 512 * 2752,
             S_WU: 512 * 2752, S_WD: 1376 * 1024, S_GW: 1024, S_OUT: 0x200000, S_WS: WS_SIZE, S_HST: WS_SIZE,
             S_DD: 1024}
    for r, sz in sizes.items():
        e(f"s_mov_b32 s{r + 2}, {sz:#x}")
        e(f"s_mov_b32 s{r + 3}, 0x00020000")
    e(f"v_lshrrev_b32 v{TMP[0]}, 6, v0")
    e(f"v_and_b32 v{V_LANE}, 63, v0")
    e(f"v_readfirstlane_b32 s{S_WAVE}, v{TMP[0]}")
    e(f"s_mov_b32 s{S_U}, s2")
    e(f"s_and_b32 s{T[0]}, s2, 7")
    e(f"s_lshr_b32 s{T[1]}, s2, 3")
    e(f"s_and_b32 s{T[2]}, s{T[1]}, 7")
    e(f"s_lshr_b32 s{T[3]}, s{T[1]}, 3")
    e(f"s_and_b32 s{T[4]}, s{T[0]}, 1")
    e(f"s_lshr_b32 s{T[5]}, s{T[0]}, 1")
    e(f"s_lshl_b32 s{S_GI}, s{T[4]}, 3")
    e(f"s_add_u32 s{S_GI}, s{S_GI}, s{T[2]}")
    e(f"s_lshl_b32 s{S_GJ}, s{T[5]}, 2")
    e(f"s_add_u32 s{S_GJ}, s{S_GJ}, s{T[3]}")
    e(f"s_lshl_b32 s{S_I2}, s{T[5]}, 3")
    e(f"s_add_u32 s{S_I2}, s{S_I2}, s{T[2]}")
    e(f"s_lshl_b32 s{S_N2}, s{T[4]}, 2")
    e(f"s_add_u32 s{S_N2}, s{S_N2}, s{T[3]}")
    e(f"s_mov_b32 s{S_MASKHI}, 0xffff0000")
    e(f"s_lshl_b32 s{S_W4K}, s{S_WAVE}, 12")
    e(f"v_lshlrev_b32 v{V_L16}, 4, v{V_LANE}")
    if CFG["STAMPS"]:
        e(f"s_lshl_b32 s{S_STI}, s2, 2")
        e(f"s_add_u32 s{S_STI}, s{S_STI}, s{S_WAVE}")
        e(f"s_lshl_b32 s{S_STI}, s{S_STI}, 8")
        e(f"s_add_u32 s{S_STI}, s{S_STI}, {WS_STAMP:#x}")
    a, b = TMP[0], TMP[1]
    e(f"v_and_b32 v{a}, 7, v0")
    e(f"v_lshrrev_b32 v{b}, 3, v0")
    e(f"v_lshlrev_b32 v{a}, 4, v{a}")
    e(f"v_lshl_add_u32 v{a}, v{b}, 11, v{a}")
    e(f"s_lshl_b32 s{T[0]}, s{S_I2}, 16")
    e(f"s_lshl_b32 s{T[1]}, s{S_N2}, 7")
    e(f"s_add_u32 s{T[0]}, s{T[0]}, s{T[1]}")
    e(f"s_sub_u32 s{T[0]}, s{T[0]}, 3072")
    e(f"v_add_u32 v{P_AD}, s{T[0]}, v{a}")
    for m in range(1, 5):
        e(f"v_add_u32 v{P_AD + m}, {1024 * m}, v{P_AD}")
    e(f"s_mov_b32 s{T[0]}, 0x5556")
    for i in range(3):
        e(f"v_add_u32 v{a}, {64 * i}, v{V_LANE}")
        e(f"v_mul_u32_u24 v{b}, s{T[0]}, v{a}")
        e(f"v_lshrrev_b32 v{b}, 18, v{b}")
        e(f"v_mul_u32_u24 v{TMP[2]}, 12, v{b}")
        e(f"v_sub_u32 v{a}, v{a}, v{TMP[2]}")
        e(f"v_lshlrev_b32 v{a}, 4, v{a}")
        e(f"v_mul_u32_u24 v{b}, 2752, v{b}")
        e(f"v_add_u32 v{V_WDMA + i}, v{a}, v{b}")
        if i:
            e(f"v_subrev_u32 v{V_WDMA + i}, {1024 * i}, v{V_WDMA + i}")
    e(f"s_mul_i32 s{S_WSOFF}, s{S_GJ}, 192")
    e(f"s_mul_i32 s{T[0]}, s{S_WAVE}, {16 * 2752}")
    e(f"s_add_u32 s{S_WSOFF}, s{S_WSOFF}, s{T[0]}")
    e(f"v_lshrrev_b32 v{a}, 3, v{V_LANE}")
    e(f"v_lshlrev_b32 v{a}, 10, v{a}")
    e(f"v_and_b32 v{b}, 7, v{V_LANE}")
    e(f"v_lshl_add_u32 v{V_XDMA}, v{b}, 4, v{a}")
    for m in range(1, 4):
        e(f"v_add_u32 v{V_XDMA + m}, {m * 8192}, v{V_XDMA}")
    e(f"s_lshl_b32 s{S_RHO}, s{S_GJ}, 1")
    e(f"s_add_u32 s{S_RHO}, s{S_RHO}, s{S_GI}")
    e(f"s_and_b32 s{S_RHO}, s{S_RHO}, {7 if CFG['ROT'] else 0}")
    e(f"s_mul_i32 s{S_WRB}, s{S_WAVE}, 3072")
    e(f"s_lshl_b32 s{S_XSOFF}, s{S_GI}, 17")
    e(f"s_lshl_b32 s{T[0]}, s{S_WAVE}, 15")
    e(f"s_add_u32 s{S_XSOFF}, s{S_XSOFF}, s{T[0]}")
    e(f"s_mul_i32 s{S_XM0}, s{S_WAVE}, 4160")
    e(f"s_add_u32 s{S_XM0}, s{S_XM0}, {L_XS}")


def prep_loads(e):
    toks = []
    for m in range(5):
        toks.append(e.vm(f"buffer_load_dwordx4 {vr(P_K + 4 * m)}, v{P_AD + m}, {srd(S_K)}, 0 offen"))
    for m in range(2):
        toks.append(e.vm(f"buffer_load_dwordx4 {vr(P_V + 4 * m)}, v{P_AD + 3 + m}, {srd(S_V)}, 0 offen"))
    e(f"s_mov_b32 m0, {L_SH}")
    e(f"s_lshl_b32 s{T[1]}, s{S_N2}, 9")
    toks.append(e.vm(f"buffer_load_dwordx4 v{V_L16}, {srd(S_SH)}, s{T[1]} offen lds"))
    return toks


def misc_loads(e):
    e(f"v_mov_b32 v{TMP[0]}, 0")
    e(f"s_mov_b32 s{T[0]}, {FL_EPOCH:#x}")
    t0 = e.vm(f"buffer_load_dword v{V_EPO}, v{TMP[0]}, {srd(S_WS)}, s{T[0]} offen sc1")
    e(f"s_lshl_b32 s{T[1]}, s{S_U}, 2")
    t1 = e.vm(f"buffer_load_dword v{V_H01}, v{TMP[0]}, {srd(S_DD)}, s{T[1]} offen")
    return [t0, t1]


def misc_use(e, toks):
    e.wait(vm=toks)
    e(f"v_readfirstlane_b32 s{S_TAG}, v{V_EPO}")
    e(f"v_readfirstlane_b32 s{T[0]}, v{V_H01}")
    e("s_nop 3")
    e(f"s_add_u32 s{S_TAG}, s{S_TAG}, {TAGK:#x}")
    e(f"s_lshl_b32 s{T[2]}, s{T[0]}, 16")
    e(f"s_and_b32 s{T[3]}, s{T[0]}, 0xffff0000")
    e(f"s_cmp_lt_u32 s{S_WAVE}, 2")
    e(f"s_cselect_b32 s{S_DF}, s{T[2]}, s{T[3]}")


def touch_early(e):
    a, b = TMP[0], TMP[1]
    e(f"v_lshrrev_b32 v{a}, 3, v{V_LANE}")
    e(f"v_lshlrev_b32 v{a}, 10, v{a}")
    e(f"v_and_b32 v{b}, 7, v{V_LANE}")
    e(f"v_lshl_add_u32 v{a}, v{b}, 7, v{a}")
    e(f"s_and_b32 s{T[0]}, s{S_GJ}, 3")
    e(f"s_lshl_b32 s{T[0]}, s{T[0]}, 15")
    e(f"s_lshl_b32 s{T[1]}, s{S_WAVE}, 13")
    e(f"s_add_u32 s{T[0]}, s{T[0]}, s{T[1]}")
    e(f"s_lshl_b32 s{T[1]}, s{S_GI}, 17")
    e(f"s_add_u32 s{T[0]}, s{T[0]}, s{T[1]}")
    e(f"v_mul_u32_u24 v{b}, 2752, v{V_LANE}")
    e(f"s_and_b32 s{T[2]}, s{S_GI}, 7")
    e(f"s_mul_i32 s{T[2]}, s{T[2]}, {64 * 2752}")
    e(f"s_mul_i32 s{T[3]}, s{S_GJ}, 192")
    e(f"s_add_u32 s{T[2]}, s{T[2]}, s{T[3]}")
    e(f"s_mul_i32 s{T[3]}, s{S_WAVE}, 94")
    e(f"s_min_u32 s{T[3]}, s{T[3]}, 188")
    e(f"s_and_b32 s{T[3]}, s{T[3]}, 0xfc")
    e(f"s_add_u32 s{T[2]}, s{T[2]}, s{T[3]}")
    return T[0], a, T[2], b


def touch_early_issue(e, regs):
    sx, vx, sw, vw = regs
    e.vm(f"buffer_load_dword v{V_PD + 1}, v{vw}, {srd(S_WG)}, s{sw} offen")
    e.vm(f"buffer_load_dword v{V_PD + 2}, v{vw}, {srd(S_WU)}, s{sw} offen")


def touch_loads(e):
    b = TMP[1]
    e(f"s_and_b32 s{T[0]}, s{S_I2}, 7")
    e(f"s_lshl_b32 s{T[0]}, s{T[0]}, 2")
    e(f"s_add_u32 s{T[0]}, s{T[0]}, s{S_WAVE}")
    e(f"s_lshl_b32 s{T[0]}, s{T[0]}, 16")
    e(f"s_lshl_b32 s{T[1]}, s{S_N2}, 7")
    e(f"s_add_u32 s{T[0]}, s{T[0]}, s{T[1]}")
    e(f"v_lshlrev_b32 v{b}, 10, v{V_LANE}")
    e.vm(f"buffer_load_dword v{V_PD + 1}, v{b}, {srd(S_WD)}, s{T[0]} offen")
    e(f"v_lshlrev_b32 v{b}, 5, v{V_LANE}")
    e(f"s_lshl_b32 s{T[0]}, s{S_U}, 13")
    e(f"s_lshl_b32 s{T[1]}, s{S_WAVE}, 11")
    e(f"s_add_u32 s{T[0]}, s{T[0]}, s{T[1]}")
    e.vm(f"buffer_load_dword v{V_PD + 2}, v{b}, {srd(S_SSM)}, s{T[0]} offen")


def prep_segments(toks):
    segs = []
    e = Em()
    a, b, w = TMP[0], TMP[1], P_AD
    e.wait(vm=toks)
    e(f"v_and_b32 v{a}, 7, v0")
    e(f"v_lshlrev_b32 v{a}, 6, v{a}")
    e(f"v_add_u32 v{a}, {L_SH}, v{a}")
    sh = [e.lg(f"ds_read_b128 {vr(P_SH + 4 * m)}, v{a} offset:{16 * m}") for m in range(4)]
    e(f"v_lshrrev_b32 v{b}, 3, v0")
    e(f"v_sub_u32 v{b}, 31, v{b}")
    e(f"v_lshrrev_b32 v{w}, 2, v{b}")
    e(f"v_and_b32 v{TMP[3]}, 7, v0")
    e(f"v_xor_b32 v{w}, v{w}, v{TMP[3]}")
    e(f"v_lshlrev_b32 v{w}, 4, v{w}")
    e(f"v_and_b32 v{b}, 3, v{b}")
    e(f"v_lshl_add_u32 v{w}, v{b}, 2, v{w}")
    e(f"v_lshl_add_u32 v{w}, v{TMP[3]}, 10, v{w}")
    e(f"v_add_u32 v{w}, {L_PT}, v{w}")
    e.wait(lg=sh)
    segs.append(e)
    wr = []
    for c in range(8):
        e = Em()
        B = P_T
        kc = [B + m for m in range(5)]
        vv = [B + 5, B + 6]
        s4 = [B + 7, B + 8, B + 9, B + 10]
        p0, p1, a0, a1, tp = B + 11, B + 12, B + 13, B + 14, B + 15
        for m in range(5):
            unpack(e, kc[m], P_K + 4 * m + (c >> 1), c & 1)
        for m in range(2):
            unpack(e, vv[m], P_V + 4 * m + (c >> 1), c & 1)
        for j in range(4):
            unpack(e, s4[j], P_SH + 2 * c + (j >> 1), j & 1)
        e(f"v_mul_f32 v{a0}, v{kc[0]}, v{s4[3]}")
        e(f"v_mul_f32 v{a1}, v{kc[1]}, v{s4[3]}")
        if CFG["EMU_PREP"]:
            round2(e, a0, a1, tp)
            for tt in range(1, 4):
                e(f"v_mul_f32 v{p0}, v{kc[tt]}, v{s4[3 - tt]}")
                e(f"v_mul_f32 v{p1}, v{kc[tt + 1]}, v{s4[3 - tt]}")
                round2(e, p0, p1, tp)
                e(f"v_add_f32 v{a0}, v{a0}, v{p0}")
                e(f"v_add_f32 v{a1}, v{a1}, v{p1}")
                round2(e, a0, a1, tp)
        else:
            for tt in range(1, 4):
                e(f"v_fmac_f32 v{a0}, v{kc[tt]}, v{s4[3 - tt]}")
                e(f"v_fmac_f32 v{a1}, v{kc[tt + 1]}, v{s4[3 - tt]}")
        e(f"v_mul_f32 v{a0}, v{a0}, v{vv[0]}")
        e(f"v_mul_f32 v{a1}, v{a1}, v{vv[1]}")
        e(f"v_cvt_pk_bf16_f32 v{tp}, v{a1}, v{a0}")
        wr.append(e.lg(f"ds_write_b32 v{w}, v{tp} offset:{c * 128}"))
        segs.append(e)
    return segs, wr


def prep_readback(e):
    a, b, r = TMP[0], TMP[1], P_AD + 1
    e(f"v_lshrrev_b32 v{b}, 3, v0")
    e(f"v_lshrrev_b32 v{a}, 6, v0")
    e(f"v_and_b32 v{r}, 7, v0")
    e(f"v_xor_b32 v{a}, v{a}, v{r}")
    e(f"v_lshlrev_b32 v{a}, 4, v{a}")
    e(f"v_lshl_add_u32 v{a}, v{b}, 7, v{a}")
    e(f"v_xor_b32 v{TMP[3]}, 64, v{a}")
    e(f"v_add_u32 v{a}, {L_PT}, v{a}")
    e(f"v_add_u32 v{TMP[3]}, {L_PT}, v{TMP[3]}")
    r0 = e.lg(f"ds_read_b128 {vr(P_K)}, v{a}")
    r1 = e.lg(f"ds_read_b128 {vr(P_K + 4)}, v{TMP[3]} offset:4096")
    e(f"v_lshlrev_b32 v{r}, 4, v{r}")
    e(f"v_lshl_add_u32 v{r}, v{b}, 12, v{r}")
    return [r0, r1]


def prep_store(e, rd):
    r = P_AD + 1
    e(f"s_lshl_b32 s{T[0]}, s{S_N2}, 18")
    e(f"s_lshl_b32 s{T[1]}, s{S_I2}, 7")
    e(f"s_sub_u32 s{T[0]}, s{T[0]}, s{T[1]}")
    e(f"s_add_u32 s{T[0]}, s{T[0]}, {WS_KV + 3968:#x}")
    e(f"s_add_u32 s{T[1]}, s{T[0]}, {32 * 4096:#x}")
    e.wait(lg=rd)
    st0 = e.vm(f"buffer_store_dwordx4 {vr(P_K)}, v{r}, {srd(S_WS)}, s{T[0]} offen sc1")
    st1 = e.vm(f"buffer_store_dwordx4 {vr(P_K + 4)}, v{r}, {srd(S_WS)}, s{T[1]} offen sc1")
    return [st0, st1]


def prep_flag(e, toks):
    e.wait(vm=toks)
    e(f"s_lshl_b32 s{T[0]}, s{S_N2}, 9")
    e(f"s_lshl_b32 s{T[1]}, s{S_I2}, 4")
    e(f"s_add_u32 s{T[0]}, s{T[0]}, s{T[1]}")
    e(f"s_lshl_b32 s{T[1]}, s{S_WAVE}, 2")
    e(f"s_add_u32 s{T[0]}, s{T[0]}, s{T[1]}")
    e(f"s_add_u32 s{T[0]}, s{T[0]}, {FL_P:#x}")
    return flag_store(e, T[0])


def addr_g1(e):
    a, b = TMP[0], TMP[1]
    e(f"v_lshrrev_b32 v{a}, 5, v{V_LANE}")
    e(f"v_lshlrev_b32 v{a}, 3, v{a}")
    e(f"v_bfe_u32 v{b}, v{V_LANE}, 2, 2")
    e(f"v_add_u32 v{a}, v{a}, v{b}")
    e(f"v_mul_u32_u24 v{a}, 192, v{a}")
    e(f"v_bfe_u32 v{b}, v{V_LANE}, 4, 1")
    e(f"v_lshl_add_u32 v{a}, v{b}, 5, v{a}")
    e(f"v_and_b32 v{b}, 3, v{V_LANE}")
    e(f"v_lshl_add_u32 v{V_WTR}, v{b}, 3, v{a}")
    e(f"v_add_u32 v{V_WTR + 1}, {2 * WSLOT}, v{V_WTR}")
    e(f"v_bfe_u32 v{a}, v{V_LANE}, 3, 2")
    e(f"v_mul_u32_u24 v{a}, 1040, v{a}")
    e(f"v_and_b32 v{b}, 7, v{V_LANE}")
    e(f"v_lshl_add_u32 v{a}, v{b}, 7, v{a}")
    e(f"v_lshrrev_b32 v{b}, 5, v{V_LANE}")
    e(f"v_lshl_add_u32 v{a}, v{b}, 4, v{a}")
    e(f"v_add_u32 v{V_XRD}, s{S_XM0}, v{a}")
    e(f"v_add_u32 v{V_XWR}, s{S_XM0}, v{V_L16}")


def addr_blocks():
    blocks = []
    a, b, c = TMP[0], TMP[1], TMP[2]
    e = Em()
    c0 = -2.0 * math.sqrt(2.0 / math.pi) * math.log2(math.e)
    e(f"v_mov_b32 v{V_C0}, {f32hex(c0)}")
    e(f"s_mov_b32 s{S_C1}, {f32hex(c0 * 0.044715)}")
    e(f"s_lshl_b32 s{T[0]}, s{S_GI}, 2")
    e(f"s_add_u32 s{T[0]}, s{T[0]}, s{S_WAVE}")
    e(f"s_mul_i32 s{T[1]}, s{T[0]}, 43")
    e(f"s_mul_i32 s{T[2]}, s{S_GJ}, 3")
    e(f"s_add_u32 s{T[1]}, s{T[1]}, s{T[2]}")
    e(f"s_lshl_b32 s{S_HOFF}, s{T[1]}, 11")
    e(f"s_lshr_b32 s{T[1]}, s{T[0]}, 1")
    e(f"s_lshl_b32 s{T[1]}, s{T[1]}, 9")
    e(f"s_and_b32 s{T[0]}, s{T[0]}, 1")
    e(f"s_lshl_b32 s{T[2]}, s{S_GJ}, 1")
    e(f"s_add_u32 s{T[0]}, s{T[0]}, s{T[2]}")
    e(f"s_lshl_b32 s{T[0]}, s{T[0]}, 2")
    e(f"s_add_u32 s{T[0]}, s{T[0]}, s{T[1]}")
    e(f"s_add_u32 s{S_FHOFF}, s{T[0]}, {FL_H:#x}")
    blocks.append(e)
    e = Em()
    e(f"s_lshr_b32 s{T[0]}, s{S_WAVE}, 1")
    e(f"s_lshl_b32 s{S_CH}, s{S_U}, 1")
    e(f"s_add_u32 s{S_CH}, s{S_CH}, s{T[0]}")
    e(f"s_and_b32 s{T[1]}, s{S_WAVE}, 1")
    e(f"s_lshl_b32 s{T[2]}, s{S_CH}, 12")
    e(f"s_lshl_b32 s{T[3]}, s{T[1]}, 2")
    e(f"s_add_u32 s{T[2]}, s{T[2]}, s{T[3]}")
    e(f"s_sub_u32 s{T[2]}, s{T[2]}, 64")
    e(f"s_mov_b32 s{T[1]}, 0xaaab")
    for phi in range(3):
        e(f"v_add_u32 v{a}, {phi * 64}, v{V_LANE}")
        e(f"v_mul_u32_u24 v{b}, s{T[1]}, v{a}")
        e(f"v_lshrrev_b32 v{b}, 20, v{b}")
        e(f"v_mul_u32_u24 v{c}, 24, v{b}")
        e(f"v_sub_u32 v{c}, v{a}, v{c}")
        e(f"v_lshlrev_b32 v{c}, 4, v{c}")
        e(f"v_lshl_add_u32 v{c}, v{b}, 8, v{c}")
        e(f"v_add_u32 v{V_HC + phi}, s{T[2]}, v{c}")
    blocks.append(e)
    e = Em()
    e(f"s_lshr_b32 s{T[0]}, s{S_WAVE}, 1")
    e(f"s_and_b32 s{T[1]}, s{S_WAVE}, 1")
    e(f"v_and_b32 v{a}, 15, v{V_LANE}")
    e(f"v_lshrrev_b32 v{b}, 4, v{V_LANE}")
    e(f"v_lshlrev_b32 v{c}, 2, v{b}")
    e(f"v_sub_u32 v{c}, v{c}, v{a}")
    e(f"v_add_u32 v{c}, 63, v{c}")
    e(f"v_mul_u32_u24 v{c}, 80, v{c}")
    e(f"s_mul_i32 s{T[2]}, s{T[0]}, 6400")
    e(f"s_mul_i32 s{T[3]}, s{T[1]}, 160")
    e(f"s_add_u32 s{T[2]}, s{T[2]}, s{T[3]}")
    e(f"s_add_u32 s{T[2]}, s{T[2]}, {L_UR - 3840}")
    e(f"v_add_u32 v{V_F}, s{T[2]}, v{c}")
    e(f"v_add_u32 v{a}, 1, v{a}")
    e(f"v_and_b32 v{V_SHF}, 1, v{a}")
    e(f"v_lshlrev_b32 v{V_SHF}, 4, v{V_SHF}")
    e(f"v_bfe_u32 v{c}, v{a}, 1, 1")
    e(f"v_mul_u32_u24 v{c}, 6208, v{c}")
    e(f"v_and_b32 v{a}, 28, v{a}")
    e(f"v_lshl_add_u32 v{c}, v{a}, 1, v{c}")
    e(f"v_mul_u32_u24 v{b}, 384, v{b}")
    e(f"v_add_u32 v{c}, v{c}, v{b}")
    e(f"s_mul_i32 s{T[2]}, s{T[0]}, 12416")
    e(f"s_lshl_b32 s{T[3]}, s{T[1]}, 7")
    e(f"s_add_u32 s{T[2]}, s{T[2]}, s{T[3]}")
    e(f"s_add_u32 s{T[2]}, s{T[2]}, {L_HC}")
    e(f"v_add_u32 v{V_H}, s{T[2]}, v{c}")
    blocks.append(e)
    e = Em()
    e(f"v_lshrrev_b32 v{a}, 3, v{V_LANE}")
    e(f"v_bfe_u32 v{b}, v{V_LANE}, 4, 1")
    e(f"v_lshlrev_b32 v{b}, 2, v{b}")
    e(f"v_and_b32 v{c}, 7, v{V_LANE}")
    e(f"v_xor_b32 v{c}, v{c}, v{b}")
    e(f"v_lshlrev_b32 v{c}, 4, v{c}")
    e(f"v_lshl_add_u32 v{c}, v{a}, 10, v{c}")
    e(f"s_lshl_b32 s{T[0]}, s{S_N2}, 7")
    e(f"v_add_u32 v{V_WDDMA}, s{T[0]}, v{c}")
    for m in range(1, 4):
        e(f"v_add_u32 v{V_WDDMA + m}, {m * (8192 - 1024)}, v{V_WDDMA}")
    blocks.append(e)
    e = Em()
    e(f"v_lshrrev_b32 v{a}, 5, v{V_LANE}")
    e(f"v_lshlrev_b32 v{a}, 9, v{a}")
    e(f"v_bfe_u32 v{b}, v{V_LANE}, 2, 2")
    e(f"v_lshl_add_u32 v{a}, v{b}, 7, v{a}")
    e(f"v_bfe_u32 v{b}, v{V_LANE}, 4, 1")
    e(f"v_lshl_add_u32 v{a}, v{b}, 5, v{a}")
    e(f"v_and_b32 v{b}, 3, v{V_LANE}")
    e(f"v_lshl_add_u32 v{a}, v{b}, 3, v{a}")
    e(f"v_bfe_u32 v{b}, v{V_LANE}, 3, 1")
    e(f"v_lshl_add_u32 v{a}, v{b}, 6, v{a}")
    e(f"v_add_u32 v{V_WDTR}, s{S_W4K}, v{a}")
    e(f"v_xor_b32 v{V_WDTR + 1}, 64, v{V_WDTR}")
    e(f"v_add_u32 v{V_WDTR + 2}, 0x10000, v{V_WDTR}")
    e(f"v_add_u32 v{V_WDTR + 3}, 0x10000, v{V_WDTR + 1}")
    blocks.append(e)
    e = Em()
    e(f"s_mul_i32 s{T[0]}, s{S_WAVE}, {3 * 2048}")
    for m in range(11):
        if m <= 2:
            e(f"s_add_u32 s{S_FT + m}, s{T[0]}, {12 * m * 2048}")
        elif m == 3:
            e(f"s_add_u32 s{S_FT + m}, s{T[0]}, {36 * 2048}")
            e(f"s_cmp_eq_u32 s{S_WAVE}, 3")
            e(f"s_cselect_b32 s{S_FT + m}, {1 * 2048}, s{S_FT + m}")
        elif m <= 6:
            e(f"s_add_u32 s{S_FT + m}, s{T[0]}, {(3 * (4 * m - 15) + 1) * 2048}")
        elif m == 7:
            e(f"s_add_u32 s{S_FT + m}, s{T[0]}, {(3 * (28 - 29) + 2) * 2048 & 0xffffffff:#x}")
            e(f"s_cmp_eq_u32 s{S_WAVE}, 0")
            e(f"s_cselect_b32 s{S_FT + m}, {40 * 2048}, s{S_FT + m}")
        else:
            e(f"s_add_u32 s{S_FT + m}, s{T[0]}, {(3 * (4 * m - 29) + 2) * 2048}")
    blocks.append(e)
    e = Em()
    e(f"v_lshrrev_b32 v{a}, 3, v0")
    e(f"v_and_b32 v{b}, 7, v0")
    e(f"v_lshlrev_b32 v{b}, 4, v{b}")
    e(f"v_lshl_add_u32 v{a}, v{a}, 10, v{b}")
    e(f"s_lshl_b32 s{T[0]}, s{S_I2}, 16")
    e(f"s_lshl_b32 s{T[1]}, s{S_N2}, 7")
    e(f"s_add_u32 s{T[0]}, s{T[0]}, s{T[1]}")
    e(f"v_add_u32 v{V_OUTO}, s{T[0]}, v{a}")
    blocks.append(e)
    return blocks


def w_dma_parts(n):
    parts, toks = [], []
    for mat, sr in ((0, S_WG), (1, S_WU)):
        for i in range(3):
            e = Em()
            e(f"s_add_u32 m0, s{S_WRB}, {L_WR + (n % 4) * WSLOT + mat * 12288}")
            if mat == 0 and i == 0:
                e(f"s_add_u32 s{T[4]}, s{S_RHO}, {n}")
                e(f"s_and_b32 s{T[4]}, s{T[4]}, 7")
                e(f"s_mul_i32 s{T[4]}, s{T[4]}, {64 * 2752}")
                e(f"s_add_u32 s{T[4]}, s{T[4]}, s{S_WSOFF}")
            toks.append(e.vm(f"buffer_load_dwordx4 v{V_WDMA + i}, {srd(sr)}, s{T[4]} offen offset:{1024 * i} lds"))
            parts.append(e)
    return parts, toks


def x_ld_parts(c):
    parts, toks = [], []
    for m in range(4):
        e = Em()
        if m == 0:
            e(f"s_add_u32 s{T[5]}, s{S_RHO}, {c}")
            e(f"s_and_b32 s{T[5]}, s{T[5]}, 7")
            e(f"s_lshl_b32 s{T[5]}, s{T[5]}, 7")
            e(f"s_add_u32 s{T[5]}, s{T[5]}, s{S_XSOFF}")
        toks.append(e.vm(f"buffer_load_dwordx4 {ar(16 * c + 4 * m)}, v{V_XDMA + m}, {srd(S_X)}, s{T[5]} offen"))
        parts.append(e)
    return parts, toks


def w_dma(e, n):
    parts, toks = w_dma_parts(n)
    for p in parts:
        e.extend(p)
    return toks


def x_ld(e, c):
    toks = []
    e(f"s_add_u32 s{T[0]}, s{S_RHO}, {c}")
    e(f"s_and_b32 s{T[0]}, s{T[0]}, 7")
    e(f"s_lshl_b32 s{T[0]}, s{T[0]}, 7")
    e(f"s_add_u32 s{T[0]}, s{T[0]}, s{S_XSOFF}")
    for m in range(4):
        toks.append(e.vm(f"buffer_load_dwordx4 {ar(16 * c + 4 * m)}, v{V_XDMA + m}, {srd(S_X)}, s{T[0]} offen"))
    return toks


def x_read(e, c):
    for m in range(4):
        e.lg(f"ds_write_b128 v{V_XWR}, {ar(16 * c + 4 * m)} offset:{m * 1040}")
    return [e.lg(f"ds_read_b128 {ar(16 * c + 4 * q)}, v{V_XRD} offset:{q * 32}") for q in range(4)]


def wf_base(T_):
    return V_WF if T_ % 2 == 0 else V_ET


def w_tr(e, T_, idx):
    ft, mat = idx >> 1, idx & 1
    n, ts = T_ // 4, T_ % 4
    slot = n % 4
    base = (slot & 1) * WSLOT + mat * 12288 + ts * 3072 + ft * 64
    vb = V_WTR + (slot >> 1)
    d = wf_base(T_) + 4 * idx
    return [e.lg(f"ds_read_b64_tr_b16 {vr(d, 2)}, v{vb} offset:{base}"),
            e.lg(f"ds_read_b64_tr_b16 {vr(d + 2, 2)}, v{vb} offset:{base + 768}")]


def g1_epilogue(ftl):
    A = ACC_OF[ftl]
    head = Em()
    head(f"s_mul_i32 s{T[6]}, s{S_GJ}, 3")
    head(f"s_cmp_lt_u32 s{T[6]}, {43 - ftl}")
    head(f"s_cselect_b32 s{S_HST + 2}, {WS_SIZE:#x}, 0")
    head(f"s_add_u32 s{T[7]}, s{S_HOFF}, {ftl * 2048}")
    out = [head]
    toks = []
    for half in range(2):
        e = Em()
        O = V_ET + 16 + 4 * half + 8 * (ftl & 1)
        for pr in range(4):
            r = 8 * half + 2 * pr
            B = V_ET + 8 * (pr & 1)
            g0, g1, u0, u1 = A + r, A + r + 1, A + 16 + r, A + 16 + r + 1
            t0, t1, tp, tq = B, B + 1, B + 2, B + 3
            if not CFG["EMU_G1"]:
                e(f"v_mul_f32 v{t0}, v{g0}, v{g0}")
                e(f"v_mul_f32 v{t1}, v{g1}, v{g1}")
                e(f"v_fma_f32 v{t0}, v{t0}, s{S_C1}, v{V_C0}")
                e(f"v_fma_f32 v{t1}, v{t1}, s{S_C1}, v{V_C0}")
                e(f"v_mul_f32 v{t0}, v{t0}, v{g0}")
                e(f"v_mul_f32 v{t1}, v{t1}, v{g1}")
                e(f"v_exp_f32 v{t0}, v{t0}")
                e(f"v_exp_f32 v{t1}, v{t1}")
                e(f"v_mul_f32 v{u0}, v{u0}, v{g0}")
                e(f"v_add_f32 v{t0}, 1.0, v{t0}")
                e(f"v_add_f32 v{t1}, 1.0, v{t1}")
                e(f"v_rcp_f32 v{t0}, v{t0}")
                e(f"v_rcp_f32 v{t1}, v{t1}")
                e(f"v_mul_f32 v{u1}, v{u1}, v{g1}")
                e(f"v_mul_f32 v{t0}, v{t0}, v{u0}")
                e(f"v_mul_f32 v{t1}, v{t1}, v{u1}")
                e(f"v_cvt_pk_bf16_f32 v{O + pr}, v{t0}, v{t1}")
                continue
            round2(e, g0, g1, tp)
            e(f"v_mul_f32 v{t0}, v{g0}, v{g0}")
            e(f"v_mul_f32 v{t1}, v{g1}, v{g1}")
            e(f"v_fma_f32 v{t0}, v{t0}, s{S_C1}, v{V_C0}")
            e(f"v_fma_f32 v{t1}, v{t1}, s{S_C1}, v{V_C0}")
            e(f"v_mul_f32 v{t0}, v{t0}, v{g0}")
            e(f"v_mul_f32 v{t1}, v{t1}, v{g1}")
            e(f"v_exp_f32 v{t0}, v{t0}")
            e(f"v_exp_f32 v{t1}, v{t1}")
            e(f"v_cvt_pk_bf16_f32 v{tq}, v{u0}, v{u1}")
            e(f"v_add_f32 v{t0}, 1.0, v{t0}")
            e(f"v_add_f32 v{t1}, 1.0, v{t1}")
            e(f"v_rcp_f32 v{t0}, v{t0}")
            e(f"v_rcp_f32 v{t1}, v{t1}")
            e(f"v_lshlrev_b32 v{u0}, 16, v{tq}")
            e(f"v_mul_f32 v{t0}, v{t0}, v{g0}")
            e(f"v_mul_f32 v{t1}, v{t1}, v{g1}")
            e(f"v_and_b32 v{u1}, s{S_MASKHI}, v{tq}")
            round2(e, t0, t1, tp)
            e(f"v_mul_f32 v{t0}, v{t0}, v{u0}")
            e(f"v_mul_f32 v{t1}, v{t1}, v{u1}")
            e(f"v_cvt_pk_bf16_f32 v{O + pr}, v{t0}, v{t1}")
        s = Em()
        toks.append(s.vm(
            f"buffer_store_dwordx4 {vr(O)}, v{V_L16}, {srd(S_HST)}, s{T[7]} offen offset:{half * 1024} sc1"))
        out += [e, s]
    return out, toks


def h_flag(e, ftl, toks):
    e.wait(vm=toks)
    e(f"s_add_u32 s{T[0]}, s{S_FHOFF}, {ftl * 128}")
    return flag_store(e, T[0])


def hc_dma():
    parts, toks = [], []
    for eta in range(2):
        for phi in range(3):
            p = Em()
            p(f"s_mul_i32 s{T[8]}, s{S_WAVE}, 6208")
            p(f"s_add_u32 m0, s{T[8]}, {L_HC + (3 * eta + phi) * 1024}")
            if eta == 0:
                toks.append(p.vm(f"buffer_load_dwordx4 v{V_HC + phi}, {srd(S_SSM)}, 0 offen lds"))
            else:
                p(f"v_add_u32 v{TMP[4]}, 2048, v{V_HC + phi}")
                toks.append(p.vm(f"buffer_load_dwordx4 v{TMP[4]}, {srd(S_SSM)}, 0 offen lds"))
            parts.append(p)
    p = Em()
    p(f"s_lshl_b32 s{T[8]}, s{S_CH}, 12")
    p(f"v_mov_b32 v{TMP[4]}, 0")
    toks.append(p.vm(f"buffer_load_dword v{V_H01}, v{TMP[4]}, {srd(S_SSM)}, s{T[8]} offen"))
    parts.append(p)
    return parts, toks


def hc_fix(e, toks):
    a, b = TMP[4], TMP[5]
    e.wait(vm=toks)
    e(f"s_and_b32 s{T[8]}, s{S_WAVE}, 1")
    e(f"s_cmp_eq_u32 s{T[8]}, 1")
    e(f"s_cselect_b32 s{T[9]}, 15, 99")
    e(f"v_cmp_eq_u32 vcc, s{T[9]}, v{V_LANE}")
    e(f"s_mul_i32 s{T[8]}, s{S_WAVE}, 6208")
    e(f"s_add_u32 s{T[8]}, s{T[8]}, {L_HC}")
    e(f"v_cndmask_b32 v{a}, 0, v{V_H01}, vcc")
    e(f"v_lshlrev_b32 v{b}, 2, v{V_LANE}")
    e(f"v_add_u32 v{b}, s{T[8]}, v{b}")
    e("s_mov_b64 exec, 0xffff")
    t = e.lg(f"ds_write_b32 v{b}, v{a}")
    e("s_mov_b64 exec, -1")
    return t


def ur_zero(e):
    a = TMP[4]
    Z = 170
    for q in range(4):
        e(f"v_mov_b32 v{Z + q}, 0")
    e(f"v_lshlrev_b32 v{a}, 4, v0")
    e(f"v_add_u32 v{a}, {L_UR}, v{a}")
    e(f"v_cmp_gt_u32 vcc, 80, v0")
    e(f"s_and_saveexec_b64 s[{S_EXSAVE}:{S_EXSAVE + 1}], vcc")
    t0 = e.lg(f"ds_write_b128 v{a}, {vr(Z)} offset:5120")
    t1 = e.lg(f"ds_write_b128 v{a}, {vr(Z)} offset:{6400 + 5120}")
    e("s_mov_b64 exec, -1")
    return [t0, t1]


K_D, K_A = 40, 48


def kv_poll_issue(e):
    e(f"v_and_b32 v{V_PA}, 31, v{V_LANE}")
    e(f"v_lshlrev_b32 v{V_PA}, 4, v{V_PA}")
    e(f"s_lshr_b32 s{T[10]}, s{S_U}, 5")
    e(f"s_lshl_b32 s{T[10]}, s{T[10]}, 9")
    e(f"s_add_u32 s{T[10]}, s{T[10]}, {FL_P:#x}")
    return poll_issue(e, V_PA, T[10], V_PD)


def kv_load(e, tok, slp=None):
    poll_check(e, tok, V_PA, T[10], V_PD, slp)
    e(f"v_lshlrev_b32 v{K_A}, 4, v0")
    e(f"s_lshl_b32 s{T[11]}, s{S_U}, 13")
    e(f"s_add_u32 s{T[11]}, s{T[11]}, {WS_KV:#x}")
    e(f"s_add_u32 s{T[12]}, s{T[11]}, 4096")
    t0 = e.vm(f"buffer_load_dwordx4 {vr(K_D)}, v{K_A}, {srd(S_WS)}, s{T[11]} offen sc1")
    t1 = e.vm(f"buffer_load_dwordx4 {vr(K_D + 4)}, v{K_A}, {srd(S_WS)}, s{T[12]} offen sc1")
    return [t0, t1]


def kv_write(e, toks):
    e(f"v_lshrrev_b32 v{K_A}, 2, v0")
    e(f"v_mul_u32_u24 v{K_A}, 80, v{K_A}")
    e(f"v_and_b32 v{K_A + 1}, 3, v0")
    e(f"v_lshl_add_u32 v{K_A}, v{K_A + 1}, 4, v{K_A}")
    e(f"v_add_u32 v{K_A}, {L_UR}, v{K_A}")
    e.wait(vm=toks)
    return [e.lg(f"ds_write_b128 v{K_A}, {vr(K_D)}"),
            e.lg(f"ds_write_b128 v{K_A}, {vr(K_D + 4)} offset:6400")]


WD_BUFBASE = [L_XS, 0, 16384, 32768, 49152, 65536]


def wd_dma_parts(slot, buf):
    parts, toks = [], []
    for hb in range(2):
        e = Em()
        e(f"s_add_u32 m0, s{S_W4K}, {WD_BUFBASE[buf]}")
        e(f"s_lshl_b32 s{T[8]}, s{S_FT + slot}, 4")
        for m in (2 * hb, 2 * hb + 1):
            toks.append(e.vm(
                f"buffer_load_dwordx4 v{V_WDDMA + m}, {srd(S_WD)}, s{T[8]} offen offset:{m * 1024} lds"))
        parts.append(e)
    return parts, toks


def wd_tr_list(slot, buf):
    e = Em()
    toks = []
    if buf in (0, 5):
        base, vb = WD_BUFBASE[buf] - 65536, V_WDTR + 2
    else:
        base, vb = WD_BUFBASE[buf], V_WDTR
    for half in range(2):
        for dt in range(2):
            k, r = wd_frag_reg(slot, half * 2 + dt)
            for q in range(2):
                toks.append(e.lg(
                    f"ds_read_b64_tr_b16 {rr(k, r + 2 * q, 2)}, v{vb + dt} offset:{base + (16 * half + 8 * q) * 128}"))
    return e, toks


def g_path(e):
    GWR, GWU, X0, TB, G = 40, 44, 64, 192, 52
    gw = e.vm(f"buffer_load_dwordx4 {vr(GWR)}, v{V_L16}, {srd(S_GW)}, 0 offen")
    xt = []
    for r in range(32):
        e(f"s_add_u32 s{T[1]}, s{S_XSOFF}, {r * 1024}")
        xt.append(e.vm(f"buffer_load_dwordx4 {vr(X0 + 4 * r)}, v{V_L16}, {srd(S_X)}, s{T[1]} offen"))
    e.wait(vm=gw)
    for q in range(8):
        unpack(e, GWU + q, GWR + (q >> 1), q & 1)
    e(f"v_mov_b32 v{G}, 0")
    for r4 in range(0, 32, 4):
        e.wait(vm=xt[r4 + 3])
        accs = []
        for r in range(r4, r4 + 4):
            X = X0 + 4 * r
            tb = TB + 4 * (r - r4)
            acc = tb + 3
            for q in range(4):
                e(f"v_lshlrev_b32 v{tb}, 16, v{X + q}")
                e(f"v_and_b32 v{tb + 1}, s{S_MASKHI}, v{X + q}")
                e(f"v_mul_f32 v{tb}, v{tb}, v{GWU + 2 * q}")
                e(f"v_mul_f32 v{tb + 1}, v{tb + 1}, v{GWU + 1 + 2 * q}")
                e(f"v_cvt_pk_bf16_f32 v{tb + 2}, v{tb}, v{tb + 1}")
                e(f"v_lshlrev_b32 v{tb}, 16, v{tb + 2}")
                e(f"v_and_b32 v{tb + 1}, s{S_MASKHI}, v{tb + 2}")
                if q == 0:
                    e(f"v_add_f32 v{acc}, v{tb}, v{tb + 1}")
                else:
                    e(f"v_add_f32 v{tb}, v{tb}, v{tb + 1}")
                    e(f"v_add_f32 v{acc}, v{acc}, v{tb}")
            accs.append(acc)
        for mod in ("row_shr:1 row_mask:0xf bank_mask:0xf bound_ctrl:0",
                    "row_shr:2 row_mask:0xf bank_mask:0xf bound_ctrl:0",
                    "row_shr:4 row_mask:0xf bank_mask:0xf bound_ctrl:0",
                    "row_shr:8 row_mask:0xf bank_mask:0xf bound_ctrl:0",
                    "row_bcast:15 row_mask:0xa bank_mask:0xf",
                    "row_bcast:31 row_mask:0xc bank_mask:0xf"):
            for acc in accs:
                e(f"v_add_f32_dpp v{acc}, v{acc}, v{acc} {mod}")
        for i, acc in enumerate(accs):
            e(f"v_readlane_b32 s{T[2 + i]}, v{acc}, 63")
        for i, acc in enumerate(accs):
            e(f"v_writelane_b32 v{G}, s{T[2 + i]}, {r4 + i}")
    a, b, c = TB, TB + 1, TB + 2
    e(f"v_cvt_pk_bf16_f32 v{a}, v{G}, v{G}")
    e(f"v_lshlrev_b32 v{a}, 16, v{a}")
    e(f"v_mul_f32 v{a}, {f32hex(-math.log2(math.e))}, v{a}")
    e(f"v_exp_f32 v{a}, v{a}")
    e(f"v_add_f32 v{a}, 1.0, v{a}")
    e(f"v_rcp_f32 v{a}, v{a}")
    e(f"v_cvt_pk_bf16_f32 v{a}, v{a}, v{a}")
    e(f"v_lshlrev_b32 v{a}, 16, v{a}")
    e(f"v_sub_f32 v{b}, 1.0, v{a}")
    e(f"v_cvt_pk_bf16_f32 v{a}, v{a}, v{b}")
    e(f"v_lshlrev_b32 v{c}, 2, v{V_LANE}")
    e(f"s_lshl_b32 s{T[0]}, s{S_GI}, 9")
    e(f"s_lshl_b32 s{T[1]}, s{S_WAVE}, 7")
    e(f"s_add_u32 s{T[0]}, s{T[0]}, s{T[1]}")
    e(f"s_add_u32 s{T[0]}, s{T[0]}, {WS_G:#x}")
    e("s_mov_b64 exec, 0xffffffff")
    st = e.vm(f"buffer_store_dword v{a}, v{c}, {srd(S_WS)}, s{T[0]} offen sc1")
    e("s_mov_b64 exec, -1")
    return st


def epoch_cond(e, lbl):
    e(f"s_lshl_b32 s{T[0]}, s{S_GI}, 2")
    e(f"s_add_u32 s{T[0]}, s{T[0]}, s{S_WAVE}")
    e(f"s_lshl_b32 s{T[0]}, s{T[0]}, 4")
    e(f"s_add_u32 s{T[0]}, s{T[0]}, s{S_GJ}")
    e(f"s_cmp_lg_u32 s{T[0]}, 15")
    e(f"s_cbranch_scc1 {lbl}")


def epoch_issue(e):
    epoch_cond(e, "L_noep1")
    for q in range(4):
        e(f"s_mov_b32 s{T[1]}, {FL_P + q * 1024:#x}")
        e(f"buffer_load_dwordx4 {vr(40 + 4 * q)}, v{V_L16}, {srd(S_WS)}, s{T[1]} offen sc1")
    e.label("L_noep1")


def epoch_finish(e):
    epoch_cond(e, "L_noep2")
    e("s_waitcnt vmcnt(0)")
    for q in range(4):
        e(f"s_mov_b32 s{T[10]}, {FL_P + q * 1024:#x}")
        poll_check(e, None, V_L16, T[10], 40 + 4 * q, 20)
    e(f"s_sub_u32 s{T[0]}, s{S_TAG}, {TAGK - 1:#x}")
    e(f"v_mov_b32 v{TMP[0]}, s{T[0]}")
    e(f"v_mov_b32 v{TMP[1]}, 0")
    e(f"s_mov_b32 s{T[1]}, {FL_EPOCH:#x}")
    e("s_mov_b64 exec, 1")
    e(f"buffer_store_dword v{TMP[0]}, v{TMP[1]}, {srd(S_WS)}, s{T[1]} offen sc1")
    e("s_mov_b64 exec, -1")
    e.label("L_noep2")


def pstamp(e, idx):
    old = CFG["STAMPS"]
    CFG["STAMPS"] = True
    stamp(e, idx, force=True)
    CFG["STAMPS"] = old


C_ACC = 64
C_F = 96
C_H = V_R


def conv_hraw(e, p, nn):
    d = C_H + 20 * p + 4 * (nn % 5)
    off = p * 1536 + 16 * nn
    return [e.lg(f"ds_read_b64 {vr(d, 2)}, v{V_H} offset:{off}"),
            e.lg(f"ds_read_b64 {vr(d + 2, 2)}, v{V_H} offset:{off + 8}")]


def conv_align(e, p, nn):
    d = C_H + 20 * p + 4 * (nn % 5)
    nx = C_H + 20 * p + 4 * ((nn + 1) % 5)
    for k in range(3):
        e(f"v_alignbit_b32 v{d + k}, v{d + k + 1}, v{d + k}, v{V_SHF}")
    e(f"v_alignbit_b32 v{d + 3}, v{nx}, v{d + 3}, v{V_SHF}")


def conv_f(e, tt, delta):
    d = C_F + 16 * (tt % 2) + 4 * delta
    off = 1280 * (3 - delta) + 80 * (tt >> 2) + 16 * (tt & 3)
    return e.lg(f"ds_read_b128 {vr(d)}, v{V_F} offset:{off}")


def conv_epilogue(e, mid=None):
    a, b, c, u = TMP[0], TMP[1], TMP[2], TMP[3]

    def exbase(dst, wreg):
        e(f"s_lshl_b32 s{dst}, s{wreg}, 12")
        e(f"s_add_u32 s{dst}, s{dst}, {L_EX}")
    e(f"s_xor_b32 s{T[2]}, s{S_WAVE}, 1")
    exbase(T[0], S_WAVE)
    exbase(T[1], T[2])
    e(f"v_add_u32 v{a}, s{T[0]}, v{V_L16}")
    e(f"v_add_u32 v{b}, s{T[1]}, v{V_L16}")
    e(f"s_and_b32 s{T[3]}, s{S_WAVE}, 1")
    A0, A1 = C_ACC, C_ACC + 16
    e(f"s_cmp_eq_u32 s{T[3]}, 0")
    e("s_cbranch_scc1 L_cv_noswap")
    for q in range(16):
        e(f"v_swap_b32 v{A0 + q}, v{A1 + q}")
    e.label("L_cv_noswap")
    e("s_nop 7")
    wr = [e.lg(f"ds_write_b128 v{b}, {vr(A1 + 4 * q)} offset:{q * 1024}") for q in range(4)]
    e(f"v_and_b32 v{c}, 15, v{V_LANE}")
    e(f"v_sub_u32 v{u}, 47, v{c}")
    e(f"v_mul_u32_u24 v{u}, 80, v{u}")
    e(f"v_lshrrev_b32 v{TMP[4]}, 4, v{V_LANE}")
    e(f"v_lshlrev_b32 v{TMP[5]}, 3, v{TMP[4]}")
    e(f"v_sub_u32 v{u}, v{u}, v{TMP[5]}")
    e(f"s_lshr_b32 s{T[4]}, s{S_WAVE}, 1")
    e(f"s_mul_i32 s{T[4]}, s{T[4]}, 6400")
    e(f"s_mul_i32 s{T[5]}, s{T[3]}, 2560")
    e(f"s_sub_u32 s{T[4]}, s{T[4]}, s{T[5]}")
    e(f"s_add_u32 s{T[4]}, s{T[4]}, {L_UR + 24}")
    e(f"v_add_u32 v{u}, s{T[4]}, v{u}")
    RX, UU, t = C_F, C_F + 16, C_F + 24
    ur = {}
    for jj in range(2):
        for bb in range(2):
            ur[(jj, bb)] = e.lg(
                f"ds_read_b64 {vr(UU + 4 * jj + 2 * bb, 2)}, v{u} offset:{(1 - jj) * 1280 + (1 - bb) * 32}")
    e(f"v_lshlrev_b32 v{c}, 6, v{c}")
    e(f"v_add_u32 v{c}, v{c}, v{TMP[5]}")
    e(f"v_add_u32 v{c}, s{T[0]}, v{c}")
    e(f"s_lshl_b32 s{T[4]}, s{S_CH}, 12")
    e(f"s_lshl_b32 s{T[5]}, s{T[3]}, 11")
    e(f"s_add_u32 s{T[4]}, s{T[4]}, s{T[5]}")
    e(f"s_add_u32 s{T[4]}, s{T[4]}, {WS_Y2:#x}")
    e.wait(lg=wr)
    e("s_barrier")
    rd = [e.lg(f"ds_read_b128 {vr(RX + 4 * q)}, v{a} offset:{q * 1024}") for q in range(4)]
    if mid is not None:
        e.extend(mid)
    outs = []
    for q in range(4):
        jj, bb = q >> 1, q & 1
        e.wait(lg=[rd[q], ur[(jj, bb)]])
        A = A0 + 4 * q
        U = UU + 4 * jj + 2 * bb
        for r in range(4):
            e(f"v_add_f32 v{A + r}, v{A + r}, v{RX + 4 * q + r}")
        round2(e, A, A + 1, t + 4)
        round2(e, A + 2, A + 3, t + 5)
        unpack(e, t, U + 1, 1)
        unpack(e, t + 1, U + 1, 0)
        unpack(e, t + 2, U, 1)
        unpack(e, t + 3, U, 0)
        for r in range(4):
            e(f"v_mul_f32 v{t + r}, s{S_DF}, v{t + r}")
        round2(e, t, t + 1, t + 4)
        round2(e, t + 2, t + 3, t + 5)
        for r in range(4):
            e(f"v_add_f32 v{A + r}, v{A + r}, v{t + r}")
        O = A1 + 2 * q
        e(f"v_cvt_pk_bf16_f32 v{O}, v{A}, v{A + 1}")
        e(f"v_cvt_pk_bf16_f32 v{O + 1}, v{A + 2}, v{A + 3}")
        outs.append(O)
    e.wait(lg=rd)
    ws_ = [e.lg(f"ds_write_b64 v{c}, {vr(outs[q], 2)} offset:{(q >> 1) * 1024 + (q & 1) * 32}") for q in range(4)]
    e.wait(lg=ws_)
    r0 = e.lg(f"ds_read_b128 {vr(V_WF)}, v{a}")
    r1 = e.lg(f"ds_read_b128 {vr(V_WF + 4)}, v{a} offset:1024")
    e.wait(lg=[r0, r1])
    s0 = e.vm(f"buffer_store_dwordx4 {vr(V_WF)}, v{V_L16}, {srd(S_WS)}, s{T[4]} offen sc1")
    s1 = e.vm(f"buffer_store_dwordx4 {vr(V_WF + 4)}, v{V_L16}, {srd(S_WS)}, s{T[4]} offen offset:1024 sc1")
    return [s0, s1]


def y_flag(e, toks):
    e.wait(vm=toks)
    e(f"s_lshl_b32 s{T[0]}, s{S_U}, 4")
    e(f"s_lshl_b32 s{T[1]}, s{S_WAVE}, 2")
    e(f"s_add_u32 s{T[0]}, s{T[0]}, s{T[1]}")
    e(f"s_add_u32 s{T[0]}, s{T[0]}, {FL_Y:#x}")
    return flag_store(e, T[0])


def h_poll_issue(e, level):
    if level == 0:
        e(f"v_and_b32 v{V_PA}, 15, v{V_LANE}")
    else:
        e(f"v_and_b32 v{V_PA}, 7, v{V_LANE}")
    e(f"v_lshlrev_b32 v{V_PA}, 4, v{V_PA}")
    e(f"s_lshl_b32 s{T[13]}, s{S_I2}, 9")
    e(f"s_add_u32 s{T[13]}, s{T[13]}, {FL_H + 256 * level:#x}")
    return poll_issue(e, V_PA, T[13], V_PD)


def h_load_parts(m):
    parts, toks = [], {}
    for st in range(2):
        e = Em()
        e(f"s_mul_i32 s{T[9]}, s{S_I2}, {86 * 2048}")
        e(f"s_add_u32 s{T[9]}, s{T[9]}, s{S_FT + m}")
        if st:
            e(f"s_add_u32 s{T[9]}, s{T[9]}, {43 * 2048}")
        if m == 10:
            e(f"s_cmp_eq_u32 s{S_WAVE}, 3")
            e(f"s_cselect_b32 s{T[9]}, {WS_SIZE:#x}, s{T[9]}")
        for half in range(2):
            k, r = h_frag_reg(m, st * 2 + half)
            toks[(st, half)] = e.vm(
                f"buffer_load_dwordx4 {rr(k, r, 4)}, v{V_L16}, {srd(S_WS)}, s{T[9]} offen offset:{half * 1024} sc1")
        parts.append(e)
    return parts, toks


G2ACC = 64
B_G, B_Y, B_Q, B_A = 176, 180, 188, 196


def qg_loads(e):
    a, b = TMP[0], TMP[1]
    e(f"v_lshrrev_b32 v{a}, 3, v0")
    e(f"v_and_b32 v{b}, 7, v0")
    e(f"v_lshlrev_b32 v{b}, 4, v{b}")
    e(f"v_lshl_add_u32 v{B_A}, v{a}, 12, v{b}")
    e(f"v_lshlrev_b32 v{B_A + 1}, 2, v{a}")
    e(f"s_lshl_b32 s{T[0]}, s{S_I2}, 8")
    e(f"s_add_u32 s{T[0]}, s{T[0]}, {WS_G:#x}")
    e(f"s_mov_b32 s{T[1]}, 32768")
    q0 = e.vm(f"buffer_load_dwordx4 {vr(B_Q)}, v{V_OUTO}, {srd(S_X)}, 0 offen")
    q1 = e.vm(f"buffer_load_dwordx4 {vr(B_Q + 4)}, v{V_OUTO}, {srd(S_X)}, s{T[1]} offen")
    g0 = e.vm(f"buffer_load_dword v{B_G}, v{B_A + 1}, {srd(S_WS)}, s{T[0]} offen sc1")
    g1 = e.vm(f"buffer_load_dword v{B_G + 1}, v{B_A + 1}, {srd(S_WS)}, s{T[0]} offen offset:128 sc1")
    return [q0, q1, g0, g1]


def y_poll_issue(e):
    e(f"v_and_b32 v{V_PA}, 31, v{V_LANE}")
    e(f"v_lshlrev_b32 v{V_PA}, 4, v{V_PA}")
    e(f"s_lshl_b32 s{T[13]}, s{S_N2}, 9")
    e(f"s_add_u32 s{T[13]}, s{T[13]}, {FL_Y:#x}")
    return poll_issue(e, V_PA, T[13], V_PD)


def y_loads(e, tok):
    poll_check(e, tok, V_PA, T[13], V_PD)
    e(f"s_lshl_b32 s{T[0]}, s{S_N2}, 18")
    e(f"s_lshl_b32 s{T[1]}, s{S_I2}, 7")
    e(f"s_add_u32 s{T[0]}, s{T[0]}, s{T[1]}")
    e(f"s_add_u32 s{T[0]}, s{T[0]}, {WS_Y2:#x}")
    e(f"s_add_u32 s{T[1]}, s{T[0]}, {32 * 4096:#x}")
    y0 = e.vm(f"buffer_load_dwordx4 {vr(B_Y)}, v{B_A}, {srd(S_WS)}, s{T[0]} offen sc1")
    y1 = e.vm(f"buffer_load_dwordx4 {vr(B_Y + 4)}, v{B_A}, {srd(S_WS)}, s{T[1]} offen sc1")
    return [y0, y1]


def blend(e, qgt, yt):
    a, b, c, d = TMP[0], TMP[1], TMP[2], TMP[3]
    e(f"v_and_b32 v{a}, 31, v{V_LANE}")
    e(f"v_mul_u32_u24 v{a}, 272, v{a}")
    e(f"v_lshrrev_b32 v{b}, 5, v{V_LANE}")
    e(f"v_lshl_add_u32 v{a}, v{b}, 4, v{a}")
    e(f"s_mul_i32 s{T[0]}, s{S_WAVE}, 17408")
    e(f"v_add_u32 v{a}, s{T[0]}, v{a}")
    e(f"v_lshrrev_b32 v{b}, 3, v0")
    e(f"v_lshrrev_b32 v{c}, 6, v0")
    e(f"v_and_b32 v{d}, 7, v0")
    e(f"v_xor_b32 v{c}, v{c}, v{d}")
    e(f"v_lshlrev_b32 v{c}, 4, v{c}")
    e(f"v_lshl_add_u32 v{c}, v{b}, 7, v{c}")
    e(f"v_xor_b32 v{TMP[4]}, 64, v{c}")
    e(f"v_add_u32 v{c}, {L_YT}, v{c}")
    e(f"v_add_u32 v{TMP[4]}, {L_YT}, v{TMP[4]}")
    wr = []
    for dt in range(2):
        for st in range(2):
            for q in range(4):
                wr.append(e.lg(f"ds_write_b128 v{a}, {vr(G2ACC + 32 * dt + 16 * st + 4 * q)} "
                               f"offset:{L_P2 + st * 32 * 272 + dt * 128 + q * 32}"))
    e.wait(vm=yt)
    wr.append(e.lg(f"ds_write_b128 v{c}, {vr(B_Y)}"))
    wr.append(e.lg(f"ds_write_b128 v{TMP[4]}, {vr(B_Y + 4)} offset:4096"))
    e(f"v_mul_u32_u24 v{a}, 272, v{b}")
    e(f"v_lshl_add_u32 v{a}, v{d}, 5, v{a}")
    e(f"v_xor_b32 v{c}, s{S_WAVE}, v{d}")
    e(f"v_lshlrev_b32 v{c}, 4, v{c}")
    e(f"v_lshl_add_u32 v{c}, v{d}, 10, v{c}")
    e(f"v_and_b32 v{b}, 7, v{b}")
    e(f"v_lshl_add_u32 v{c}, v{b}, 1, v{c}")
    e(f"v_xor_b32 v{TMP[4]}, 64, v{c}")
    e(f"v_add_u32 v{c}, {L_YT}, v{c}")
    e(f"v_add_u32 v{TMP[4]}, {L_YT}, v{TMP[4]}")
    YB = 128
    for q in range(16):
        e(f"v_mov_b32 v{YB + q}, 0")
    e(f"s_mov_b32 s{T[1]}, 32768")
    e.wait(lg=wr)
    stamp(e, 28)
    e("s_barrier")
    rds, yrs = [], []
    for pi in range(2):
        P = 64 + 32 * pi
        rd = []
        for wv in range(4):
            for h in range(2):
                rd.append(e.lg(f"ds_read_b128 {vr(P + 8 * wv + 4 * h)}, v{a} "
                               f"offset:{L_P2 + wv * 17408 + pi * 32 * 272 + h * 16}"))
        Y = YB + 8 * pi
        yv = c if pi == 0 else TMP[4]
        yr = [e.lg(f"ds_read_u16_d16_hi v{Y + cc}, v{yv} offset:{cc * 128}") for cc in range(8)]
        rds.append(rd)
        yrs.append(yr)
    for pi in range(2):
        P = 64 + 32 * pi
        Y = YB + 8 * pi
        e.wait(lg=rds[pi])
        for r in range(8):
            e(f"v_add_f32 v{P + r}, v{P + r}, v{P + 8 + r}")
            e(f"v_add_f32 v{P + 16 + r}, v{P + 16 + r}, v{P + 24 + r}")
        for r in range(8):
            e(f"v_add_f32 v{P + r}, v{P + r}, v{P + 16 + r}")
        e.wait(vm=qgt, lg=yrs[pi])
        Gv = B_G + pi
        e(f"v_lshlrev_b32 v{P + 8}, 16, v{Gv}")
        e(f"v_and_b32 v{P + 9}, s{S_MASKHI}, v{Gv}")
        Q = B_Q + 4 * pi
        for pr in range(4):
            b0, b1 = P + 2 * pr, P + 2 * pr + 1
            q0, q1, tp = P + 10 + 3 * (pr & 1), P + 11 + 3 * (pr & 1), P + 12 + 3 * (pr & 1)
            unpack(e, q0, Q + pr, 0)
            unpack(e, q1, Q + pr, 1)
            round2(e, b0, b1, tp)
            e(f"v_mul_f32 v{q0}, v{q0}, v{Y + 2 * pr}")
            e(f"v_mul_f32 v{q1}, v{q1}, v{Y + 2 * pr + 1}")
            e(f"v_mul_f32 v{b0}, v{b0}, v{P + 9}")
            e(f"v_mul_f32 v{b1}, v{b1}, v{P + 9}")
            round2(e, q0, q1, tp)
            e(f"v_mul_f32 v{q0}, v{q0}, v{P + 8}")
            e(f"v_mul_f32 v{q1}, v{q1}, v{P + 8}")
            round2(e, b0, b1, tp)
            round2(e, q0, q1, tp)
            e(f"v_add_f32 v{b0}, v{b0}, v{q0}")
            e(f"v_add_f32 v{b1}, v{b1}, v{q1}")
            e(f"v_cvt_pk_bf16_f32 v{P + 16 + pr}, v{b0}, v{b1}")
        so = "0" if pi == 0 else f"s{T[1]}"
        e.vm(f"buffer_store_dwordx4 {vr(P + 16)}, v{V_OUTO}, {srd(S_OUT)}, {so} offen")


PREP_C0, PREP_C1, PREP_BK = 20, 88, 15
HP_A, YP = 50, 76


def main_body():
    e = Em()
    setup(e)
    e.wait_all(vm=False, lg=True)
    stamp(e, 0)
    e(f"s_cmp_eq_u32 s{S_GJ}, 15")
    e("s_cbranch_scc1 L_gpath")

    wtok, xtok, xr = {}, {}, {}
    if CFG.get("EXP"):
        for it in CFG["EXP"]:
            if it[0] == "w": w_dma(e, int(it[1:]))
            if it[0] == "x": x_ld(e, int(it[1:]))
            if it[0] == "p": prep_loads(e)
        stamp(e, 14)
        e.wait_all()
        stamp(e, 1)
        e.wait_all()
        e("s_branch L_end")
        e.label("L_gpath")
        return e
    wtok[0] = w_dma(e, 0)
    xtok[0] = x_ld(e, 0)
    wtok[1] = w_dma(e, 1)
    xtok[1] = x_ld(e, 1)
    ptoks = prep_loads(e)
    addr_g1(e)
    blks = addr_blocks()
    for blk in blks[:-1]:
        e.extend(blk)
    stamp(e, 14)
    NK = 32
    gaps = [Em() for _ in range(6 * NK)]
    pre_k = [Em() for _ in range(NK)]
    trtok = {}
    G = lambda k, i=0: gaps[6 * k + i]
    e.wait(vm=xtok[0])
    xr[0] = x_read(e, 0)
    e("s_barrier")
    for idx in range(6):
        trtok[(0, idx)] = w_tr(e, 0, idx)
    stamp(e, 1)
    q = []
    for it in ("w2", "x2", "w3", "x3", "x4"):
        if it[0] == "w":
            parts, wtok[int(it[1])] = w_dma_parts(int(it[1]))
        else:
            parts, xtok[int(it[1])] = x_ld_parts(int(it[1]))
        q += parts
    for i, p in enumerate(q):
        gaps[(i * 41) // len(q)].extend(p)
    for c, k0 in ((5, 9), (6, 13), (7, 17)):
        parts, xtok[c] = x_ld_parts(c)
        for i, p in enumerate(parts):
            gaps[6 * k0 + 3 + 2 * i].extend(p)
    mtoks = misc_loads(G(11, 1))
    for c in range(1, 8):
        g = G(4 * c - 2, 1)
        g.wait(vm=xtok[c])
        xr[c] = x_read(g, c)
    for n in range(1, 8):
        k = 4 * n - 1
        p = pre_k[k]
        if k == PREP_BK:
            pass
        if CFG.get("PROF"):
            pstamp(p, 3 * n)
        p.wait(vm=wtok[n])
        if CFG.get("PROF"):
            pstamp(p, 3 * n + 1)
        p("s_barrier")
        if CFG.get("PROF"):
            pstamp(p, 3 * n + 2)
        if 2 <= n and n + 2 < 8:
            parts, wtok[n + 2] = w_dma_parts(n + 2)
            for i, p in enumerate(parts):
                gaps[6 * k + 2 * i].extend(p)
    for T_ in range(1, NK):
        for idx in range(6):
            trtok[(T_, idx)] = w_tr(G(T_ - 1, idx), T_, idx)
    segs, pwr = prep_segments(ptoks)
    if CFG.get("PROF"):
        pstamp(gaps[PREP_C0 - 1], 27)
    gaps[PREP_C0 - 1].extend(segs[0])
    body = [i for sg in segs[1:] for i in sg.L]
    spread(gaps, body, PREP_C0, PREP_C1)
    assert PREP_C1 <= 6 * PREP_BK
    w_ = Em()
    w_.wait(lg=pwr)
    pre_k[PREP_BK].L[0:0] = w_.L
    prd = prep_readback(G(PREP_BK, 4))
    pst = prep_store(G(PREP_BK + 1, 2), prd)
    misc_use(G(PREP_BK + 1, 0), mtoks)
    if CFG.get("PROF"):
        pstamp(G(PREP_BK + 7, 2), 24)
    prep_flag(G(PREP_BK + 7, 2), pst)
    if CFG.get("PROF"):
        pstamp(G(PREP_BK + 7, 2), 25)
        pstamp(gaps[PREP_C0 - 1], 26)
    if CFG["TOUCH"]:
        touch_loads(G(16, 2))
    parts, hct = hc_dma()
    for i, p in enumerate(parts):
        G(20 + i, 4).extend(p)
    ur_zero(G(20, 1))
    wdq = {}
    parts, tk = wd_dma_parts(0, 0)
    G(28, 0).extend(parts[0])
    G(29, 0).extend(parts[1])
    wdq[0] = (0, tk)
    pt = kv_poll_issue(G(30, 0))

    for T_ in range(NK):
        if T_ in (0, 8, 16, 24):
            stamp(e, 8 + T_ // 8)
        e.extend(pre_k[T_])
        lgw = [t for idx in range(2) for t in trtok[(T_, idx)]]
        if T_ % 4 == 0:
            lgw += xr[T_ // 4]
        e.wait(lg=lgw)
        wf = wf_base(T_)
        for idx in range(6):
            ft, mat = idx >> 1, idx & 1
            A = ACC_OF[ft] + 16 * mat
            if idx in (2, 4):
                e.wait(lg=trtok[(T_, idx)] + trtok[(T_, idx + 1)])
            c = "0" if T_ == 0 else vr(A, 16)
            e(f"v_mfma_f32_32x32x16_bf16 {vr(A, 16)}, {vr(wf + 4 * idx)}, {ar(4 * T_)}, {c}")
            e.extend(gaps[6 * T_ + idx])
    if CFG.get("PROF"):
        pstamp(e, 28)
    e("s_branch L_join")

    e.label("L_gpath")
    ge = Em()
    prep_loads(ge)
    mt = misc_loads(ge)
    for blk in addr_blocks()[:-1]:
        ge.extend(blk)
    ge.wait_all()
    gsegs, gwr = prep_segments([])
    for s in gsegs:
        ge.extend(s)
    misc_use(ge, [])
    ge.wait(lg=gwr)
    ge("s_barrier")
    rd = prep_readback(ge)
    gps = prep_store(ge, rd)
    parts, ghct = hc_dma()
    for p in parts:
        ge.extend(p)
    gst = g_path(ge)
    prep_flag(ge, gps)
    ur_zero(ge)
    parts, tk = wd_dma_parts(0, 0)
    for p in parts:
        ge.extend(p)
    kv_poll_issue(ge)
    ge.wait_all()
    e.L.append(("SUB", ge))

    e.label("L_join")
    stamp(e, 2)
    e.wait_all(vm=False, lg=True)
    e("s_barrier")
    e.extend(blks[-1])
    wtr = {}
    htoks = {}

    def wd_go(em, slot, buf, after=None):
        if after is not None:
            em.wait(lg=wtr[after])
        parts, tk = wd_dma_parts(slot, buf)
        wdq[slot] = (buf, tk)
        return parts

    def wd_rd(em, slot):
        buf, tk = wdq[slot]
        em.wait(vm=tk)
        tr, wtr[slot] = wd_tr_list(slot, buf)
        em.extend(tr)

    def chunks(L, n):
        k = len(L) // n
        return [L[i * k:(i + 1) * k] if i < n - 1 else L[(n - 1) * k:] for i in range(n)]

    hr, ft = {}, {}
    (head, v0_, s0_, v1_, s1_), htoks[0] = g1_epilogue(0)
    e.extend(head)
    ins = []
    for slot, buf in ((1, 1), (2, 2)):
        ins += wd_go(None, slot, buf)
    for i, ch in enumerate(chunks(v0_.L, 4)):
        e.L.extend(ch)
        e.extend(ins[i])
    e.extend(s0_)
    kt = kv_load(e, pt)
    hc_fix(e, hct)
    ins = []
    for slot, buf in ((3, 3), (4, 4)):
        ins += wd_go(None, slot, buf)
    for i, ch in enumerate(chunks(v1_.L, 4)):
        e.L.extend(ch)
        e.extend(ins[i])
    e.extend(s1_)
    stamp(e, 12)
    (head, v0_, s0_, v1_, s1_), htoks[1] = g1_epilogue(1)
    e.extend(head)
    ins = wd_go(None, 5, 5)
    cs = chunks(v0_.L, 4)
    e.L.extend(cs[0]); e.extend(ins[0])
    e.L.extend(cs[1]); e.extend(ins[1])
    e.L.extend(cs[2]); wd_rd(e, 0)
    e.L.extend(cs[3])
    e.extend(s0_)
    kvw = kv_write(e, kt)
    h_flag(e, 0, htoks[0])
    cs = chunks(v1_.L, 4)
    ins = wd_go(e, 6, 0, after=0)
    e.L.extend(cs[0]); e.extend(ins[0])
    e.L.extend(cs[1]); e.extend(ins[1])
    e.L.extend(cs[2]); wd_rd(e, 1)
    e.L.extend(cs[3])
    e.extend(s1_)
    e.wait_all(vm=False, lg=True)
    e("s_barrier")
    stamp(e, 13)
    for nn in range(4):
        for p in range(4):
            hr[(p, nn)] = conv_hraw(e, p, nn)
    for dl in range(4):
        ft[(0, dl)] = conv_f(e, 0, dl)
    (head, v0_, s0_, v1_, s1_), htoks[2] = g1_epilogue(2)
    e.extend(head)
    cs = chunks(v0_.L, 4)
    ins = wd_go(e, 7, 1, after=1)
    e.L.extend(cs[0]); e.extend(ins[0])
    e.L.extend(cs[1]); e.extend(ins[1])
    e.L.extend(cs[2]); wd_rd(e, 2)
    e.L.extend(cs[3])
    e.extend(s0_)
    h_flag(e, 1, htoks[1])
    cs = chunks(v1_.L, 4)
    e.L.extend(cs[0])
    for nn in range(3):
        for p in range(4):
            e.wait(lg=hr[(p, nn)] + hr[(p, nn + 1)][:1])
            conv_align(e, p, nn)
    e.L.extend(cs[1]); wd_rd(e, 3)
    e.L.extend(cs[2])
    e.L.extend(cs[3])
    e.extend(s1_)
    stamp(e, 3)

    cg = [Em() for _ in range(160)]
    for tt in range(8):
        g0 = 20 * tt
        if tt + 4 <= 10:
            for p in range(4):
                hr[(p, tt + 4)] = conv_hraw(cg[g0 + p], p, tt + 4)
        if tt + 1 < 8:
            for dl in range(4):
                ft[(tt + 1, dl)] = conv_f(cg[g0 + 4 + dl], tt + 1, dl)
            g = cg[g0 + 11]
            g.wait(lg=[t for p in range(4) for t in hr[(p, tt + 3)] + hr[(p, tt + 4)][:1]])
            for p in range(4):
                conv_align(cg[g0 + 11 + 2 * p], p, tt + 3)

    def wd_read(g, slot):
        buf, tk = wdq[slot]
        cg[g].wait(vm=tk)
        tr, wtr[slot] = wd_tr_list(slot, buf)
        spread(cg, tr.L, g, g + 4)

    def wd_issue(g, slot, buf, after):
        parts = wd_go(cg[g], slot, buf, after)
        cg[g].extend(parts[0])
        cg[g + 4].extend(parts[1])

    wd_issue(0, 8, 2, 2)
    wd_issue(8, 9, 3, 3)
    wd_read(16, 4)
    wd_issue(24, 10, 4, 4)
    wd_read(34, 5)
    h_flag(cg[40], 2, htoks[2])
    wd_read(54, 6)
    wd_read(74, 7)
    wd_read(94, 8)
    wd_read(114, 9)
    wd_read(134, 10)
    hpa = h_poll_issue(cg[HP_A - 18], 0)
    poll_check(cg[HP_A - 1], hpa, V_PA, T[13], V_PD)
    htok = {}
    for m in range(7):
        g = HP_A + m * (150 - HP_A) // 7
        parts, htok[m] = h_load_parts(m)
        cg[g].extend(parts[0])
        cg[g + 5].extend(parts[1])
    hpb = h_poll_issue(cg[152], 1)
    for tt in range(8):
        idx = 0
        if tt in (2, 4, 6):
            stamp(e, 18 + tt // 2)
        for dl in range(4):
            e.wait(lg=ft[(tt, dl)])
            for p in range(4 - dl):
                j = p + dl
                for bb in range(2):
                    acc = C_ACC + 8 * j + 4 * bb
                    h = C_H + 20 * p + 4 * ((tt + 2 * bb) % 5)
                    f = C_F + 16 * (tt % 2) + 4 * dl
                    c = "0" if (tt == 0 and dl == 0) else vr(acc)
                    e(f"v_mfma_f32_16x16x32_bf16 {vr(acc)}, {vr(h)}, {vr(f)}, {c}")
                    e.extend(cg[20 * tt + idx])
                    idx += 1
    stamp(e, 4)
    mid = Em()
    poll_check(mid, hpb, V_PA, T[13], V_PD)
    for m in (7, 8):
        parts, htok[m] = h_load_parts(m)
        for p in parts:
            mid.extend(p)
    yst = conv_epilogue(e, mid)
    stamp(e, 5)

    g2 = [Em() for _ in range(88)]
    for m, g in ((9, 0), (10, 4)):
        parts, htok[m] = h_load_parts(m)
        g2[g].extend(parts[0])
        g2[g + 2].extend(parts[1])
    epoch_issue(g2[8])
    qgt = qg_loads(g2[10])
    y_flag(g2[20], yst)
    yp = y_poll_issue(g2[YP - 12])
    yt = y_loads(g2[YP], yp)
    idx = 0
    for m in range(11):
        if m in (2, 4, 6, 8, 10):
            stamp(e, 21 + m // 2)
        for half in range(2):
            for st in range(2):
                e.wait(vm=htok[m][(st, half)], lg=wtr[m] if (half == 0 and st == 0) else None)
                for dt in range(2):
                    ka, ra = wd_frag_reg(m, half * 2 + dt)
                    kb, rb = h_frag_reg(m, st * 2 + half)
                    acc = G2ACC + 32 * dt + 16 * st
                    c = "0" if (m == 0 and half == 0) else vr(acc, 16)
                    e(f"v_mfma_f32_32x32x16_bf16 {vr(acc, 16)}, {rr(ka, ra, 4)}, {rr(kb, rb, 4)}, {c}")
                    e.extend(g2[idx])
                    idx += 1
    stamp(e, 6)
    blend(e, qgt, yt)
    epoch_finish(e)
    stamp(e, 7)
    return e


def resolve_sub(ge):
    own = {id(i) for i in ge.L}
    L = []
    for i in ge.L:
        if i.kind == "wait":
            L.append(Ins("", "wait", [t for t in i.vm if id(t) in own], [t for t in i.lg if id(t) in own]))
        else:
            L.append(i)
    return resolve_waits(L)


def flatten(e):
    subs, L = {}, []
    for i in e.L:
        if isinstance(i, tuple):
            key = f";;SUB{len(subs)}"
            subs[key] = i[1]
            L.append(Ins(key))
        else:
            L.append(i)
    out = []
    for ln in resolve_waits(L):
        if ln in subs:
            out.extend(resolve_sub(subs[ln]))
        else:
            out.append(ln)
    return pad_hazards(out)


def emit(path):
    _lbl[0] = 0
    lines, npad = flatten(main_body())
    hdr = open("gated_mix__ssm_conv_h3__geglu_ffn__prompt.s.ref").read().split("; @launch")[0]
    txt = hdr
    txt += f"; @launch grid=(256,1,1) block=(256,1,1) lds={LDS_SIZE}\n"
    txt += '.amdgcn_target "amdgcn-amd-amdhsa--gfx950"\n.text\n'
    txt += f".globl {KNAME}\n.p2align 8\n.type {KNAME},@function\n{KNAME}:\n"
    for ln in lines:
        txt += ("" if ln.endswith(":") else "    ") + ln + "\n"
    txt += "L_end:\n    s_endpgm\n"
    txt += f""".section .rodata,"a"
.p2align 6
.amdhsa_kernel {KNAME}
  .amdhsa_next_free_vgpr 512
  .amdhsa_next_free_sgpr 102
  .amdhsa_accum_offset 256
  .amdhsa_group_segment_fixed_size 0
  .amdhsa_kernarg_size 112
  .amdhsa_user_sgpr_count 2
  .amdhsa_user_sgpr_kernarg_segment_ptr 1
  .amdhsa_system_sgpr_workgroup_id_x 1
.end_amdhsa_kernel
"""
    open(path, "w").write(txt)
    return len(lines), npad


if __name__ == "__main__":
    out = sys.argv[1] if len(sys.argv) > 1 else "k2.s"
    for a in sys.argv[2:]:
        k, v = a.split("=")
        CFG[k] = eval(v)
    print(emit(out))
```

```python
import sys, struct, math
sys.path.insert(0, "work")
from asmlib import Em, Ins, resolve_waits, pad_hazards

KNAME = "gated_mix__ssm_conv_h3__geglu_ffn__prompt_kernel"

CFG = dict(EMU_PREP=True, EMU_G1=True, STAMPS=False, POLL_MAX=200000, ROT=7, SLEEP=8, TOUCH=True,
           KV_AFTER=5, CPRIO=0, PRE=2, LPRE=True, LPRIO=2, PDELAY=0, PC0=4, PB=15, PRIO_AT=0)

WS_KV = 0x600000
WS_Y2 = 0x800000
WS_G = 0xA00000
WS_FLG = 0xB00000
FL_EPOCH = WS_FLG
FL_P = WS_FLG + 0x1000
FL_H = WS_FLG + 0x2000
FL_Y = WS_FLG + 0x8000
WS_STAMP = 0xC00000
WS_SIZE = 0x10000000
TAGK = 0x9E3779B9

SLOT = 41216
PHYS = {2: 0, 0: SLOT, 1: 2 * SLOT}
L_WDB = 0
WDB_STRIDE = 20608
L_LWD = 2 * SLOT
L_EX = 2 * SLOT + 16384
L_P2L = 2 * SLOT
L_YT = 2 * SLOT + 4 * 17408
L_HC = 123648
L_UR = 148480
L_PT = 148480
L_SH = 161280
L_FL = 162304
LDS_SIZE = 163840

S_X, S_K, S_V, S_SH, S_SSM, S_WG, S_WU, S_WD, S_GW, S_OUT, S_WS, S_HST, S_DD = [4 + 4 * i for i in range(13)]
S_WAVE, S_GI, S_GJ, S_I2, S_N2, S_TAG = 56, 57, 58, 59, 60, 61
T = list(range(62, 76))
S_C1, S_MASKHI = 76, 77
S_EXSAVE = 78
S_WSOFF, S_XSOFF, S_XM0, S_HOFF, S_FHOFF, S_CH, S_POLL, S_U, S_DF = 80, 81, 82, 83, 84, 85, 86, 87, 88
S_WDBASE = 89
S_RHO, S_WRB = 3, 2
S_FT = 90
S_STI = 101


def srd(b): return f"s[{b}:{b + 3}]"
def vr(b, n=4): return f"v[{b}:{b + n - 1}]"
def ar(b, n=4): return f"a[{b}:{b + n - 1}]"
def rr(k, b, n): return f"{k}[{b}:{b + n - 1}]"
def f32hex(x): return "0x%08x" % struct.unpack("<I", struct.pack("<f", x))[0]


V_LANE, V_L16 = 1, 2
TMP = [13, 14, 15, 16, 17, 18]
V_PA = 19
V_PD = 20
V_EPO, V_H01, V_OUTO, V_T = 24, 25, 26, 27
V_WTR = 3
V_XRD = 6
V_C0 = 9
ACC_OF = {0: 96, 1: 64, 2: 32}
V_ET = 144
A_WF = 0
A_XF = 48
P_K, P_V, P_SH, P_AD, P_T = 32, 52, 60, 76, 84
V_WDMA = 3
V_XDMA = 6
V_F, V_H, V_SHF = 3, 4, 5
V_HC = 32
C_ACC, C_H = 32, 64
A_F = 0
V_WDDMA = 28
V_WDTR = 10
CW_SET = [("v", 96), ("v", 112), ("v", 64), ("v", 80), ("v", 32)]
CH_SET = [("a", 64), ("a", 80), ("v", 128), ("v", 48), ("v", 144)]
LW_SET = [("a", 32), ("a", 48), ("a", 64), ("a", 80)]
LH_SET = [("v", 96), ("v", 112), ("v", 128), ("v", 144)]


def stamp(e, idx):
    if not CFG["STAMPS"]:
        return
    e.wait_all(vm=False, lg=True)
    e("s_memrealtime s[0:1]")
    e(f"s_memtime s[{S_EXSAVE}:{S_EXSAVE + 1}]")
    e.wait_all(vm=False, lg=True)
    e(f"v_mov_b32 v{TMP[0]}, s0")
    e(f"v_mov_b32 v{TMP[1]}, s{S_STI}")
    e(f"v_mov_b32 v{TMP[2]}, s{S_EXSAVE}")
    e("s_mov_b64 exec, 1")
    e.vm(f"buffer_store_dword v{TMP[0]}, v{TMP[1]}, {srd(S_WS)}, 0 offen offset:{idx * 4}")
    e.vm(f"buffer_store_dword v{TMP[2]}, v{TMP[1]}, {srd(S_WS)}, 0 offen offset:{128 + idx * 4}")
    e("s_mov_b64 exec, -1")


def flag_store(e, s_addr):
    e(f"v_mov_b32 v{TMP[0]}, s{S_TAG}")
    e(f"v_mov_b32 v{TMP[1]}, 0")
    e("s_mov_b64 exec, 1")
    t = e.vm(f"buffer_store_dword v{TMP[0]}, v{TMP[1]}, {srd(S_WS)}, s{s_addr} offen sc1")
    e("s_mov_b64 exec, -1")
    return t


_lbl = [0]


def poll_issue(e, vaddr, s_addr, vdst):
    return e.vm(f"buffer_load_dwordx4 {vr(vdst)}, v{vaddr}, {srd(S_WS)}, s{s_addr} offen sc1")


def poll_check(e, tok, vaddr, s_addr, vdst, slp=None):
    n = _lbl[0]
    _lbl[0] += 1
    e.wait(vm=tok)
    e(f"s_mov_b32 s{S_POLL}, 0")
    e.label(f"L_pc{n}")
    for q in range(4):
        e(f"v_xor_b32 v{vdst + q}, s{S_TAG}, v{vdst + q}")
    e(f"v_or3_b32 v{vdst}, v{vdst}, v{vdst + 1}, v{vdst + 2}")
    e(f"v_or_b32 v{vdst}, v{vdst}, v{vdst + 3}")
    e(f"v_cmp_eq_u32 vcc, 0, v{vdst}")
    e("s_nop 1")
    e("s_cmp_eq_u64 vcc, -1")
    e(f"s_cbranch_scc1 L_pd{n}")
    e(f"s_add_u32 s{S_POLL}, s{S_POLL}, 1")
    e(f"s_cmp_ge_u32 s{S_POLL}, {CFG['POLL_MAX']}")
    e(f"s_cbranch_scc1 L_pd{n}")
    e(f"s_sleep {slp if slp is not None else CFG['SLEEP']}")
    e(f"buffer_load_dwordx4 {vr(vdst)}, v{vaddr}, {srd(S_WS)}, s{s_addr} offen sc1")
    e("s_waitcnt vmcnt(0)")
    e(f"s_branch L_pc{n}")
    e.label(f"L_pd{n}")


def lds_set(e, word_sgpr_or_int, val=1):
    if isinstance(word_sgpr_or_int, int):
        e(f"v_mov_b32 v{TMP[0]}, {L_FL + 4 * word_sgpr_or_int}")
    else:
        e(f"s_lshl_b32 s{T[0]}, {word_sgpr_or_int}, 2")
        e(f"s_add_u32 s{T[0]}, s{T[0]}, {L_FL}")
        e(f"v_mov_b32 v{TMP[0]}, s{T[0]}")
    e(f"v_mov_b32 v{TMP[1]}, {val}")
    e("s_mov_b64 exec, 1")
    t = e.lg(f"ds_write_b32 v{TMP[0]}, v{TMP[1]}")
    e("s_mov_b64 exec, -1")
    return t


def lds_wait4(e, word0):
    n = _lbl[0]
    _lbl[0] += 1
    e(f"v_mov_b32 v{TMP[0]}, {L_FL + 4 * word0}")
    e(f"s_mov_b32 s{S_POLL}, 0")
    e.label(f"L_lw{n}")
    e(f"ds_read_b128 {vr(V_PD)}, v{TMP[0]}")
    e("s_waitcnt lgkmcnt(0)")
    e(f"v_and_b32 v{V_PD}, v{V_PD}, v{V_PD + 1}")
    e(f"v_and_b32 v{V_PD + 2}, v{V_PD + 2}, v{V_PD + 3}")
    e(f"v_and_b32 v{V_PD}, v{V_PD}, v{V_PD + 2}")
    e(f"v_cmp_eq_u32 vcc, 1, v{V_PD}")
    e("s_nop 1")
    e("s_cmp_eq_u64 vcc, -1")
    e(f"s_cbranch_scc1 L_ld{n}")
    e(f"s_add_u32 s{S_POLL}, s{S_POLL}, 1")
    e(f"s_cmp_ge_u32 s{S_POLL}, {CFG['POLL_MAX'] * 8}")
    e(f"s_cbranch_scc1 L_ld{n}")
    e("s_sleep 1")
    e(f"s_branch L_lw{n}")
    e.label(f"L_ld{n}")
    e.wait_all(vm=False, lg=True)


def lds_wait1(e, s_word):
    n = _lbl[0]
    _lbl[0] += 1
    e(f"s_lshl_b32 s{T[0]}, s{s_word}, 2")
    e(f"s_add_u32 s{T[0]}, s{T[0]}, {L_FL}")
    e(f"v_mov_b32 v{TMP[4]}, s{T[0]}")
    e(f"s_mov_b32 s{S_POLL}, 0")
    e.label(f"L_lw{n}")
    e(f"ds_read_b32 v{V_PD}, v{TMP[4]}")
    e("s_waitcnt lgkmcnt(0)")
    e(f"v_cmp_eq_u32 vcc, 1, v{V_PD}")
    e("s_nop 1")
    e("s_cmp_eq_u64 vcc, -1")
    e(f"s_cbranch_scc1 L_ld{n}")
    e(f"s_add_u32 s{S_POLL}, s{S_POLL}, 1")
    e(f"s_cmp_ge_u32 s{S_POLL}, {CFG['POLL_MAX'] * 8}")
    e(f"s_cbranch_scc1 L_ld{n}")
    e(f"s_branch L_lw{n}")
    e.label(f"L_ld{n}")
    e.wait_all(vm=False, lg=True)


def lds_wait1i(e, word, slp=1):
    n = _lbl[0]
    _lbl[0] += 1
    e(f"v_mov_b32 v{TMP[4]}, {L_FL + 4 * word}")
    e(f"s_mov_b32 s{S_POLL}, 0")
    e.label(f"L_lw{n}")
    e(f"ds_read_b32 v{V_PD}, v{TMP[4]}")
    e("s_waitcnt lgkmcnt(0)")
    e(f"v_cmp_eq_u32 vcc, 1, v{V_PD}")
    e("s_nop 1")
    e("s_cmp_eq_u64 vcc, -1")
    e(f"s_cbranch_scc1 L_ld{n}")
    e(f"s_add_u32 s{S_POLL}, s{S_POLL}, 1")
    e(f"s_cmp_ge_u32 s{S_POLL}, {CFG['POLL_MAX'] * 8}")
    e(f"s_cbranch_scc1 L_ld{n}")
    e(f"s_sleep {slp}")
    e(f"s_branch L_lw{n}")
    e.label(f"L_ld{n}")
    e.wait_all(vm=False, lg=True)


def poll_one(e, vaddr, s_addr, word, slp=None):
    n = _lbl[0]
    _lbl[0] += 1
    e(f"s_cmp_lg_u32 s{S_WAVE}, 0")
    e(f"s_cbranch_scc1 L_po{n}")
    e(f"buffer_load_dwordx4 {vr(V_PD)}, v{vaddr}, {srd(S_WS)}, s{s_addr} offen sc1")
    e("s_waitcnt vmcnt(0)")
    poll_check(e, None, vaddr, s_addr, V_PD, slp)
    e(f"v_mov_b32 v{TMP[0]}, {L_FL + 4 * word}")
    e(f"v_mov_b32 v{TMP[1]}, 1")
    e(f"ds_write_b32 v{TMP[0]}, v{TMP[1]}")
    e(f"s_branch L_pe{n}")
    e.label(f"L_po{n}")
    lds_wait1i(e, word)
    e.label(f"L_pe{n}")
    e.wait_all(vm=False, lg=True)


def unpack(e, dst, src, hi):
    if hi:
        e(f"v_and_b32 v{dst}, s{S_MASKHI}, v{src}")
    else:
        e(f"v_lshlrev_b32 v{dst}, 16, v{src}")


def round2(e, a, b, tmp):
    e(f"v_cvt_pk_bf16_f32 v{tmp}, v{a}, v{b}")
    e(f"v_lshlrev_b32 v{a}, 16, v{tmp}")
    e(f"v_and_b32 v{b}, s{S_MASKHI}, v{tmp}")


def spread(gaps, L, lo, hi):
    n = len(L)
    for idx, ins in enumerate(L):
        gaps[lo + idx * (hi - lo) // n].L.append(ins)


def setup(e):
    e("s_cmp_ge_u32 s2, 256")
    e("s_cbranch_scc1 L_end")
    ptrs = [(S_WG, 56), (S_WU, 64), (S_X, 0), (S_K, 8), (S_V, 16), (S_SH, 24), (S_WS, 104), (S_SSM, 32), (S_DD, 40),
            (S_WD, 72), (S_GW, 80), (S_OUT, 88), (S_HST, 104)]
    for r, off in ptrs:
        e(f"s_load_dwordx2 s[{r}:{r + 1}], s[0:1], {off}")
    sizes = {S_X: 0x200000, S_K: 0x200000, S_V: 0x200000, S_SH: 4096, S_SSM: 0x200000, S_WG: 512 * 2752,
             S_WU: 512 * 2752, S_WD: 1376 * 1024, S_GW: 1024, S_OUT: 0x200000, S_WS: WS_SIZE, S_HST: WS_SIZE,
             S_DD: 1024}
    for r, sz in sizes.items():
        e(f"s_mov_b32 s{r + 2}, {sz:#x}")
        e(f"s_mov_b32 s{r + 3}, 0x00020000")
    e(f"v_lshrrev_b32 v{TMP[0]}, 6, v0")
    e(f"v_and_b32 v{V_LANE}, 63, v0")
    e(f"v_readfirstlane_b32 s{T[13]}, v{TMP[0]}")
    e(f"s_mov_b32 s{S_U}, s2")
    e(f"s_and_b32 s{T[0]}, s2, 7")
    e(f"s_lshr_b32 s{T[1]}, s2, 3")
    e(f"s_and_b32 s{T[2]}, s{T[1]}, 7")
    e(f"s_lshr_b32 s{T[3]}, s{T[1]}, 3")
    e(f"s_and_b32 s{T[4]}, s{T[0]}, 1")
    e(f"s_lshr_b32 s{T[5]}, s{T[0]}, 1")
    e(f"s_lshl_b32 s{S_GI}, s{T[4]}, 3")
    e(f"s_add_u32 s{S_GI}, s{S_GI}, s{T[2]}")
    e(f"s_lshl_b32 s{S_GJ}, s{T[5]}, 2")
    e(f"s_add_u32 s{S_GJ}, s{S_GJ}, s{T[3]}")
    e(f"s_lshl_b32 s{S_I2}, s{T[5]}, 3")
    e(f"s_add_u32 s{S_I2}, s{S_I2}, s{T[2]}")
    e(f"s_lshl_b32 s{S_N2}, s{T[4]}, 2")
    e(f"s_add_u32 s{S_N2}, s{S_N2}, s{T[3]}")
    e(f"s_and_b32 s{S_WAVE}, s{T[13]}, 3")
    e(f"s_mov_b32 s{S_MASKHI}, 0xffff0000")
    e(f"v_lshlrev_b32 v{V_L16}, 4, v{V_LANE}")
    if CFG["STAMPS"]:
        e(f"s_lshl_b32 s{S_STI}, s2, 3")
        e(f"s_add_u32 s{S_STI}, s{S_STI}, s{T[13]}")
        e(f"s_lshl_b32 s{S_STI}, s{S_STI}, 8")
        e(f"s_add_u32 s{S_STI}, s{S_STI}, {WS_STAMP:#x}")
    e(f"s_lshl_b32 s{S_XSOFF}, s{S_GI}, 17")
    e(f"s_lshl_b32 s{T[0]}, s{S_WAVE}, 15")
    e(f"s_add_u32 s{S_XSOFF}, s{S_XSOFF}, s{T[0]}")
    e(f"s_lshr_b32 s{T[0]}, s{S_WAVE}, 1")
    e(f"s_lshl_b32 s{S_CH}, s{S_U}, 1")
    e(f"s_add_u32 s{S_CH}, s{S_CH}, s{T[0]}")
    e(f"s_cmp_ge_u32 s{T[13]}, 4")
    e("s_cbranch_scc1 L_loader")


def misc_loads(e, need_d):
    e(f"v_mov_b32 v{TMP[0]}, 0")
    e(f"s_mov_b32 s{T[0]}, {FL_EPOCH:#x}")
    toks = [e.vm(f"buffer_load_dword v{V_EPO}, v{TMP[0]}, {srd(S_WS)}, s{T[0]} offen sc1")]
    if need_d:
        e(f"s_lshl_b32 s{T[1]}, s{S_U}, 2")
        toks.append(e.vm(f"buffer_load_dword v{V_H01}, v{TMP[0]}, {srd(S_DD)}, s{T[1]} offen"))
    return toks


def misc_use(e, toks, need_d):
    e.wait(vm=toks)
    e(f"v_readfirstlane_b32 s{S_TAG}, v{V_EPO}")
    if need_d:
        e(f"v_readfirstlane_b32 s{T[0]}, v{V_H01}")
    e("s_nop 3")
    e(f"s_add_u32 s{S_TAG}, s{S_TAG}, {TAGK:#x}")
    if need_d:
        e(f"s_lshl_b32 s{T[2]}, s{T[0]}, 16")
        e(f"s_and_b32 s{T[3]}, s{T[0]}, 0xffff0000")
        e(f"s_cmp_lt_u32 s{S_WAVE}, 2")
        e(f"s_cselect_b32 s{S_DF}, s{T[2]}, s{T[3]}")


def out_addr(e):
    a, b = TMP[0], TMP[1]
    e(f"v_lshrrev_b32 v{a}, 3, v0")
    e(f"v_and_b32 v{b}, 7, v0")
    e(f"v_lshlrev_b32 v{b}, 4, v{b}")
    e(f"v_lshl_add_u32 v{a}, v{a}, 10, v{b}")
    e(f"s_lshl_b32 s{T[0]}, s{S_I2}, 16")
    e(f"s_lshl_b32 s{T[1]}, s{S_N2}, 7")
    e(f"s_add_u32 s{T[0]}, s{T[0]}, s{T[1]}")
    e(f"v_add_u32 v{V_OUTO}, s{T[0]}, v{a}")


A_PK, A_PV = 56, 76
Q_RAW, Q_SH, Q_KC, Q_VV, Q_S4, Q_P, Q_W, Q_SA = 128, 136, 140, 145, 147, 151, 156, 157


def prep_a(e):
    a, b = TMP[0], TMP[1]
    AD = 128
    e(f"v_and_b32 v{a}, 7, v0")
    e(f"v_lshrrev_b32 v{b}, 3, v0")
    e(f"v_lshlrev_b32 v{a}, 4, v{a}")
    e(f"v_lshl_add_u32 v{a}, v{b}, 11, v{a}")
    e(f"s_lshl_b32 s{T[0]}, s{S_I2}, 16")
    e(f"s_lshl_b32 s{T[1]}, s{S_N2}, 7")
    e(f"s_add_u32 s{T[0]}, s{T[0]}, s{T[1]}")
    e(f"s_sub_u32 s{T[0]}, s{T[0]}, 3072")
    e(f"v_add_u32 v{AD}, s{T[0]}, v{a}")
    for m in range(1, 5):
        e(f"v_add_u32 v{AD + m}, {1024 * m}, v{AD}")
    c_addr(e)
    w = Q_W
    e(f"v_lshrrev_b32 v{b}, 3, v0")
    e(f"v_sub_u32 v{b}, 31, v{b}")
    e(f"v_lshrrev_b32 v{w}, 2, v{b}")
    e(f"v_and_b32 v{TMP[3]}, 7, v0")
    e(f"v_xor_b32 v{w}, v{w}, v{TMP[3]}")
    e(f"v_lshlrev_b32 v{w}, 4, v{w}")
    e(f"v_and_b32 v{b}, 3, v{b}")
    e(f"v_lshl_add_u32 v{w}, v{b}, 2, v{w}")
    e(f"v_lshl_add_u32 v{w}, v{TMP[3]}, 10, v{w}")
    e(f"v_add_u32 v{w}, {L_PT}, v{w}")
    e(f"v_lshlrev_b32 v{Q_SA}, 6, v{TMP[3]}")
    e(f"v_add_u32 v{Q_SA}, {L_SH}, v{Q_SA}")
    e.wait_all(vm=False, lg=True)
    stamp(e, 0)
    if CFG["PDELAY"]:
        e(f"s_sleep {CFG['PDELAY']}")
    toks = []
    for m in range(5):
        toks.append(e.vm(f"buffer_load_dwordx4 {ar(A_PK + 4 * m)}, v{AD + m}, {srd(S_K)}, 0 offen"))
    for m in range(2):
        toks.append(e.vm(f"buffer_load_dwordx4 {ar(A_PV + 4 * m)}, v{AD + 3 + m}, {srd(S_V)}, 0 offen"))
    e(f"s_mov_b32 m0, {L_SH}")
    e(f"s_lshl_b32 s{T[1]}, s{S_N2}, 9")
    toks.append(e.vm(f"buffer_load_dwordx4 v{V_L16}, {srd(S_SH)}, s{T[1]} offen lds"))
    mt = misc_loads(e, False)
    return toks, mt


def prep_compute(toks):
    e = Em()
    e.wait(vm=toks)
    wr = []
    for q in range(4):
        sh = e.lg(f"ds_read_b128 {vr(Q_SH)}, v{Q_SA} offset:{16 * q}")
        for m in range(5):
            e(f"v_accvgpr_read_b32 v{Q_RAW + m}, a{A_PK + 4 * m + q}")
        for m in range(2):
            e(f"v_accvgpr_read_b32 v{Q_RAW + 5 + m}, a{A_PV + 4 * m + q}")
        e.wait(lg=sh)
        for hi in range(2):
            c = 2 * q + hi
            kc = [Q_KC + m for m in range(5)]
            vv = [Q_VV, Q_VV + 1]
            s4 = [Q_S4 + j for j in range(4)]
            p0, p1, a0, a1, tp = Q_P, Q_P + 1, Q_P + 2, Q_P + 3, Q_P + 4
            for m in range(5):
                unpack(e, kc[m], Q_RAW + m, hi)
            for m in range(2):
                unpack(e, vv[m], Q_RAW + 5 + m, hi)
            for j in range(4):
                unpack(e, s4[j], Q_SH + 2 * hi + (j >> 1), j & 1)
            e(f"v_mul_f32 v{a0}, v{kc[0]}, v{s4[3]}")
            e(f"v_mul_f32 v{a1}, v{kc[1]}, v{s4[3]}")
            if CFG["EMU_PREP"]:
                round2(e, a0, a1, tp)
                for tt in range(1, 4):
                    e(f"v_mul_f32 v{p0}, v{kc[tt]}, v{s4[3 - tt]}")
                    e(f"v_mul_f32 v{p1}, v{kc[tt + 1]}, v{s4[3 - tt]}")
                    round2(e, p0, p1, tp)
                    e(f"v_add_f32 v{a0}, v{a0}, v{p0}")
                    e(f"v_add_f32 v{a1}, v{a1}, v{p1}")
                    round2(e, a0, a1, tp)
            else:
                for tt in range(1, 4):
                    e(f"v_fmac_f32 v{a0}, v{kc[tt]}, v{s4[3 - tt]}")
                    e(f"v_fmac_f32 v{a1}, v{kc[tt + 1]}, v{s4[3 - tt]}")
            e(f"v_mul_f32 v{a0}, v{a0}, v{vv[0]}")
            e(f"v_mul_f32 v{a1}, v{a1}, v{vv[1]}")
            e(f"v_cvt_pk_bf16_f32 v{p0}, v{a1}, v{a0}")
            wr.append(e.lg(f"ds_write_b32 v{Q_W}, v{p0} offset:{c * 128}"))
    return e, wr


def prep_rb_addr(e):
    a, b = TMP[0], TMP[1]
    RA, RB, RG = V_ET + 8, V_ET + 9, V_ET + 10
    e(f"v_lshrrev_b32 v{b}, 3, v0")
    e(f"v_lshrrev_b32 v{a}, 6, v0")
    e(f"v_and_b32 v{RG}, 7, v0")
    e(f"v_xor_b32 v{a}, v{a}, v{RG}")
    e(f"v_lshlrev_b32 v{a}, 4, v{a}")
    e(f"v_lshl_add_u32 v{a}, v{b}, 7, v{a}")
    e(f"v_xor_b32 v{RB}, 64, v{a}")
    e(f"v_add_u32 v{RA}, {L_PT}, v{a}")
    e(f"v_add_u32 v{RB}, {L_PT}, v{RB}")
    e(f"v_lshlrev_b32 v{RG}, 4, v{RG}")
    e(f"v_lshl_add_u32 v{RG}, v{b}, 12, v{RG}")


def prep_readback(e):
    RA, RB = V_ET + 8, V_ET + 9
    return [e.lg(f"ds_read_b128 {vr(V_ET)}, v{RA}"),
            e.lg(f"ds_read_b128 {vr(V_ET + 4)}, v{RB} offset:4096")]


def prep_store(e, rd):
    RG = V_ET + 10
    e(f"s_lshl_b32 s{T[0]}, s{S_N2}, 18")
    e(f"s_lshl_b32 s{T[1]}, s{S_I2}, 7")
    e(f"s_sub_u32 s{T[0]}, s{T[0]}, s{T[1]}")
    e(f"s_add_u32 s{T[0]}, s{T[0]}, {WS_KV + 3968:#x}")
    e(f"s_add_u32 s{T[1]}, s{T[0]}, {32 * 4096:#x}")
    e.wait(lg=rd)
    return [e.vm(f"buffer_store_dwordx4 {vr(V_ET)}, v{RG}, {srd(S_WS)}, s{T[0]} offen sc1"),
            e.vm(f"buffer_store_dwordx4 {vr(V_ET + 4)}, v{RG}, {srd(S_WS)}, s{T[1]} offen sc1")]


def prep_flag(e, toks):
    e.wait(vm=toks)
    e(f"s_lshl_b32 s{T[0]}, s{S_N2}, 9")
    e(f"s_lshl_b32 s{T[1]}, s{S_I2}, 4")
    e(f"s_add_u32 s{T[0]}, s{T[0]}, s{T[1]}")
    e(f"s_lshl_b32 s{T[1]}, s{S_WAVE}, 2")
    e(f"s_add_u32 s{T[0]}, s{T[0]}, s{T[1]}")
    e(f"s_add_u32 s{T[0]}, s{T[0]}, {FL_P:#x}")
    return flag_store(e, T[0])


def c_addr(e):
    a, b, c = TMP[0], TMP[1], TMP[2]
    e(f"v_lshrrev_b32 v{a}, 5, v{V_LANE}")
    e(f"v_lshlrev_b32 v{a}, 3, v{a}")
    e(f"v_bfe_u32 v{b}, v{V_LANE}, 2, 2")
    e(f"v_add_u32 v{a}, v{a}, v{b}")
    e(f"v_mul_u32_u24 v{a}, 192, v{a}")
    e(f"v_bfe_u32 v{b}, v{V_LANE}, 4, 1")
    e(f"v_lshl_add_u32 v{a}, v{b}, 5, v{a}")
    e(f"v_and_b32 v{b}, 3, v{V_LANE}")
    e(f"v_lshl_add_u32 v{a}, v{b}, 3, v{a}")
    for s in range(3):
        e(f"v_add_u32 v{V_WTR + s}, {PHYS[s]}, v{a}")
    e(f"v_bfe_u32 v{a}, v{V_LANE}, 3, 2")
    e(f"v_mul_u32_u24 v{a}, 1040, v{a}")
    e(f"v_and_b32 v{b}, 7, v{V_LANE}")
    e(f"v_lshl_add_u32 v{a}, v{b}, 7, v{a}")
    e(f"v_lshrrev_b32 v{b}, 5, v{V_LANE}")
    e(f"v_lshl_add_u32 v{a}, v{b}, 4, v{a}")
    e(f"s_mul_i32 s{T[0]}, s{S_WAVE}, 4160")
    e(f"v_add_u32 v{a}, s{T[0]}, v{a}")
    for s in range(3):
        e(f"v_add_u32 v{V_XRD + s}, {PHYS[s] + 24576}, v{a}")
    c0 = -2.0 * math.sqrt(2.0 / math.pi) * math.log2(math.e)
    e(f"v_mov_b32 v{V_C0}, {f32hex(c0)}")
    e(f"s_mov_b32 s{S_C1}, {f32hex(c0 * 0.044715)}")
    e(f"s_lshl_b32 s{T[0]}, s{S_GI}, 2")
    e(f"s_add_u32 s{T[0]}, s{T[0]}, s{S_WAVE}")
    e(f"s_mul_i32 s{T[1]}, s{T[0]}, 43")
    e(f"s_mul_i32 s{T[2]}, s{S_GJ}, 3")
    e(f"s_add_u32 s{T[1]}, s{T[1]}, s{T[2]}")
    e(f"s_lshl_b32 s{S_HOFF}, s{T[1]}, 11")
    e(f"s_lshr_b32 s{T[1]}, s{T[0]}, 1")
    e(f"s_lshl_b32 s{T[1]}, s{T[1]}, 9")
    e(f"s_and_b32 s{T[0]}, s{T[0]}, 1")
    e(f"s_lshl_b32 s{T[2]}, s{S_GJ}, 1")
    e(f"s_add_u32 s{T[0]}, s{T[0]}, s{T[2]}")
    e(f"s_lshl_b32 s{T[0]}, s{T[0]}, 2")
    e(f"s_add_u32 s{T[0]}, s{T[0]}, s{T[1]}")
    e(f"s_add_u32 s{S_FHOFF}, s{T[0]}, {FL_H:#x}")
    wd_addr(e, 0)
    out_addr(e)


def conv_addr(e):
    a, b, c = TMP[0], TMP[1], TMP[2]
    e(f"s_lshr_b32 s{T[0]}, s{S_WAVE}, 1")
    e(f"s_and_b32 s{T[1]}, s{S_WAVE}, 1")
    e(f"v_and_b32 v{a}, 15, v{V_LANE}")
    e(f"v_lshrrev_b32 v{b}, 4, v{V_LANE}")
    e(f"v_lshlrev_b32 v{c}, 2, v{b}")
    e(f"v_sub_u32 v{c}, v{c}, v{a}")
    e(f"v_add_u32 v{c}, 63, v{c}")
    e(f"v_mul_u32_u24 v{c}, 80, v{c}")
    e(f"s_mul_i32 s{T[2]}, s{T[0]}, 6400")
    e(f"s_mul_i32 s{T[3]}, s{T[1]}, 160")
    e(f"s_add_u32 s{T[2]}, s{T[2]}, s{T[3]}")
    e(f"s_add_u32 s{T[2]}, s{T[2]}, {L_UR - 3840}")
    e(f"v_add_u32 v{V_F}, s{T[2]}, v{c}")
    e(f"v_add_u32 v{a}, 1, v{a}")
    e(f"v_and_b32 v{V_SHF}, 1, v{a}")
    e(f"v_lshlrev_b32 v{V_SHF}, 4, v{V_SHF}")
    e(f"v_bfe_u32 v{c}, v{a}, 1, 1")
    e(f"v_mul_u32_u24 v{c}, 6208, v{c}")
    e(f"v_and_b32 v{a}, 28, v{a}")
    e(f"v_lshl_add_u32 v{c}, v{a}, 1, v{c}")
    e(f"v_mul_u32_u24 v{b}, 384, v{b}")
    e(f"v_add_u32 v{c}, v{c}, v{b}")
    e(f"s_mul_i32 s{T[2]}, s{T[0]}, 12416")
    e(f"s_lshl_b32 s{T[3]}, s{T[1]}, 7")
    e(f"s_add_u32 s{T[2]}, s{T[2]}, s{T[3]}")
    e(f"s_add_u32 s{T[2]}, s{T[2]}, {L_HC}")
    e(f"v_add_u32 v{V_H}, s{T[2]}, v{c}")


def wd_addr(e, role):
    a, b, c = TMP[0], TMP[1], TMP[2]
    e(f"v_lshrrev_b32 v{a}, 3, v{V_LANE}")
    e(f"v_bfe_u32 v{b}, v{V_LANE}, 4, 1")
    e(f"v_lshlrev_b32 v{b}, 2, v{b}")
    e(f"v_and_b32 v{c}, 7, v{V_LANE}")
    e(f"v_xor_b32 v{c}, v{c}, v{b}")
    e(f"v_lshlrev_b32 v{c}, 4, v{c}")
    e(f"v_lshl_add_u32 v{c}, v{a}, 10, v{c}")
    e(f"s_lshl_b32 s{T[0]}, s{S_N2}, 7")
    e(f"v_add_u32 v{V_WDDMA}, s{T[0]}, v{c}")
    for m in range(1, 4):
        e(f"v_add_u32 v{V_WDDMA + m}, {m * (8192 - 1024)}, v{V_WDDMA}")
    e(f"s_lshl_b32 s{S_WDBASE}, s{S_WAVE}, 12")
    e(f"s_mov_b32 s{T[1]}, s{S_WDBASE}")
    e(f"v_lshrrev_b32 v{a}, 5, v{V_LANE}")
    e(f"v_lshlrev_b32 v{a}, 9, v{a}")
    e(f"v_bfe_u32 v{b}, v{V_LANE}, 2, 2")
    e(f"v_lshl_add_u32 v{a}, v{b}, 7, v{a}")
    e(f"v_bfe_u32 v{b}, v{V_LANE}, 4, 1")
    e(f"v_lshl_add_u32 v{a}, v{b}, 5, v{a}")
    e(f"v_and_b32 v{b}, 3, v{V_LANE}")
    e(f"v_lshl_add_u32 v{a}, v{b}, 3, v{a}")
    e(f"v_bfe_u32 v{b}, v{V_LANE}, 3, 1")
    e(f"v_lshl_add_u32 v{a}, v{b}, 6, v{a}")
    e(f"v_add_u32 v{V_WDTR}, s{T[1]}, v{a}")
    e(f"v_xor_b32 v{b}, 64, v{a}")
    e(f"v_add_u32 v{V_WDTR + 1}, s{T[1]}, v{b}")
    e(f"s_mul_i32 s{T[0]}, s{S_WAVE}, {3 * 2048}")
    for m in range(11):
        if m <= 2:
            e(f"s_add_u32 s{S_FT + m}, s{T[0]}, {12 * m * 2048}")
        elif m == 3:
            e(f"s_add_u32 s{S_FT + m}, s{T[0]}, {36 * 2048}")
            e(f"s_cmp_eq_u32 s{S_WAVE}, 3")
            e(f"s_cselect_b32 s{S_FT + m}, {1 * 2048}, s{S_FT + m}")
        elif m <= 6:
            e(f"s_add_u32 s{S_FT + m}, s{T[0]}, {(3 * (4 * m - 15) + 1) * 2048}")
        elif m == 7:
            e(f"s_add_u32 s{S_FT + m}, s{T[0]}, {(-1 * 2048) & 0xffffffff:#x}")
            e(f"s_cmp_eq_u32 s{S_WAVE}, 0")
            e(f"s_cselect_b32 s{S_FT + m}, {40 * 2048}, s{S_FT + m}")
        else:
            e(f"s_add_u32 s{S_FT + m}, s{T[0]}, {(3 * (4 * m - 29) + 2) * 2048}")
    e(f"s_mul_i32 s{S_XM0 if role == 0 else S_HOFF}, s{S_I2}, {86 * 2048}")


def w_tr(e, T_, idx):
    ft, mat = idx >> 1, idx & 1
    n, ts = T_ // 4, T_ % 4
    base = mat * 12288 + ts * 3072 + ft * 64
    vb = V_WTR + n % 3
    d = A_WF + 24 * (T_ % 2) + 4 * idx
    return [e.lg(f"ds_read_b64_tr_b16 {ar(d, 2)}, v{vb} offset:{base}"),
            e.lg(f"ds_read_b64_tr_b16 {ar(d + 2, 2)}, v{vb} offset:{base + 768}")]


def x_fr(e, T_):
    n, ts = T_ // 4, T_ % 4
    return e.lg(f"ds_read_b128 {ar(A_XF + 4 * (T_ % 2))}, v{V_XRD + n % 3} offset:{ts * 32}")


def g1_epilogue(e, ftl, mids=()):
    A = ACC_OF[ftl]
    e(f"s_mul_i32 s{T[6]}, s{S_GJ}, 3")
    e(f"s_cmp_lt_u32 s{T[6]}, {43 - ftl}")
    e(f"s_cselect_b32 s{S_HST + 2}, {WS_SIZE:#x}, 0")
    e(f"s_add_u32 s{T[7]}, s{S_HOFF}, {ftl * 2048}")
    toks = []
    for half in range(2):
        O = V_ET + 8 + 4 * half
        for pr in range(4):
            r = 8 * half + 2 * pr
            B = V_ET + 4 * (pr & 1)
            g0, g1, u0, u1 = A + r, A + r + 1, A + 16 + r, A + 16 + r + 1
            t0, t1, tp, tq = B, B + 1, B + 2, B + 3
            if CFG["EMU_G1"]:
                round2(e, g0, g1, tp)
            e(f"v_mul_f32 v{t0}, v{g0}, v{g0}")
            e(f"v_mul_f32 v{t1}, v{g1}, v{g1}")
            e(f"v_fma_f32 v{t0}, v{t0}, s{S_C1}, v{V_C0}")
            e(f"v_fma_f32 v{t1}, v{t1}, s{S_C1}, v{V_C0}")
            e(f"v_mul_f32 v{t0}, v{t0}, v{g0}")
            e(f"v_mul_f32 v{t1}, v{t1}, v{g1}")
            e(f"v_exp_f32 v{t0}, v{t0}")
            e(f"v_exp_f32 v{t1}, v{t1}")
            if CFG["EMU_G1"]:
                e(f"v_cvt_pk_bf16_f32 v{tq}, v{u0}, v{u1}")
            else:
                e(f"v_mul_f32 v{u0}, v{u0}, v{g0}")
            e(f"v_add_f32 v{t0}, 1.0, v{t0}")
            e(f"v_add_f32 v{t1}, 1.0, v{t1}")
            e(f"v_rcp_f32 v{t0}, v{t0}")
            e(f"v_rcp_f32 v{t1}, v{t1}")
            if CFG["EMU_G1"]:
                e(f"v_lshlrev_b32 v{u0}, 16, v{tq}")
                e(f"v_mul_f32 v{t0}, v{t0}, v{g0}")
                e(f"v_mul_f32 v{t1}, v{t1}, v{g1}")
                e(f"v_and_b32 v{u1}, s{S_MASKHI}, v{tq}")
                round2(e, t0, t1, tp)
            else:
                e(f"v_mul_f32 v{u1}, v{u1}, v{g1}")
            e(f"v_mul_f32 v{t0}, v{t0}, v{u0}")
            e(f"v_mul_f32 v{t1}, v{t1}, v{u1}")
            e(f"v_cvt_pk_bf16_f32 v{O + pr}, v{t0}, v{t1}")
        toks.append(e.vm(
            f"buffer_store_dwordx4 {vr(O)}, v{V_L16}, {srd(S_HST)}, s{T[7]} offen offset:{half * 1024} sc1"))
        if half < len(mids) and mids[half] is not None:
            mids[half](e)
    return toks


def h_flag(e, ftl, toks):
    e.wait(vm=toks)
    e(f"s_add_u32 s{T[0]}, s{S_FHOFF}, {ftl * 128}")
    return flag_store(e, T[0])


def g_path(e):
    GWR, GWU, G, TB = 128, 132, 140, 144
    gw = e.vm(f"buffer_load_dwordx4 {vr(GWR)}, v{V_L16}, {srd(S_GW)}, 0 offen")
    e(f"v_mov_b32 v{G}, 0")
    X0 = 32
    for half in range(2):
        xt = []
        for r in range(16):
            e(f"s_add_u32 s{T[1]}, s{S_XSOFF}, {(16 * half + r) * 1024}")
            xt.append(e.vm(f"buffer_load_dwordx4 {vr(X0 + 4 * r)}, v{V_L16}, {srd(S_X)}, s{T[1]} offen"))
        if half == 0:
            e.wait(vm=gw)
            for q in range(8):
                unpack(e, GWU + q, GWR + (q >> 1), q & 1)
        for r4 in range(0, 16, 4):
            e.wait(vm=xt[r4 + 3])
            accs = []
            for r in range(r4, r4 + 4):
                X = X0 + 4 * r
                tb = TB + 4 * (r - r4)
                acc = tb + 3
                for q in range(4):
                    e(f"v_lshlrev_b32 v{tb}, 16, v{X + q}")
                    e(f"v_and_b32 v{tb + 1}, s{S_MASKHI}, v{X + q}")
                    e(f"v_mul_f32 v{tb}, v{tb}, v{GWU + 2 * q}")
                    e(f"v_mul_f32 v{tb + 1}, v{tb + 1}, v{GWU + 1 + 2 * q}")
                    e(f"v_cvt_pk_bf16_f32 v{tb + 2}, v{tb}, v{tb + 1}")
                    e(f"v_lshlrev_b32 v{tb}, 16, v{tb + 2}")
                    e(f"v_and_b32 v{tb + 1}, s{S_MASKHI}, v{tb + 2}")
                    if q == 0:
                        e(f"v_add_f32 v{acc}, v{tb}, v{tb + 1}")
                    else:
                        e(f"v_add_f32 v{tb}, v{tb}, v{tb + 1}")
                        e(f"v_add_f32 v{acc}, v{acc}, v{tb}")
                accs.append(acc)
            for mod in ("row_shr:1 row_mask:0xf bank_mask:0xf bound_ctrl:0",
                        "row_shr:2 row_mask:0xf bank_mask:0xf bound_ctrl:0",
                        "row_shr:4 row_mask:0xf bank_mask:0xf bound_ctrl:0",
                        "row_shr:8 row_mask:0xf bank_mask:0xf bound_ctrl:0",
                        "row_bcast:15 row_mask:0xa bank_mask:0xf",
                        "row_bcast:31 row_mask:0xc bank_mask:0xf"):
                for acc in accs:
                    e(f"v_add_f32_dpp v{acc}, v{acc}, v{acc} {mod}")
            for i, acc in enumerate(accs):
                e(f"v_readlane_b32 s{T[2 + i]}, v{acc}, 63")
            for i, acc in enumerate(accs):
                e(f"v_writelane_b32 v{G}, s{T[2 + i]}, {16 * half + r4 + i}")
    a, b, c = TB, TB + 1, TB + 2
    e(f"v_cvt_pk_bf16_f32 v{a}, v{G}, v{G}")
    e(f"v_lshlrev_b32 v{a}, 16, v{a}")
    e(f"v_mul_f32 v{a}, {f32hex(-math.log2(math.e))}, v{a}")
    e(f"v_exp_f32 v{a}, v{a}")
    e(f"v_add_f32 v{a}, 1.0, v{a}")
    e(f"v_rcp_f32 v{a}, v{a}")
    e(f"v_cvt_pk_bf16_f32 v{a}, v{a}, v{a}")
    e(f"v_lshlrev_b32 v{a}, 16, v{a}")
    e(f"v_sub_f32 v{b}, 1.0, v{a}")
    e(f"v_cvt_pk_bf16_f32 v{a}, v{a}, v{b}")
    e(f"v_lshlrev_b32 v{c}, 2, v{V_LANE}")
    e(f"s_lshl_b32 s{T[0]}, s{S_GI}, 9")
    e(f"s_lshl_b32 s{T[1]}, s{S_WAVE}, 7")
    e(f"s_add_u32 s{T[0]}, s{T[0]}, s{T[1]}")
    e(f"s_add_u32 s{T[0]}, s{T[0]}, {WS_G:#x}")
    e("s_mov_b64 exec, 0xffffffff")
    st = e.vm(f"buffer_store_dword v{a}, v{c}, {srd(S_WS)}, s{T[0]} offen sc1")
    e("s_mov_b64 exec, -1")
    return st


def conv_hraw(e, p, nn):
    d = C_H + 20 * p + 4 * (nn % 5)
    off = p * 1536 + 16 * nn
    return [e.lg(f"ds_read_b64 {vr(d, 2)}, v{V_H} offset:{off}"),
            e.lg(f"ds_read_b64 {vr(d + 2, 2)}, v{V_H} offset:{off + 8}")]


def conv_align(e, p, nn):
    d = C_H + 20 * p + 4 * (nn % 5)
    nx = C_H + 20 * p + 4 * ((nn + 1) % 5)
    for k in range(3):
        e(f"v_alignbit_b32 v{d + k}, v{d + k + 1}, v{d + k}, v{V_SHF}")
    e(f"v_alignbit_b32 v{d + 3}, v{nx}, v{d + 3}, v{V_SHF}")


def conv_f(e, tt, delta):
    d = A_F + 16 * (tt % 2) + 4 * delta
    off = 1280 * (3 - delta) + 80 * (tt >> 2) + 16 * (tt & 3)
    return e.lg(f"ds_read_b128 {ar(d)}, v{V_F} offset:{off}")


def conv_epilogue(e):
    a, b, c, u = TMP[0], TMP[1], TMP[2], TMP[3]
    OA, OB, OC, OU = V_ET, V_ET + 1, V_ET + 2, V_ET + 3
    e(f"s_xor_b32 s{T[2]}, s{S_WAVE}, 1")
    e(f"s_lshl_b32 s{T[8]}, s{S_WAVE}, 12")
    e(f"s_add_u32 s{T[8]}, s{T[8]}, {L_EX}")
    e(f"s_lshl_b32 s{T[1]}, s{T[2]}, 12")
    e(f"s_add_u32 s{T[1]}, s{T[1]}, {L_EX}")
    e(f"v_add_u32 v{OA}, s{T[8]}, v{V_L16}")
    e(f"v_add_u32 v{OB}, s{T[1]}, v{V_L16}")
    e(f"s_and_b32 s{T[3]}, s{S_WAVE}, 1")
    A0, A1 = C_ACC, C_ACC + 16
    e(f"v_and_b32 v{OC}, 15, v{V_LANE}")
    e(f"v_sub_u32 v{OU}, 47, v{OC}")
    e(f"v_mul_u32_u24 v{OU}, 80, v{OU}")
    e(f"v_lshrrev_b32 v{TMP[4]}, 4, v{V_LANE}")
    e(f"v_lshlrev_b32 v{TMP[5]}, 3, v{TMP[4]}")
    e(f"v_sub_u32 v{OU}, v{OU}, v{TMP[5]}")
    e(f"s_lshr_b32 s{T[4]}, s{S_WAVE}, 1")
    e(f"s_mul_i32 s{T[4]}, s{T[4]}, 6400")
    e(f"s_mul_i32 s{T[5]}, s{T[3]}, 2560")
    e(f"s_sub_u32 s{T[4]}, s{T[4]}, s{T[5]}")
    e(f"s_add_u32 s{T[4]}, s{T[4]}, {L_UR + 24}")
    e(f"v_add_u32 v{OU}, s{T[4]}, v{OU}")
    e(f"v_lshlrev_b32 v{OC}, 6, v{OC}")
    e(f"v_add_u32 v{OC}, v{OC}, v{TMP[5]}")
    e(f"v_add_u32 v{OC}, s{T[8]}, v{OC}")
    e(f"s_lshl_b32 s{T[4]}, s{S_CH}, 12")
    e(f"s_lshl_b32 s{T[5]}, s{T[3]}, 11")
    e(f"s_add_u32 s{T[4]}, s{T[4]}, s{T[5]}")
    e(f"s_add_u32 s{T[4]}, s{T[4]}, {WS_Y2:#x}")
    e(f"s_cmp_eq_u32 s{T[3]}, 0")
    e("s_cbranch_scc1 L_cv_noswap")
    for q in range(16):
        e(f"v_swap_b32 v{A0 + q}, v{A1 + q}")
    e.label("L_cv_noswap")
    e("s_nop 7")
    wr = [e.lg(f"ds_write_b128 v{OB}, {vr(A1 + 4 * q)} offset:{q * 1024}") for q in range(4)]
    RX, UU, t = C_H, C_H + 16, C_H + 24
    ur = {}
    for jj in range(2):
        for bb in range(2):
            ur[(jj, bb)] = e.lg(
                f"ds_read_b64 {vr(UU + 4 * jj + 2 * bb, 2)}, v{OU} offset:{(1 - jj) * 1280 + (1 - bb) * 32}")
    e.wait(lg=wr)
    e(f"s_add_u32 s{T[9]}, s{T[2]}, 4")
    lds_set(e, f"s{T[9]}")
    e(f"s_add_u32 s{T[9]}, s{S_WAVE}, 4")
    lds_wait1(e, T[9])
    rd = [e.lg(f"ds_read_b128 {vr(RX + 4 * q)}, v{OA} offset:{q * 1024}") for q in range(4)]
    outs = []
    for q in range(4):
        jj, bb = q >> 1, q & 1
        e.wait(lg=[rd[q], ur[(jj, bb)]])
        A = A0 + 4 * q
        U = UU + 4 * jj + 2 * bb
        for r in range(4):
            e(f"v_add_f32 v{A + r}, v{A + r}, v{RX + 4 * q + r}")
        round2(e, A, A + 1, t + 4)
        round2(e, A + 2, A + 3, t + 5)
        unpack(e, t, U + 1, 1)
        unpack(e, t + 1, U + 1, 0)
        unpack(e, t + 2, U, 1)
        unpack(e, t + 3, U, 0)
        for r in range(4):
            e(f"v_mul_f32 v{t + r}, s{S_DF}, v{t + r}")
        round2(e, t, t + 1, t + 4)
        round2(e, t + 2, t + 3, t + 5)
        for r in range(4):
            e(f"v_add_f32 v{A + r}, v{A + r}, v{t + r}")
        O = A1 + 2 * q
        e(f"v_cvt_pk_bf16_f32 v{O}, v{A}, v{A + 1}")
        e(f"v_cvt_pk_bf16_f32 v{O + 1}, v{A + 2}, v{A + 3}")
        outs.append(O)
    e.wait(lg=rd)
    for q in range(4):
        e.lg(f"ds_write_b64 v{OC}, {vr(outs[q], 2)} offset:{(q >> 1) * 1024 + (q & 1) * 32}")
    r0 = e.lg(f"ds_read_b128 {vr(RX)}, v{OA}")
    r1 = e.lg(f"ds_read_b128 {vr(RX + 4)}, v{OA} offset:1024")
    e.wait(lg=[r0, r1])
    return [e.vm(f"buffer_store_dwordx4 {vr(RX)}, v{V_L16}, {srd(S_WS)}, s{T[4]} offen sc1"),
            e.vm(f"buffer_store_dwordx4 {vr(RX + 4)}, v{V_L16}, {srd(S_WS)}, s{T[4]} offen offset:1024 sc1")]


def y_flag(e, toks):
    e.wait(vm=toks)
    e(f"s_lshl_b32 s{T[0]}, s{S_U}, 4")
    e(f"s_lshl_b32 s{T[1]}, s{S_WAVE}, 2")
    e(f"s_add_u32 s{T[0]}, s{T[0]}, s{T[1]}")
    e(f"s_add_u32 s{T[0]}, s{T[0]}, {FL_Y:#x}")
    return flag_store(e, T[0])


def y_stage(e):
    a, b, c, d = TMP[0], TMP[1], TMP[2], TMP[3]
    YD, YA = 96, 104
    e(f"v_and_b32 v{V_PA}, 31, v{V_LANE}")
    e(f"v_lshlrev_b32 v{V_PA}, 4, v{V_PA}")
    e(f"s_lshl_b32 s{T[13]}, s{S_N2}, 9")
    e(f"s_add_u32 s{T[13]}, s{T[13]}, {FL_Y:#x}")
    e(f"v_lshrrev_b32 v{b}, 3, v0")
    e(f"v_and_b32 v{d}, 7, v0")
    e(f"v_lshlrev_b32 v{a}, 4, v{d}")
    e(f"v_lshl_add_u32 v{YA}, v{b}, 12, v{a}")
    e(f"v_lshrrev_b32 v{c}, 6, v0")
    e(f"v_xor_b32 v{c}, v{c}, v{d}")
    e(f"v_lshlrev_b32 v{c}, 4, v{c}")
    e(f"v_lshl_add_u32 v{c}, v{b}, 7, v{c}")
    e(f"v_xor_b32 v{YA + 2}, 64, v{c}")
    e(f"v_add_u32 v{YA + 1}, {L_YT}, v{c}")
    e(f"v_add_u32 v{YA + 2}, {L_YT}, v{YA + 2}")
    e(f"s_lshl_b32 s{T[2]}, s{S_N2}, 18")
    e(f"s_lshl_b32 s{T[3]}, s{S_I2}, 7")
    e(f"s_add_u32 s{T[2]}, s{T[2]}, s{T[3]}")
    e(f"s_add_u32 s{T[2]}, s{T[2]}, {WS_Y2:#x}")
    e(f"s_add_u32 s{T[3]}, s{T[2]}, {32 * 4096:#x}")
    poll_one(e, V_PA, T[13], 15, 4)
    y0 = e.vm(f"buffer_load_dwordx4 {vr(YD)}, v{YA}, {srd(S_WS)}, s{T[2]} offen sc1")
    y1 = e.vm(f"buffer_load_dwordx4 {vr(YD + 4)}, v{YA}, {srd(S_WS)}, s{T[3]} offen sc1")
    e.wait(vm=[y0, y1])
    e.lg(f"ds_write_b128 v{YA + 1}, {vr(YD)}")
    e.lg(f"ds_write_b128 v{YA + 2}, {vr(YD + 4)} offset:4096")


B_Q, B_G = 140, 144 + 8


def qg_loads(e):
    a = TMP[0]
    e(f"v_lshrrev_b32 v{a}, 3, v0")
    e(f"v_lshlrev_b32 v{a}, 2, v{a}")
    e(f"s_lshl_b32 s{T[0]}, s{S_I2}, 8")
    e(f"s_add_u32 s{T[0]}, s{T[0]}, {WS_G:#x}")
    return [e.vm(f"buffer_load_dwordx4 {vr(BQ)}, v{V_OUTO}, {srd(S_X)}, 0 offen"),
            e.vm(f"buffer_load_dword v{BG}, v{a}, {srd(S_WS)}, s{T[0]} offen sc1")]


BQ, BG = 28, 12


def blend(e, qgt):
    a, b, c, d = TMP[0], TMP[1], TMP[2], TMP[3]
    P, Y = 32, 96
    e(f"v_lshrrev_b32 v{b}, 3, v0")
    e(f"v_and_b32 v{d}, 7, v0")
    e(f"v_mul_u32_u24 v{a}, 272, v{b}")
    e(f"v_lshl_add_u32 v{a}, v{d}, 5, v{a}")
    e(f"v_add_u32 v{TMP[4]}, {L_P2L}, v{a}")
    e(f"v_lshrrev_b32 v{c}, 6, v0")
    e(f"v_xor_b32 v{c}, v{c}, v{d}")
    e(f"v_lshlrev_b32 v{c}, 4, v{c}")
    e(f"v_lshl_add_u32 v{c}, v{d}, 10, v{c}")
    e(f"v_and_b32 v{b}, 7, v{b}")
    e(f"v_lshl_add_u32 v{c}, v{b}, 1, v{c}")
    e(f"v_add_u32 v{c}, {L_YT}, v{c}")
    e.wait_all(vm=False, lg=True)
    for q in range(8):
        e(f"v_mov_b32 v{Y + q}, 0")
    e("s_barrier")
    rd = []
    for wv in range(4):
        for h in range(2):
            rd.append(e.lg(f"ds_read_b128 {vr(P + 8 * wv + 4 * h)}, v{a} offset:{wv * 17408 + h * 16}"))
    for wv in range(4):
        for h in range(2):
            rd.append(e.lg(f"ds_read_b128 {vr(P + 32 + 8 * wv + 4 * h)}, v{TMP[4]} offset:{wv * 17408 + h * 16}"))
    yr = [e.lg(f"ds_read_u16_d16_hi v{Y + cc}, v{c} offset:{cc * 128}") for cc in range(8)]
    e.wait(vm=qgt)
    e(f"v_lshlrev_b32 v104, 16, v{BG}")
    e(f"v_and_b32 v105, s{S_MASKHI}, v{BG}")
    for pr in range(4):
        unpack(e, 112 + 2 * pr, BQ + pr, 0)
        unpack(e, 113 + 2 * pr, BQ + pr, 1)
    for k in range(4):
        e.wait(lg=rd[4 * k:4 * k + 4])
        for r in range(8):
            e(f"v_add_f32 v{P + 16 * k + r}, v{P + 16 * k + r}, v{P + 16 * k + 8 + r}")
    for r in range(8):
        e(f"v_add_f32 v{P + r}, v{P + r}, v{P + 16 + r}")
        e(f"v_add_f32 v{P + 32 + r}, v{P + 32 + r}, v{P + 48 + r}")
    for r in range(8):
        e(f"v_add_f32 v{P + r}, v{P + r}, v{P + 32 + r}")
    e.wait(lg=yr)
    for pr in range(4):
        b0, b1 = P + 2 * pr, P + 2 * pr + 1
        q0, q1, tp, tq = 112 + 2 * pr, 113 + 2 * pr, 106 + 2 * (pr & 1), 107 + 2 * (pr & 1)
        round2(e, b0, b1, tp)
        e(f"v_mul_f32 v{q0}, v{q0}, v{Y + 2 * pr}")
        e(f"v_mul_f32 v{q1}, v{q1}, v{Y + 2 * pr + 1}")
        e(f"v_mul_f32 v{b0}, v{b0}, v105")
        e(f"v_mul_f32 v{b1}, v{b1}, v105")
        round2(e, q0, q1, tq)
        e(f"v_mul_f32 v{q0}, v{q0}, v104")
        e(f"v_mul_f32 v{q1}, v{q1}, v104")
        round2(e, b0, b1, tp)
        round2(e, q0, q1, tq)
        e(f"v_add_f32 v{b0}, v{b0}, v{q0}")
        e(f"v_add_f32 v{b1}, v{b1}, v{q1}")
        e(f"v_cvt_pk_bf16_f32 v{P + 16 + pr}, v{b0}, v{b1}")
    e.vm(f"buffer_store_dwordx4 {vr(P + 16)}, v{V_OUTO}, {srd(S_OUT)}, 0 offen")


def c_body():
    e = Em()
    if CFG["CPRIO"]:
        e(f"s_setprio {CFG['CPRIO']}")
    ptoks, mt = prep_a(e)
    stamp(e, 1)
    e(f"s_cmp_eq_u32 s{S_GJ}, 15")
    e("s_cbranch_scc1 L_c_g")
    e("s_barrier")
    NK = 32
    gaps = [Em() for _ in range(6 * NK)]
    trtok, xf = {}, {}
    xf[0] = x_fr(e, 0)
    for idx in range(6):
        trtok[(0, idx)] = w_tr(e, 0, idx)
    stamp(e, 2)
    pc, pwr = prep_compute(ptoks)
    PB = CFG["PB"]
    spread(gaps, pc.L, 6 * CFG["PC0"], 6 * PB - 2)
    prep_rb_addr(gaps[6 * PB])
    prd = prep_readback(gaps[6 * PB + 1])
    misc_use(gaps[6 * PB + 3], mt, False)
    pst = prep_store(gaps[6 * PB + 5], prd)
    prep_flag(gaps[6 * (PB + 7) + 2], pst)
    for T_ in range(1, NK):
        xf[T_] = x_fr(gaps[6 * (T_ - 1)], T_)
        for idx in range(6):
            trtok[(T_, idx)] = w_tr(gaps[6 * (T_ - 1) + idx], T_, idx)
    for T_ in range(NK):
        if T_ in (8, 16, 24):
            stamp(e, 2 + T_ // 8)
        last = (T_ % 4 == 3) and T_ < NK - 1
        if last:
            e.wait(lg=[t for idx in range(6) for t in trtok[(T_, idx)]] + [xf[T_]] + (pwr if T_ == PB else []))
            e("s_barrier")
        else:
            e.wait(lg=trtok[(T_, 0)] + trtok[(T_, 1)] + [xf[T_]])
        for idx in range(6):
            ft, mat = idx >> 1, idx & 1
            A = ACC_OF[ft] + 16 * mat
            if idx in (2, 4):
                e.wait(lg=trtok[(T_, idx)] + trtok[(T_, idx + 1)])
            c = "0" if T_ == 0 else vr(A, 16)
            e(f"v_mfma_f32_32x32x16_bf16 {vr(A, 16)}, {ar(A_WF + 24 * (T_ % 2) + 4 * idx)}, "
              f"{ar(A_XF + 4 * (T_ % 2))}, {c}")
            e.extend(gaps[6 * T_ + idx])
    e("s_branch L_c_join")
    e.label("L_c_g")
    ge = Em()
    ge.wait_all()
    gpc, gwr = prep_compute([])
    ge.extend(gpc)
    misc_use(ge, [], False)
    prep_rb_addr(ge)
    ge.wait_all()
    ge("s_barrier")
    gps = prep_store(ge, prep_readback(ge))
    g_path(ge)
    prep_flag(ge, gps)
    ge.wait_all()
    e.L.append(("SUB", ge))
    e.label("L_c_join")
    stamp(e, 6)
    e(f"s_add_u32 s{T[9]}, s{S_WAVE}, 8")
    lds_set(e, f"s{T[9]}")
    ht, wtr, wdt, hl = {}, {}, {}, {}
    ht[0] = g1_epilogue(e, 0)
    ht[1] = g1_epilogue(e, 1, mids=(lambda em: h_flag(em, 0, ht[0]),))
    stamp(e, 7)

    def mid2(em):
        h_flag(em, 1, ht[1])
    ht[2] = g1_epilogue(e, 2, mids=(mid2,))
    stamp(e, 8)
    e(f"s_add_u32 s{T[9]}, s{S_WAVE}, 24")
    lds_wait1(e, T[9])
    for m in range(5):
        wtr[m] = wd_tr(e, m, CW_SET[m])
    h_poll(e, 0)
    stamp(e, 9)
    for m in range(3):
        hl[m] = h_loads(e, m, CH_SET[m], S_XM0)
    h_flag(e, 2, ht[2])
    for n in (5, 6):
        wdt[n] = wd_dma(e, n, n - 5)
    stamp(e, 10)
    h_poll(e, 1)
    for m in range(3, 5):
        hl[m] = h_loads(e, m, CH_SET[m], S_XM0)
    stamp(e, 11)
    for m in range(7):
        g2_slot(e, m == 0, CW_SET[m % 5], CH_SET[m % 5], hl[m], wtr[m], "a", 0)
        n = m + 5
        if n < 7:
            hl[n] = h_loads(e, n, CH_SET[n % 5], S_XM0)
            e.wait(vm=wdt[n])
            wtr[n] = wd_tr(e, n % 5, CW_SET[n % 5])
        if m == 2:
            e.wait(lg=wtr[6])
            e(f"s_add_u32 s{T[9]}, s{S_WAVE}, 20")
            lds_set(e, f"s{T[9]}")
    stamp(e, 12)
    qgt = qg_loads(e)
    lds_wait4(e, 20)
    e(f"s_mul_i32 s{T[9]}, s{S_WAVE}, 17408")
    partials(e, f"s{T[9]}", "a", 0)
    lds_wait4(e, 28)
    stamp(e, 13)
    y_stage(e)
    stamp(e, 14)
    blend(e, qgt)
    stamp(e, 15)
    e("s_branch L_fin")
    return e


def l_addr(e):
    a, b, c = TMP[0], TMP[1], TMP[2]
    e(f"s_mov_b32 s{T[0]}, 0x5556")
    for i in range(3):
        e(f"v_add_u32 v{a}, {64 * i}, v{V_LANE}")
        e(f"v_mul_u32_u24 v{b}, s{T[0]}, v{a}")
        e(f"v_lshrrev_b32 v{b}, 18, v{b}")
        e(f"v_mul_u32_u24 v{c}, 12, v{b}")
        e(f"v_sub_u32 v{a}, v{a}, v{c}")
        e(f"v_lshlrev_b32 v{a}, 4, v{a}")
        e(f"v_mul_u32_u24 v{b}, 2752, v{b}")
        e(f"v_add_u32 v{V_WDMA + i}, v{a}, v{b}")
        if i:
            e(f"v_subrev_u32 v{V_WDMA + i}, {1024 * i}, v{V_WDMA + i}")
    e(f"s_mul_i32 s{S_WSOFF}, s{S_GJ}, 192")
    e(f"s_mul_i32 s{T[0]}, s{S_WAVE}, {16 * 2752}")
    e(f"s_add_u32 s{S_WSOFF}, s{S_WSOFF}, s{T[0]}")
    e(f"v_lshrrev_b32 v{a}, 3, v{V_LANE}")
    e(f"v_lshlrev_b32 v{a}, 10, v{a}")
    e(f"v_and_b32 v{b}, 7, v{V_LANE}")
    e(f"v_lshl_add_u32 v{V_XDMA}, v{b}, 4, v{a}")
    for m in range(1, 4):
        e(f"v_add_u32 v{V_XDMA + m}, {m * (8192 - 1040)}, v{V_XDMA}")
    e(f"s_lshl_b32 s{S_RHO}, s{S_GJ}, 1")
    e(f"s_add_u32 s{S_RHO}, s{S_RHO}, s{S_GI}")
    e(f"s_and_b32 s{S_RHO}, s{S_RHO}, {CFG['ROT']}")
    e(f"s_mul_i32 s{S_WRB}, s{S_WAVE}, 3072")
    e(f"s_mul_i32 s{S_XM0}, s{S_WAVE}, 4160")


def l_addr2(e):
    a, b, c = TMP[0], TMP[1], TMP[2]
    e(f"v_and_b32 v{V_T}, 255, v0")
    e(f"s_and_b32 s{T[1]}, s{S_WAVE}, 1")
    e(f"s_lshl_b32 s{T[2]}, s{S_CH}, 12")
    e(f"s_lshl_b32 s{T[3]}, s{T[1]}, 2")
    e(f"s_add_u32 s{T[2]}, s{T[2]}, s{T[3]}")
    e(f"s_sub_u32 s{T[2]}, s{T[2]}, 64")
    e(f"s_mov_b32 s{T[1]}, 0xaaab")
    for phi in range(3):
        e(f"v_add_u32 v{a}, {phi * 64}, v{V_LANE}")
        e(f"v_mul_u32_u24 v{b}, s{T[1]}, v{a}")
        e(f"v_lshrrev_b32 v{b}, 20, v{b}")
        e(f"v_mul_u32_u24 v{c}, 24, v{b}")
        e(f"v_sub_u32 v{c}, v{a}, v{c}")
        e(f"v_lshlrev_b32 v{c}, 4, v{c}")
        e(f"v_lshl_add_u32 v{c}, v{b}, 8, v{c}")
        e(f"v_add_u32 v{V_HC + phi}, s{T[2]}, v{c}")
        e(f"v_add_u32 v{V_HC + 3 + phi}, 2048, v{V_HC + phi}")
    wd_addr(e, 1)
    out_addr(e)


def stage_dma(e, n):
    toks = []
    base = PHYS[n % 3]
    e(f"s_add_u32 s{T[4]}, s{S_RHO}, {n}")
    e(f"s_and_b32 s{T[4]}, s{T[4]}, 7")
    e(f"s_lshl_b32 s{T[5]}, s{T[4]}, 7")
    e(f"s_add_u32 s{T[5]}, s{T[5]}, s{S_XSOFF}")
    e(f"s_mul_i32 s{T[4]}, s{T[4]}, {64 * 2752}")
    e(f"s_add_u32 s{T[4]}, s{T[4]}, s{S_WSOFF}")
    e(f"s_add_u32 m0, s{S_XM0}, {base + 24576}")
    e("s_nop 0")
    for m in range(4):
        toks.append(e.vm(f"buffer_load_dwordx4 v{V_XDMA + m}, {srd(S_X)}, s{T[5]} offen offset:{m * 1040} lds"))
    for mat, sr in ((0, S_WG), (1, S_WU)):
        e(f"s_add_u32 m0, s{S_WRB}, {base + mat * 12288}")
        e("s_nop 0")
        for i in range(3):
            toks.append(e.vm(f"buffer_load_dwordx4 v{V_WDMA + i}, {srd(sr)}, s{T[4]} offen offset:{1024 * i} lds"))
    return toks


def hc_dma(e):
    toks = []
    e(f"s_mul_i32 s{T[8]}, s{S_WAVE}, 6208")
    for q in range(6):
        e(f"s_add_u32 m0, s{T[8]}, {L_HC + q * 1024}")
        e("s_nop 0")
        toks.append(e.vm(f"buffer_load_dwordx4 v{V_HC + q}, {srd(S_SSM)}, 0 offen lds"))
    e(f"s_lshl_b32 s{T[8]}, s{S_CH}, 12")
    e(f"v_mov_b32 v{TMP[4]}, 0")
    toks.append(e.vm(f"buffer_load_dword v{V_H01}, v{TMP[4]}, {srd(S_SSM)}, s{T[8]} offen"))
    return toks


def hc_fix(e, toks):
    a, b = TMP[4], TMP[5]
    e.wait(vm=toks)
    e(f"s_and_b32 s{T[8]}, s{S_WAVE}, 1")
    e(f"s_cmp_eq_u32 s{T[8]}, 1")
    e(f"s_cselect_b32 s{T[9]}, 15, 99")
    e(f"v_cmp_eq_u32 vcc, s{T[9]}, v{V_LANE}")
    e(f"s_mul_i32 s{T[8]}, s{S_WAVE}, 6208")
    e(f"s_add_u32 s{T[8]}, s{T[8]}, {L_HC}")
    e(f"v_cndmask_b32 v{a}, 0, v{V_H01}, vcc")
    e(f"v_lshlrev_b32 v{b}, 2, v{V_LANE}")
    e(f"v_add_u32 v{b}, s{T[8]}, v{b}")
    e("s_mov_b64 exec, 0xffff")
    t = e.lg(f"ds_write_b32 v{b}, v{a}")
    e("s_mov_b64 exec, -1")
    return t


K_D, K_A, K_Z = 144, 152, 156


def ur_zero(e):
    a = TMP[4]
    for q in range(4):
        e(f"v_mov_b32 v{K_Z + q}, 0")
    e(f"v_lshlrev_b32 v{a}, 4, v{V_T}")
    e(f"v_add_u32 v{a}, {L_UR}, v{a}")
    e(f"v_cmp_gt_u32 vcc, 80, v{V_T}")
    e(f"s_and_saveexec_b64 s[{S_EXSAVE}:{S_EXSAVE + 1}], vcc")
    e.lg(f"ds_write_b128 v{a}, {vr(K_Z)} offset:5120")
    e.lg(f"ds_write_b128 v{a}, {vr(K_Z)} offset:{6400 + 5120}")
    e("s_mov_b64 exec, -1")


def kv_poll_issue(e):
    e(f"v_and_b32 v{V_PA}, 31, v{V_LANE}")
    e(f"v_lshlrev_b32 v{V_PA}, 4, v{V_PA}")
    e(f"s_lshr_b32 s{T[10]}, s{S_U}, 5")
    e(f"s_lshl_b32 s{T[10]}, s{T[10]}, 9")
    e(f"s_add_u32 s{T[10]}, s{T[10]}, {FL_P:#x}")
    return None


def kv_load(e, tok, slp=None):
    poll_one(e, V_PA, T[10], 14, slp)
    e(f"v_lshlrev_b32 v{K_A}, 4, v{V_T}")
    e(f"s_lshl_b32 s{T[11]}, s{S_U}, 13")
    e(f"s_add_u32 s{T[11]}, s{T[11]}, {WS_KV:#x}")
    e(f"s_add_u32 s{T[12]}, s{T[11]}, 4096")
    return [e.vm(f"buffer_load_dwordx4 {vr(K_D)}, v{K_A}, {srd(S_WS)}, s{T[11]} offen sc1"),
            e.vm(f"buffer_load_dwordx4 {vr(K_D + 4)}, v{K_A}, {srd(S_WS)}, s{T[12]} offen sc1")]


def kv_write(e, toks):
    e(f"v_lshrrev_b32 v{K_A}, 2, v{V_T}")
    e(f"v_mul_u32_u24 v{K_A}, 80, v{K_A}")
    e(f"v_and_b32 v{K_A + 1}, 3, v{V_T}")
    e(f"v_lshl_add_u32 v{K_A}, v{K_A + 1}, 4, v{K_A}")
    e(f"v_add_u32 v{K_A}, {L_UR}, v{K_A}")
    e.wait(vm=toks)
    return [e.lg(f"ds_write_b128 v{K_A}, {vr(K_D)}"),
            e.lg(f"ds_write_b128 v{K_A}, {vr(K_D + 4)} offset:6400")]


def touch_loads(e):
    b = TMP[1]
    e(f"s_and_b32 s{T[0]}, s{S_I2}, 7")
    e(f"s_lshl_b32 s{T[0]}, s{T[0]}, 2")
    e(f"s_add_u32 s{T[0]}, s{T[0]}, s{S_WAVE}")
    e(f"s_lshl_b32 s{T[0]}, s{T[0]}, 16")
    e(f"s_lshl_b32 s{T[1]}, s{S_N2}, 7")
    e(f"s_add_u32 s{T[0]}, s{T[0]}, s{T[1]}")
    e(f"v_lshlrev_b32 v{b}, 10, v{V_LANE}")
    e.vm(f"buffer_load_dword v{K_Z + 3}, v{b}, {srd(S_WD)}, s{T[0]} offen")


def wd_dma(e, m, buf):
    toks = []
    e(f"s_add_u32 m0, s{S_WDBASE}, {buf * 16384}")
    e(f"s_lshl_b32 s{T[8]}, s{S_FT + m}, 4")
    for q in range(4):
        toks.append(e.vm(f"buffer_load_dwordx4 v{V_WDDMA + q}, {srd(S_WD)}, s{T[8]} offen offset:{q * 1024} lds"))
    return toks


def wd_tr(e, buf, kr):
    toks = []
    k, r0 = kr
    base, vb = buf * 16384, (V_WDTR, V_WDTR + 1)
    if buf == 4:
        e(f"v_add_u32 v{TMP[2]}, 0x10000, v{V_WDTR}")
        e(f"v_add_u32 v{TMP[3]}, 0x10000, v{V_WDTR + 1}")
        base, vb = 0, (TMP[2], TMP[3])
    for half in range(2):
        for dt in range(2):
            r = r0 + 4 * (half * 2 + dt)
            for q in range(2):
                toks.append(e.lg(
                    f"ds_read_b64_tr_b16 {rr(k, r + 2 * q, 2)}, v{vb[dt]} offset:{base + (16 * half + 8 * q) * 128}"))
    return toks


def h_poll(e, level):
    e(f"v_and_b32 v{V_PA}, 7, v{V_LANE}")
    e(f"v_lshlrev_b32 v{V_PA}, 4, v{V_PA}")
    e(f"s_lshl_b32 s{T[13]}, s{S_I2}, 9")
    e(f"s_add_u32 s{T[13]}, s{T[13]}, {FL_H + 128 * level:#x}")
    poll_one(e, V_PA, T[13], (12, 16, 13)[level], 4)


def h_loads(e, m, kr, sbase):
    toks = {}
    k, r0 = kr
    for st in range(2):
        e(f"s_add_u32 s{T[9]}, s{sbase}, s{S_FT + m}")
        if st:
            e(f"s_add_u32 s{T[9]}, s{T[9]}, {43 * 2048}")
        if m == 10:
            e(f"s_cmp_eq_u32 s{S_WAVE}, 3")
            e(f"s_cselect_b32 s{T[9]}, {WS_SIZE:#x}, s{T[9]}")
        for half in range(2):
            r = r0 + 4 * (st * 2 + half)
            toks[(st, half)] = e.vm(
                f"buffer_load_dwordx4 {rr(k, r, 4)}, v{V_L16}, {srd(S_WS)}, s{T[9]} offen offset:{half * 1024} sc1")
    return toks


def g2_slot(e, first, wk, hk, ht, wtr, acck, acc0):
    ka, ra0 = wk
    kb, rb0 = hk
    for half in range(2):
        for stt in range(2):
            e.wait(vm=ht[(stt, half)], lg=wtr if (half == 0 and stt == 0) else None)
            for dt in range(2):
                acc = rr(acck, acc0 + 32 * dt + 16 * stt, 16)
                c = "0" if (first and half == 0) else acc
                e(f"v_mfma_f32_32x32x16_bf16 {acc}, {rr(ka, ra0 + 4 * (half * 2 + dt), 4)}, "
                  f"{rr(kb, rb0 + 4 * (stt * 2 + half), 4)}, {c}")


def partials(e, sbase_expr, acck, acc0):
    a, b = TMP[0], TMP[1]
    e(f"v_and_b32 v{a}, 31, v{V_LANE}")
    e(f"v_mul_u32_u24 v{a}, 272, v{a}")
    e(f"v_lshrrev_b32 v{b}, 5, v{V_LANE}")
    e(f"v_lshl_add_u32 v{a}, v{b}, 4, v{a}")
    e(f"v_add_u32 v{a}, {sbase_expr}, v{a}")
    e("s_nop 7")
    for dt in range(2):
        for stt in range(2):
            for q in range(4):
                e.lg(f"ds_write_b128 v{a}, {rr(acck, acc0 + 32 * dt + 16 * stt + 4 * q, 4)} "
                     f"offset:{stt * 32 * 272 + dt * 128 + q * 32}")


def epoch_cond(e, lbl):
    e(f"s_lshl_b32 s{T[0]}, s{S_GI}, 2")
    e(f"s_add_u32 s{T[0]}, s{T[0]}, s{S_WAVE}")
    e(f"s_lshl_b32 s{T[0]}, s{T[0]}, 4")
    e(f"s_add_u32 s{T[0]}, s{T[0]}, s{S_GJ}")
    e(f"s_cmp_lg_u32 s{T[0]}, 15")
    e(f"s_cbranch_scc1 {lbl}")


def epoch_finish(e):
    epoch_cond(e, "L_noep2")
    for q in range(4):
        e(f"s_mov_b32 s{T[1]}, {FL_P + q * 1024:#x}")
        e(f"buffer_load_dwordx4 {vr(96 + 4 * q)}, v{V_L16}, {srd(S_WS)}, s{T[1]} offen sc1")
    e("s_waitcnt vmcnt(0)")
    for q in range(4):
        e(f"s_mov_b32 s{T[10]}, {FL_P + q * 1024:#x}")
        poll_check(e, None, V_L16, T[10], 96 + 4 * q, 20)
    e(f"s_sub_u32 s{T[0]}, s{S_TAG}, {TAGK - 1:#x}")
    e(f"v_mov_b32 v{TMP[0]}, s{T[0]}")
    e(f"v_mov_b32 v{TMP[1]}, 0")
    e(f"s_mov_b32 s{T[1]}, {FL_EPOCH:#x}")
    e("s_mov_b64 exec, 1")
    e(f"buffer_store_dword v{TMP[0]}, v{TMP[1]}, {srd(S_WS)}, s{T[1]} offen sc1")
    e("s_mov_b64 exec, -1")
    e.label("L_noep2")


def conv_staging(e, hct, slp=None):
    pt = kv_poll_issue(e)
    ur_zero(e)
    kt = kv_load(e, pt, slp)
    hc_fix(e, hct)
    return kt


def l_body():
    e = Em()
    e.label("L_loader")
    l_addr(e)
    e(f"v_lshlrev_b32 v{TMP[0]}, 2, v{V_LANE}")
    e(f"v_add_u32 v{TMP[0]}, {L_FL}, v{TMP[0]}")
    e(f"v_mov_b32 v{TMP[1]}, 0")
    e.wait_all(vm=False, lg=True)
    e("s_mov_b64 exec, 0xffffffff")
    e.lg(f"ds_write_b32 v{TMP[0]}, v{TMP[1]}")
    e("s_mov_b64 exec, -1")
    stamp(e, 0)
    e(f"s_cmp_eq_u32 s{S_GJ}, 15")
    e("s_cbranch_scc1 L_l_g")
    st = {}
    for n in range(CFG["PRE"]):
        st[n] = stage_dma(e, n)
    stamp(e, 1)
    for n in range(8):
        e.wait(vm=st[n])
        e.wait_all(vm=False, lg=True)
        e("s_barrier")
        if n in (0, 4):
            stamp(e, 2 + n // 4)
        for k in range(n + 1, min(n + 3, 8)):
            if k not in st:
                st[k] = stage_dma(e, k)
        if n == 0:
            mt = misc_loads(e, True)
            l_addr2(e)
        if n == 2:
            misc_use(e, mt, True)
        if n == 3 and CFG["TOUCH"]:
            touch_loads(e)
        if n == 6:
            hct = hc_dma(e)
            lw = {0: wd_dma(e, 7, 0), 1: wd_dma(e, 8, 1)}
            conv_addr(e)
            kv_poll_issue(e)
            ur_zero(e)
    e("s_branch L_l_join")
    e.label("L_l_g")
    ge = Em()
    misc_loads(ge, True)
    l_addr2(ge)
    ge.wait_all()
    ge("s_barrier")
    misc_use(ge, [], True)
    hc_dma(ge)
    conv_addr(ge)
    wd_dma(ge, 7, 0)
    wd_dma(ge, 8, 1)
    lds_wait4(ge, 8)
    kv_poll_issue(ge)
    ur_zero(ge)
    ge.wait_all()
    e.L.append(("SUB", ge))
    e.label("L_l_join")
    stamp(e, 4)
    kt = kv_load(e, None)
    lwt = {}
    lw[2] = wd_dma(e, 9, 2)
    lw[3] = wd_dma(e, 10, 3)
    for i in range(2):
        e.wait(vm=lw[i])
        lwt[i] = wd_tr(e, i, LW_SET[i])
    hc_fix(e, hct)
    kv_write(e, kt)
    e.wait_all(vm=False, lg=True)
    lds_set(e, f"s{S_WAVE}")
    cw = wd_dma(e, 0, 0) + wd_dma(e, 1, 1) + wd_dma(e, 4, 4)
    for i in range(2, 4):
        e.wait(vm=lw[i])
        lwt[i] = wd_tr(e, i, LW_SET[i])
    e.wait(lg=lwt[3])
    cw += wd_dma(e, 2, 2) + wd_dma(e, 3, 3)
    if CFG["LPRIO"] and CFG["PRIO_AT"] == 0:
        e(f"s_setprio {CFG['LPRIO']}")
    lds_wait4(e, 0)
    stamp(e, 5)
    hr, ft = {}, {}
    for nn in range(4):
        for p in range(4):
            hr[(p, nn)] = conv_hraw(e, p, nn)
    for dl in range(4):
        ft[(0, dl)] = conv_f(e, 0, dl)
    for nn in range(3):
        for p in range(4):
            e.wait(lg=hr[(p, nn)] + hr[(p, nn + 1)][:1])
            conv_align(e, p, nn)
    stamp(e, 6)
    cg = [Em() for _ in range(160)]
    for tt in range(8):
        g0 = 20 * tt
        if tt + 4 <= 10:
            for p in range(4):
                hr[(p, tt + 4)] = conv_hraw(cg[g0 + p], p, tt + 4)
        if tt + 1 < 8:
            for dl in range(4):
                ft[(tt + 1, dl)] = conv_f(cg[g0 + 4 + dl], tt + 1, dl)
            g = cg[g0 + 11]
            g.wait(lg=[t for p in range(4) for t in hr[(p, tt + 3)] + hr[(p, tt + 4)][:1]])
            for p in range(4):
                conv_align(cg[g0 + 11 + 2 * p], p, tt + 3)
    if CFG["LPRE"]:
        g = cg[49]
        g.wait(vm=cw)
        g(f"s_add_u32 s{T[9]}, s{S_WAVE}, 24")
        lds_set(g, f"s{T[9]}")
    for tt in range(8):
        idx = 0
        if tt == 4:
            stamp(e, 7)
        if CFG["LPRIO"] and CFG["PRIO_AT"] and tt == CFG["PRIO_AT"]:
            e(f"s_setprio {CFG['LPRIO']}")
        for dl in range(4):
            e.wait(lg=ft[(tt, dl)])
            for p in range(4 - dl):
                j = p + dl
                for bb in range(2):
                    acc = C_ACC + 8 * j + 4 * bb
                    h = C_H + 20 * p + 4 * ((tt + 2 * bb) % 5)
                    f = A_F + 16 * (tt % 2) + 4 * dl
                    c = "0" if (tt == 0 and dl == 0) else vr(acc)
                    e(f"v_mfma_f32_16x16x32_bf16 {vr(acc)}, {vr(h)}, {ar(f)}, {c}")
                    e.extend(cg[20 * tt + idx])
                    idx += 1
    stamp(e, 8)
    lds_wait4(e, 8)
    yst = conv_epilogue(e)
    e.wait_all(vm=False, lg=True)
    e(f"s_add_u32 s{T[9]}, s{S_WAVE}, 28")
    lds_set(e, f"s{T[9]}")
    y_flag(e, yst)
    if CFG["LPRIO"]:
        e("s_setprio 0")
    stamp(e, 9)
    lds_wait1i(e, 12)
    lds_wait1i(e, 16)
    h_poll(e, 2)
    hl = {}
    for i in range(4):
        hl[i] = h_loads(e, 7 + i, LH_SET[i], S_HOFF)
    qgt = qg_loads(e)
    stamp(e, 10)
    for i in range(4):
        g2_slot(e, i == 0, LW_SET[i], LH_SET[i], hl[i], lwt[i], "v", 32)
    stamp(e, 11)
    lds_wait4(e, 28)
    e(f"s_mul_i32 s{T[9]}, s{S_WAVE}, 17408")
    e(f"s_add_u32 s{T[9]}, s{T[9]}, {L_P2L}")
    partials(e, f"s{T[9]}", "v", 32)
    stamp(e, 12)
    blend(e, qgt)
    stamp(e, 15)
    epoch_finish(e)
    return e


def resolve_sub(ge):
    own = {id(i) for i in ge.L}
    L = []
    for i in ge.L:
        if i.kind == "wait":
            L.append(Ins("", "wait", [t for t in i.vm if id(t) in own], [t for t in i.lg if id(t) in own]))
        else:
            L.append(i)
    return resolve_waits(L)


def flatten(e):
    subs, L = {}, []
    for i in e.L:
        if isinstance(i, tuple):
            key = f";;SUB{len(subs)}"
            subs[key] = i[1]
            L.append(Ins(key))
        else:
            L.append(i)
    out = []
    for ln in resolve_waits(L):
        if ln in subs:
            out.extend(resolve_sub(subs[ln]))
        else:
            out.append(ln)
    return out


def emit(path):
    _lbl[0] = 0
    e0 = Em()
    setup(e0)
    lines = flatten(e0) + flatten(c_body()) + flatten(l_body())
    lines, npad = pad_hazards(lines)
    hdr = open("gated_mix__ssm_conv_h3__geglu_ffn__prompt.s.ref").read().split("; @launch")[0]
    txt = hdr
    txt += f"; @launch grid=(256,1,1) block=(512,1,1) lds={LDS_SIZE}\n"
    txt += '.amdgcn_target "amdgcn-amd-amdhsa--gfx950"\n.text\n'
    txt += f".globl {KNAME}\n.p2align 8\n.type {KNAME},@function\n{KNAME}:\n"
    for ln in lines:
        txt += ("" if ln.endswith(":") else "    ") + ln + "\n"
    txt += "L_fin:\nL_end:\n    s_endpgm\n"
    txt += f""".section .rodata,"a"
.p2align 6
.amdhsa_kernel {KNAME}
  .amdhsa_next_free_vgpr 256
  .amdhsa_next_free_sgpr 102
  .amdhsa_accum_offset 160
  .amdhsa_group_segment_fixed_size 0
  .amdhsa_kernarg_size 112
  .amdhsa_user_sgpr_count 2
  .amdhsa_user_sgpr_kernarg_segment_ptr 1
  .amdhsa_system_sgpr_workgroup_id_x 1
.end_amdhsa_kernel
"""
    open(path, "w").write(txt)
    return len(lines), npad


if __name__ == "__main__":
    out = sys.argv[1] if len(sys.argv) > 1 else "k6.s"
    for a in sys.argv[2:]:
        k, v = a.split("=")
        CFG[k] = eval(v)
    print(emit(out))
```

```python
import sys, struct, math
sys.path.insert(0, "work")
from asmlib import Em, Ins, resolve_waits, pad_hazards

KNAME = "gated_mix__ssm_conv_h3__geglu_ffn__prompt_kernel"

CFG = dict(EMU_PREP=True, EMU_G1=True, STAMPS=False, POLL_MAX=200000, ROT=7, SLEEP=8, TOUCH=True,
           KV_AFTER=5, CPRIO=0, PRE=2, LPRE=True, LPRIO=2, PDELAY=0, S7F=True, LG=(9, 18, 29, 69, 118), FLATE=False, PINLINE=True, CWF=29, TOUCH2=False, TDELAY=0, PC0=4, PB=15, PRIO_AT=0)

WS_KV = 0x600000
WS_Y2 = 0x800000
WS_G = 0xA00000
WS_FLG = 0xB00000
FL_EPOCH = WS_FLG
FL_P = WS_FLG + 0x1000
FL_H = WS_FLG + 0x2000
FL_Y = WS_FLG + 0x8000
FL_G = WS_FLG + 0xA000
WS_STAMP = 0xC00000
WS_SIZE = 0x10000000
TAGK = 0x9E3779B9

SLOT = 41216
PHYS = {2: 0, 0: SLOT, 1: 2 * SLOT}
L_WDB = 0
WDB_STRIDE = 20608
L_LWD = 2 * SLOT
L_EX = 2 * SLOT + 16384
L_P2L = 2 * SLOT
L_YT = 2 * SLOT + 4 * 17408
L_HC = 123648
L_UR = 148480
L_PT = 148480
L_SH = 161280
L_FL = 162304
L_GT = 162816
LDS_SIZE = 163840

S_X, S_K, S_V, S_SH, S_SSM, S_WG, S_WU, S_WD, S_GW, S_OUT, S_WS, S_HST, S_DD = [4 + 4 * i for i in range(13)]
S_WAVE, S_GI, S_GJ, S_I2, S_N2, S_TAG = 56, 57, 58, 59, 60, 61
T = list(range(62, 76))
S_C1, S_MASKHI = 76, 77
S_EXSAVE = 78
S_WSOFF, S_XSOFF, S_XM0, S_HOFF, S_FHOFF, S_CH, S_POLL, S_U, S_DF = 80, 81, 82, 83, 84, 85, 86, 87, 88
S_WDBASE = 89
S_RHO, S_WRB = 3, 2
S_FT = 90
S_STI = 101


def srd(b): return f"s[{b}:{b + 3}]"
def vr(b, n=4): return f"v[{b}:{b + n - 1}]"
def ar(b, n=4): return f"a[{b}:{b + n - 1}]"
def rr(k, b, n): return f"{k}[{b}:{b + n - 1}]"
def f32hex(x): return "0x%08x" % struct.unpack("<I", struct.pack("<f", x))[0]


V_LANE, V_L16 = 1, 2
TMP = [13, 14, 15, 16, 17, 18]
V_PA = 19
V_PD = 20
V_EPO, V_H01, V_OUTO, V_T = 24, 25, 26, 27
V_WTR = 3
V_XRD = 6
V_C0 = 9
ACC_OF = {0: 96, 1: 64, 2: 32}
V_ET = 144
A_WF = 0
A_XF = 48
P_K, P_V, P_SH, P_AD, P_T = 32, 52, 60, 76, 84
V_WDMA = 3
V_XDMA = 6
V_F, V_H, V_SHF = 3, 4, 5
V_HC = 32
C_ACC, C_H = 32, 64
A_F = 0
V_WDDMA = 28
V_WDTR = 10
CW_SET = [("v", 96), ("v", 112), ("v", 64), ("v", 80), ("v", 32)]
CH_SET = [("a", 64), ("a", 80), ("v", 128), ("v", 48), ("v", 144)]
LW_SET = [("a", 32), ("a", 48), ("a", 64), ("a", 80)]
LH_SET = [("v", 96), ("v", 112), ("v", 128), ("v", 144)]


def stamp(e, idx):
    if not CFG["STAMPS"] or (CFG["STAMPS"] == 2 and idx not in (0, 15)):
        return
    e.wait_all(vm=False, lg=True)
    e("s_memrealtime s[0:1]")
    e(f"s_memtime s[{S_EXSAVE}:{S_EXSAVE + 1}]")
    e.wait_all(vm=False, lg=True)
    e(f"v_mov_b32 v{TMP[0]}, s0")
    e(f"v_mov_b32 v{TMP[1]}, s{S_STI}")
    e(f"v_mov_b32 v{TMP[2]}, s{S_EXSAVE}")
    e("s_mov_b64 exec, 1")
    e.vm(f"buffer_store_dword v{TMP[0]}, v{TMP[1]}, {srd(S_WS)}, 0 offen offset:{idx * 4}")
    e.vm(f"buffer_store_dword v{TMP[2]}, v{TMP[1]}, {srd(S_WS)}, 0 offen offset:{128 + idx * 4}")
    e("s_mov_b64 exec, -1")


def flag_store(e, s_addr):
    e(f"v_mov_b32 v{TMP[0]}, s{S_TAG}")
    e(f"v_mov_b32 v{TMP[1]}, 0")
    e("s_mov_b64 exec, 1")
    t = e.vm(f"buffer_store_dword v{TMP[0]}, v{TMP[1]}, {srd(S_WS)}, s{s_addr} offen sc1")
    e("s_mov_b64 exec, -1")
    return t


_lbl = [0]


def poll_issue(e, vaddr, s_addr, vdst):
    return e.vm(f"buffer_load_dwordx4 {vr(vdst)}, v{vaddr}, {srd(S_WS)}, s{s_addr} offen sc1")


def poll_check(e, tok, vaddr, s_addr, vdst, slp=None):
    n = _lbl[0]
    _lbl[0] += 1
    e.wait(vm=tok)
    e(f"s_mov_b32 s{S_POLL}, 0")
    e.label(f"L_pc{n}")
    for q in range(4):
        e(f"v_xor_b32 v{vdst + q}, s{S_TAG}, v{vdst + q}")
    e(f"v_or3_b32 v{vdst}, v{vdst}, v{vdst + 1}, v{vdst + 2}")
    e(f"v_or_b32 v{vdst}, v{vdst}, v{vdst + 3}")
    e(f"v_cmp_eq_u32 vcc, 0, v{vdst}")
    e("s_nop 1")
    e("s_cmp_eq_u64 vcc, -1")
    e(f"s_cbranch_scc1 L_pd{n}")
    e(f"s_add_u32 s{S_POLL}, s{S_POLL}, 1")
    e(f"s_cmp_ge_u32 s{S_POLL}, {CFG['POLL_MAX']}")
    e(f"s_cbranch_scc1 L_pd{n}")
    e(f"s_sleep {slp if slp is not None else CFG['SLEEP']}")
    e(f"buffer_load_dwordx4 {vr(vdst)}, v{vaddr}, {srd(S_WS)}, s{s_addr} offen sc1")
    e("s_waitcnt vmcnt(0)")
    e(f"s_branch L_pc{n}")
    e.label(f"L_pd{n}")


def lds_set(e, word_sgpr_or_int, val=1):
    if isinstance(word_sgpr_or_int, int):
        e(f"v_mov_b32 v{TMP[0]}, {L_FL + 4 * word_sgpr_or_int}")
    else:
        e(f"s_lshl_b32 s{T[0]}, {word_sgpr_or_int}, 2")
        e(f"s_add_u32 s{T[0]}, s{T[0]}, {L_FL}")
        e(f"v_mov_b32 v{TMP[0]}, s{T[0]}")
    e(f"v_mov_b32 v{TMP[1]}, {val}")
    e("s_mov_b64 exec, 1")
    t = e.lg(f"ds_write_b32 v{TMP[0]}, v{TMP[1]}")
    e("s_mov_b64 exec, -1")
    return t


def lds_wait4(e, word0):
    n = _lbl[0]
    _lbl[0] += 1
    e(f"v_mov_b32 v{TMP[0]}, {L_FL + 4 * word0}")
    e(f"s_mov_b32 s{S_POLL}, 0")
    e.label(f"L_lw{n}")
    e(f"ds_read_b128 {vr(V_PD)}, v{TMP[0]}")
    e("s_waitcnt lgkmcnt(0)")
    e(f"v_and_b32 v{V_PD}, v{V_PD}, v{V_PD + 1}")
    e(f"v_and_b32 v{V_PD + 2}, v{V_PD + 2}, v{V_PD + 3}")
    e(f"v_and_b32 v{V_PD}, v{V_PD}, v{V_PD + 2}")
    e(f"v_cmp_eq_u32 vcc, 1, v{V_PD}")
    e("s_nop 1")
    e("s_cmp_eq_u64 vcc, -1")
    e(f"s_cbranch_scc1 L_ld{n}")
    e(f"s_add_u32 s{S_POLL}, s{S_POLL}, 1")
    e(f"s_cmp_ge_u32 s{S_POLL}, {CFG['POLL_MAX'] * 8}")
    e(f"s_cbranch_scc1 L_ld{n}")
    e("s_sleep 1")
    e(f"s_branch L_lw{n}")
    e.label(f"L_ld{n}")
    e.wait_all(vm=False, lg=True)


def lds_wait1(e, s_word):
    n = _lbl[0]
    _lbl[0] += 1
    e(f"s_lshl_b32 s{T[0]}, s{s_word}, 2")
    e(f"s_add_u32 s{T[0]}, s{T[0]}, {L_FL}")
    e(f"v_mov_b32 v{TMP[4]}, s{T[0]}")
    e(f"s_mov_b32 s{S_POLL}, 0")
    e.label(f"L_lw{n}")
    e(f"ds_read_b32 v{V_PD}, v{TMP[4]}")
    e("s_waitcnt lgkmcnt(0)")
    e(f"v_cmp_eq_u32 vcc, 1, v{V_PD}")
    e("s_nop 1")
    e("s_cmp_eq_u64 vcc, -1")
    e(f"s_cbranch_scc1 L_ld{n}")
    e(f"s_add_u32 s{S_POLL}, s{S_POLL}, 1")
    e(f"s_cmp_ge_u32 s{S_POLL}, {CFG['POLL_MAX'] * 8}")
    e(f"s_cbranch_scc1 L_ld{n}")
    e(f"s_branch L_lw{n}")
    e.label(f"L_ld{n}")
    e.wait_all(vm=False, lg=True)


def lds_wait1i(e, word, slp=1):
    n = _lbl[0]
    _lbl[0] += 1
    e(f"v_mov_b32 v{TMP[4]}, {L_FL + 4 * word}")
    e(f"s_mov_b32 s{S_POLL}, 0")
    e.label(f"L_lw{n}")
    e(f"ds_read_b32 v{V_PD}, v{TMP[4]}")
    e("s_waitcnt lgkmcnt(0)")
    e(f"v_cmp_eq_u32 vcc, 1, v{V_PD}")
    e("s_nop 1")
    e("s_cmp_eq_u64 vcc, -1")
    e(f"s_cbranch_scc1 L_ld{n}")
    e(f"s_add_u32 s{S_POLL}, s{S_POLL}, 1")
    e(f"s_cmp_ge_u32 s{S_POLL}, {CFG['POLL_MAX'] * 8}")
    e(f"s_cbranch_scc1 L_ld{n}")
    e(f"s_sleep {slp}")
    e(f"s_branch L_lw{n}")
    e.label(f"L_ld{n}")
    e.wait_all(vm=False, lg=True)


def poll_one(e, vaddr, s_addr, word, slp=None):
    n = _lbl[0]
    _lbl[0] += 1
    e(f"s_cmp_lg_u32 s{S_WAVE}, 0")
    e(f"s_cbranch_scc1 L_po{n}")
    e(f"buffer_load_dwordx4 {vr(V_PD)}, v{vaddr}, {srd(S_WS)}, s{s_addr} offen sc1")
    e("s_waitcnt vmcnt(0)")
    poll_check(e, None, vaddr, s_addr, V_PD, slp)
    e(f"v_mov_b32 v{TMP[0]}, {L_FL + 4 * word}")
    e(f"v_mov_b32 v{TMP[1]}, 1")
    e(f"ds_write_b32 v{TMP[0]}, v{TMP[1]}")
    e(f"s_branch L_pe{n}")
    e.label(f"L_po{n}")
    lds_wait1i(e, word)
    e.label(f"L_pe{n}")
    e.wait_all(vm=False, lg=True)


def unpack(e, dst, src, hi):
    if hi:
        e(f"v_and_b32 v{dst}, s{S_MASKHI}, v{src}")
    else:
        e(f"v_lshlrev_b32 v{dst}, 16, v{src}")


def round2(e, a, b, tmp):
    e(f"v_cvt_pk_bf16_f32 v{tmp}, v{a}, v{b}")
    e(f"v_lshlrev_b32 v{a}, 16, v{tmp}")
    e(f"v_and_b32 v{b}, s{S_MASKHI}, v{tmp}")


def spread(gaps, L, lo, hi):
    n = len(L)
    for idx, ins in enumerate(L):
        gaps[lo + idx * (hi - lo) // n].L.append(ins)


def setup(e):
    e("s_cmp_ge_u32 s2, 256")
    e("s_cbranch_scc1 L_end")
    ptrs = [(S_WG, 56), (S_WU, 64), (S_X, 0), (S_K, 8), (S_V, 16), (S_SH, 24), (S_WS, 104), (S_SSM, 32), (S_DD, 40),
            (S_WD, 72), (S_GW, 80), (S_OUT, 88), (S_HST, 104)]
    for r, off in ptrs:
        e(f"s_load_dwordx2 s[{r}:{r + 1}], s[0:1], {off}")
    sizes = {S_X: 0x200000, S_K: 0x200000, S_V: 0x200000, S_SH: 4096, S_SSM: 0x200000, S_WG: 512 * 2752,
             S_WU: 512 * 2752, S_WD: 1376 * 1024, S_GW: 1024, S_OUT: 0x200000, S_WS: WS_SIZE, S_HST: WS_SIZE,
             S_DD: 1024}
    for r, sz in sizes.items():
        e(f"s_mov_b32 s{r + 2}, {sz:#x}")
        e(f"s_mov_b32 s{r + 3}, 0x00020000")
    e(f"v_lshrrev_b32 v{TMP[0]}, 6, v0")
    e(f"v_and_b32 v{V_LANE}, 63, v0")
    e(f"v_readfirstlane_b32 s{T[13]}, v{TMP[0]}")
    e(f"s_mov_b32 s{S_U}, s2")
    e(f"s_and_b32 s{T[0]}, s2, 7")
    e(f"s_lshr_b32 s{T[1]}, s2, 3")
    e(f"s_and_b32 s{T[2]}, s{T[1]}, 7")
    e(f"s_lshr_b32 s{T[3]}, s{T[1]}, 3")
    e(f"s_and_b32 s{T[4]}, s{T[0]}, 1")
    e(f"s_lshr_b32 s{T[5]}, s{T[0]}, 1")
    e(f"s_lshl_b32 s{S_GI}, s{T[4]}, 3")
    e(f"s_add_u32 s{S_GI}, s{S_GI}, s{T[2]}")
    e(f"s_lshl_b32 s{S_GJ}, s{T[5]}, 2")
    e(f"s_add_u32 s{S_GJ}, s{S_GJ}, s{T[3]}")
    e(f"s_lshl_b32 s{S_I2}, s{T[5]}, 3")
    e(f"s_add_u32 s{S_I2}, s{S_I2}, s{T[2]}")
    e(f"s_lshl_b32 s{S_N2}, s{T[4]}, 2")
    e(f"s_add_u32 s{S_N2}, s{S_N2}, s{T[3]}")
    e(f"s_and_b32 s{S_WAVE}, s{T[13]}, 3")
    e(f"s_mov_b32 s{S_MASKHI}, 0xffff0000")
    e(f"v_lshlrev_b32 v{V_L16}, 4, v{V_LANE}")
    if CFG["STAMPS"]:
        e(f"s_lshl_b32 s{S_STI}, s2, 3")
        e(f"s_add_u32 s{S_STI}, s{S_STI}, s{T[13]}")
        e(f"s_lshl_b32 s{S_STI}, s{S_STI}, 8")
        e(f"s_add_u32 s{S_STI}, s{S_STI}, {WS_STAMP:#x}")
    e(f"s_lshl_b32 s{S_XSOFF}, s{S_GI}, 17")
    e(f"s_lshl_b32 s{T[0]}, s{S_WAVE}, 15")
    e(f"s_add_u32 s{S_XSOFF}, s{S_XSOFF}, s{T[0]}")
    e(f"s_lshr_b32 s{T[0]}, s{S_WAVE}, 1")
    e(f"s_lshl_b32 s{S_CH}, s{S_U}, 1")
    e(f"s_add_u32 s{S_CH}, s{S_CH}, s{T[0]}")
    e(f"s_cmp_ge_u32 s{T[13]}, 4")
    e("s_cbranch_scc1 L_loader")


def misc_loads(e, need_d):
    e(f"v_mov_b32 v{TMP[0]}, 0")
    e(f"s_mov_b32 s{T[0]}, {FL_EPOCH:#x}")
    toks = [e.vm(f"buffer_load_dword v{V_EPO}, v{TMP[0]}, {srd(S_WS)}, s{T[0]} offen sc1")]
    if need_d:
        e(f"s_lshl_b32 s{T[1]}, s{S_U}, 2")
        toks.append(e.vm(f"buffer_load_dword v{V_H01}, v{TMP[0]}, {srd(S_DD)}, s{T[1]} offen"))
    return toks


def misc_use(e, toks, need_d):
    e.wait(vm=toks)
    e(f"v_readfirstlane_b32 s{S_TAG}, v{V_EPO}")
    if need_d:
        e(f"v_readfirstlane_b32 s{T[0]}, v{V_H01}")
    e("s_nop 3")
    e(f"s_add_u32 s{S_TAG}, s{S_TAG}, {TAGK:#x}")
    if need_d:
        e(f"s_lshl_b32 s{T[2]}, s{T[0]}, 16")
        e(f"s_and_b32 s{T[3]}, s{T[0]}, 0xffff0000")
        e(f"s_cmp_lt_u32 s{S_WAVE}, 2")
        e(f"s_cselect_b32 s{S_DF}, s{T[2]}, s{T[3]}")


def out_addr(e):
    a, b = TMP[0], TMP[1]
    e(f"v_lshrrev_b32 v{a}, 3, v0")
    e(f"v_and_b32 v{b}, 7, v0")
    e(f"v_lshlrev_b32 v{b}, 4, v{b}")
    e(f"v_lshl_add_u32 v{a}, v{a}, 10, v{b}")
    e(f"s_lshl_b32 s{T[0]}, s{S_I2}, 16")
    e(f"s_lshl_b32 s{T[1]}, s{S_N2}, 7")
    e(f"s_add_u32 s{T[0]}, s{T[0]}, s{T[1]}")
    e(f"v_add_u32 v{V_OUTO}, s{T[0]}, v{a}")


A_PK, A_PV = 56, 76
Q_RAW, Q_SH, Q_KC, Q_VV, Q_S4, Q_P, Q_W, Q_SA = 128, 136, 140, 145, 147, 151, 156, 157


def prep_a(e):
    a, b = TMP[0], TMP[1]
    AD = 128
    e(f"v_and_b32 v{a}, 7, v0")
    e(f"v_lshrrev_b32 v{b}, 3, v0")
    e(f"v_lshlrev_b32 v{a}, 4, v{a}")
    e(f"v_lshl_add_u32 v{a}, v{b}, 11, v{a}")
    e(f"s_lshl_b32 s{T[0]}, s{S_I2}, 16")
    e(f"s_lshl_b32 s{T[1]}, s{S_N2}, 7")
    e(f"s_add_u32 s{T[0]}, s{T[0]}, s{T[1]}")
    e(f"s_sub_u32 s{T[0]}, s{T[0]}, 3072")
    e(f"v_add_u32 v{AD}, s{T[0]}, v{a}")
    for m in range(1, 5):
        e(f"v_add_u32 v{AD + m}, {1024 * m}, v{AD}")
    c_addr(e)
    w = Q_W
    e(f"v_lshrrev_b32 v{b}, 3, v0")
    e(f"v_sub_u32 v{b}, 31, v{b}")
    e(f"v_lshrrev_b32 v{w}, 2, v{b}")
    e(f"v_and_b32 v{TMP[3]}, 7, v0")
    e(f"v_xor_b32 v{w}, v{w}, v{TMP[3]}")
    e(f"v_lshlrev_b32 v{w}, 4, v{w}")
    e(f"v_and_b32 v{b}, 3, v{b}")
    e(f"v_lshl_add_u32 v{w}, v{b}, 2, v{w}")
    e(f"v_lshl_add_u32 v{w}, v{TMP[3]}, 10, v{w}")
    e(f"v_add_u32 v{w}, {L_PT}, v{w}")
    e(f"v_lshlrev_b32 v{Q_SA}, 6, v{TMP[3]}")
    e(f"v_add_u32 v{Q_SA}, {L_SH}, v{Q_SA}")
    e.wait_all(vm=False, lg=True)
    stamp(e, 0)
    if CFG["TOUCH2"]:
        e(f"v_lshrrev_b32 v{a}, 3, v{V_LANE}")
        e(f"v_lshlrev_b32 v{a}, 10, v{a}")
        e(f"v_and_b32 v{b}, 7, v{V_LANE}")
        e(f"v_lshl_add_u32 v{a}, v{b}, 7, v{a}")
        e(f"s_and_b32 s{T[0]}, s{S_GJ}, 3")
        e(f"s_lshl_b32 s{T[0]}, s{T[0]}, 15")
        e(f"s_lshl_b32 s{T[1]}, s{S_WAVE}, 13")
        e(f"s_add_u32 s{T[0]}, s{T[0]}, s{T[1]}")
        e(f"s_lshl_b32 s{T[1]}, s{S_GI}, 17")
        e(f"s_add_u32 s{T[0]}, s{T[0]}, s{T[1]}")
        e(f"v_mul_u32_u24 v{b}, 2752, v{V_LANE}")
        e(f"s_and_b32 s{T[2]}, s{S_GI}, 7")
        e(f"s_mul_i32 s{T[2]}, s{T[2]}, {64 * 2752}")
        e(f"s_mul_i32 s{T[3]}, s{S_GJ}, 192")
        e(f"s_add_u32 s{T[2]}, s{T[2]}, s{T[3]}")
        e(f"s_lshr_b32 s{T[3]}, s{S_WAVE}, 1")
        e(f"s_mul_i32 s{T[3]}, s{T[3]}, 188")
        e(f"s_add_u32 s{T[2]}, s{T[2]}, s{T[3]}")
        if CFG["TDELAY"]:
            e(f"s_sleep {CFG['TDELAY']}")
        e.vm(f"buffer_load_dword v{V_PD}, v{a}, {srd(S_X)}, s{T[0]} offen")
        e(f"s_bitcmp1_b32 s{S_WAVE}, 0")
        e("s_cbranch_scc1 L_t2u")
        e(f"buffer_load_dword v{V_PD + 1}, v{b}, {srd(S_WG)}, s{T[2]} offen")
        e("s_branch L_t2j")
        e.label("L_t2u")
        e(f"buffer_load_dword v{V_PD + 1}, v{b}, {srd(S_WU)}, s{T[2]} offen")
        e.label("L_t2j")
        e.vm("s_nop 0")
    if CFG["PDELAY"]:
        e(f"s_sleep {CFG['PDELAY']}")
    toks = []
    for m in range(5):
        toks.append(e.vm(f"buffer_load_dwordx4 {ar(A_PK + 4 * m)}, v{AD + m}, {srd(S_K)}, 0 offen"))
    for m in range(2):
        toks.append(e.vm(f"buffer_load_dwordx4 {ar(A_PV + 4 * m)}, v{AD + 3 + m}, {srd(S_V)}, 0 offen"))
    e(f"s_mov_b32 m0, {L_SH}")
    e(f"s_lshl_b32 s{T[1]}, s{S_N2}, 9")
    toks.append(e.vm(f"buffer_load_dwordx4 v{V_L16}, {srd(S_SH)}, s{T[1]} offen lds"))
    mt = misc_loads(e, False)
    return toks, mt


def prep_compute(toks):
    e = Em()
    e.wait(vm=toks)
    wr = []
    for q in range(4):
        sh = e.lg(f"ds_read_b128 {vr(Q_SH)}, v{Q_SA} offset:{16 * q}")
        for m in range(5):
            e(f"v_accvgpr_read_b32 v{Q_RAW + m}, a{A_PK + 4 * m + q}")
        for m in range(2):
            e(f"v_accvgpr_read_b32 v{Q_RAW + 5 + m}, a{A_PV + 4 * m + q}")
        e.wait(lg=sh)
        for hi in range(2):
            c = 2 * q + hi
            kc = [Q_KC + m for m in range(5)]
            vv = [Q_VV, Q_VV + 1]
            s4 = [Q_S4 + j for j in range(4)]
            p0, p1, a0, a1, tp = Q_P, Q_P + 1, Q_P + 2, Q_P + 3, Q_P + 4
            for m in range(5):
                unpack(e, kc[m], Q_RAW + m, hi)
            for m in range(2):
                unpack(e, vv[m], Q_RAW + 5 + m, hi)
            for j in range(4):
                unpack(e, s4[j], Q_SH + 2 * hi + (j >> 1), j & 1)
            e(f"v_mul_f32 v{a0}, v{kc[0]}, v{s4[3]}")
            e(f"v_mul_f32 v{a1}, v{kc[1]}, v{s4[3]}")
            if CFG["EMU_PREP"]:
                round2(e, a0, a1, tp)
                for tt in range(1, 4):
                    e(f"v_mul_f32 v{p0}, v{kc[tt]}, v{s4[3 - tt]}")
                    e(f"v_mul_f32 v{p1}, v{kc[tt + 1]}, v{s4[3 - tt]}")
                    round2(e, p0, p1, tp)
                    e(f"v_add_f32 v{a0}, v{a0}, v{p0}")
                    e(f"v_add_f32 v{a1}, v{a1}, v{p1}")
                    round2(e, a0, a1, tp)
            else:
                for tt in range(1, 4):
                    e(f"v_fmac_f32 v{a0}, v{kc[tt]}, v{s4[3 - tt]}")
                    e(f"v_fmac_f32 v{a1}, v{kc[tt + 1]}, v{s4[3 - tt]}")
            e(f"v_mul_f32 v{a0}, v{a0}, v{vv[0]}")
            e(f"v_mul_f32 v{a1}, v{a1}, v{vv[1]}")
            e(f"v_cvt_pk_bf16_f32 v{p0}, v{a1}, v{a0}")
            wr.append(e.lg(f"ds_write_b32 v{Q_W}, v{p0} offset:{c * 128}"))
    return e, wr


def prep_rb_addr(e):
    a, b = TMP[0], TMP[1]
    RA, RB, RG = V_ET + 8, V_ET + 9, V_ET + 10
    e(f"v_lshrrev_b32 v{b}, 3, v0")
    e(f"v_lshrrev_b32 v{a}, 6, v0")
    e(f"v_and_b32 v{RG}, 7, v0")
    e(f"v_xor_b32 v{a}, v{a}, v{RG}")
    e(f"v_lshlrev_b32 v{a}, 4, v{a}")
    e(f"v_lshl_add_u32 v{a}, v{b}, 7, v{a}")
    e(f"v_xor_b32 v{RB}, 64, v{a}")
    e(f"v_add_u32 v{RA}, {L_PT}, v{a}")
    e(f"v_add_u32 v{RB}, {L_PT}, v{RB}")
    e(f"v_lshlrev_b32 v{RG}, 4, v{RG}")
    e(f"v_lshl_add_u32 v{RG}, v{b}, 12, v{RG}")


def prep_readback(e):
    RA, RB = V_ET + 8, V_ET + 9
    return [e.lg(f"ds_read_b128 {vr(V_ET)}, v{RA}"),
            e.lg(f"ds_read_b128 {vr(V_ET + 4)}, v{RB} offset:4096")]


def prep_store(e, rd):
    RG = V_ET + 10
    e(f"s_lshl_b32 s{T[0]}, s{S_N2}, 18")
    e(f"s_lshl_b32 s{T[1]}, s{S_I2}, 7")
    e(f"s_sub_u32 s{T[0]}, s{T[0]}, s{T[1]}")
    e(f"s_add_u32 s{T[0]}, s{T[0]}, {WS_KV + 3968:#x}")
    e(f"s_add_u32 s{T[1]}, s{T[0]}, {32 * 4096:#x}")
    e.wait(lg=rd)
    return [e.vm(f"buffer_store_dwordx4 {vr(V_ET)}, v{RG}, {srd(S_WS)}, s{T[0]} offen sc1"),
            e.vm(f"buffer_store_dwordx4 {vr(V_ET + 4)}, v{RG}, {srd(S_WS)}, s{T[1]} offen sc1")]


def prep_flag(e, toks):
    e.wait(vm=toks)
    e(f"s_lshl_b32 s{T[0]}, s{S_N2}, 9")
    e(f"s_lshl_b32 s{T[1]}, s{S_I2}, 4")
    e(f"s_add_u32 s{T[0]}, s{T[0]}, s{T[1]}")
    e(f"s_lshl_b32 s{T[1]}, s{S_WAVE}, 2")
    e(f"s_add_u32 s{T[0]}, s{T[0]}, s{T[1]}")
    e(f"s_add_u32 s{T[0]}, s{T[0]}, {FL_P:#x}")
    return flag_store(e, T[0])


def c_addr(e):
    a, b, c = TMP[0], TMP[1], TMP[2]
    e(f"v_lshrrev_b32 v{a}, 5, v{V_LANE}")
    e(f"v_lshlrev_b32 v{a}, 3, v{a}")
    e(f"v_bfe_u32 v{b}, v{V_LANE}, 2, 2")
    e(f"v_add_u32 v{a}, v{a}, v{b}")
    e(f"v_mul_u32_u24 v{a}, 192, v{a}")
    e(f"v_bfe_u32 v{b}, v{V_LANE}, 4, 1")
    e(f"v_lshl_add_u32 v{a}, v{b}, 5, v{a}")
    e(f"v_and_b32 v{b}, 3, v{V_LANE}")
    e(f"v_lshl_add_u32 v{a}, v{b}, 3, v{a}")
    for s in range(3):
        e(f"v_add_u32 v{V_WTR + s}, {PHYS[s]}, v{a}")
    e(f"v_bfe_u32 v{a}, v{V_LANE}, 3, 2")
    e(f"v_mul_u32_u24 v{a}, 1040, v{a}")
    e(f"v_and_b32 v{b}, 7, v{V_LANE}")
    e(f"v_lshl_add_u32 v{a}, v{b}, 7, v{a}")
    e(f"v_lshrrev_b32 v{b}, 5, v{V_LANE}")
    e(f"v_lshl_add_u32 v{a}, v{b}, 4, v{a}")
    e(f"s_mul_i32 s{T[0]}, s{S_WAVE}, 4160")
    e(f"v_add_u32 v{a}, s{T[0]}, v{a}")
    for s in range(3):
        e(f"v_add_u32 v{V_XRD + s}, {PHYS[s] + 24576}, v{a}")
    c0 = -2.0 * math.sqrt(2.0 / math.pi) * math.log2(math.e)
    e(f"v_mov_b32 v{V_C0}, {f32hex(c0)}")
    e(f"s_mov_b32 s{S_C1}, {f32hex(c0 * 0.044715)}")
    e(f"s_lshl_b32 s{T[0]}, s{S_GI}, 2")
    e(f"s_add_u32 s{T[0]}, s{T[0]}, s{S_WAVE}")
    e(f"s_mul_i32 s{T[1]}, s{T[0]}, 43")
    e(f"s_mul_i32 s{T[2]}, s{S_GJ}, 3")
    e(f"s_add_u32 s{T[1]}, s{T[1]}, s{T[2]}")
    e(f"s_lshl_b32 s{S_HOFF}, s{T[1]}, 11")
    e(f"s_lshr_b32 s{T[1]}, s{T[0]}, 1")
    e(f"s_lshl_b32 s{T[1]}, s{T[1]}, 9")
    e(f"s_and_b32 s{T[0]}, s{T[0]}, 1")
    e(f"s_lshl_b32 s{T[2]}, s{S_GJ}, 1")
    e(f"s_add_u32 s{T[0]}, s{T[0]}, s{T[2]}")
    e(f"s_lshl_b32 s{T[0]}, s{T[0]}, 2")
    e(f"s_add_u32 s{T[0]}, s{T[0]}, s{T[1]}")
    e(f"s_add_u32 s{S_FHOFF}, s{T[0]}, {FL_H:#x}")
    wd_addr(e, 0)
    out_addr(e)


def conv_addr(e):
    a, b, c = TMP[0], TMP[1], TMP[2]
    e(f"s_lshr_b32 s{T[0]}, s{S_WAVE}, 1")
    e(f"s_and_b32 s{T[1]}, s{S_WAVE}, 1")
    e(f"v_and_b32 v{a}, 15, v{V_LANE}")
    e(f"v_lshrrev_b32 v{b}, 4, v{V_LANE}")
    e(f"v_lshlrev_b32 v{c}, 2, v{b}")
    e(f"v_sub_u32 v{c}, v{c}, v{a}")
    e(f"v_add_u32 v{c}, 63, v{c}")
    e(f"v_mul_u32_u24 v{c}, 80, v{c}")
    e(f"s_mul_i32 s{T[2]}, s{T[0]}, 6400")
    e(f"s_mul_i32 s{T[3]}, s{T[1]}, 160")
    e(f"s_add_u32 s{T[2]}, s{T[2]}, s{T[3]}")
    e(f"s_add_u32 s{T[2]}, s{T[2]}, {L_UR - 3840}")
    e(f"v_add_u32 v{V_F}, s{T[2]}, v{c}")
    e(f"v_add_u32 v{a}, 1, v{a}")
    e(f"v_and_b32 v{V_SHF}, 1, v{a}")
    e(f"v_lshlrev_b32 v{V_SHF}, 4, v{V_SHF}")
    e(f"v_bfe_u32 v{c}, v{a}, 1, 1")
    e(f"v_mul_u32_u24 v{c}, 6208, v{c}")
    e(f"v_and_b32 v{a}, 28, v{a}")
    e(f"v_lshl_add_u32 v{c}, v{a}, 1, v{c}")
    e(f"v_mul_u32_u24 v{b}, 384, v{b}")
    e(f"v_add_u32 v{c}, v{c}, v{b}")
    e(f"s_mul_i32 s{T[2]}, s{T[0]}, 12416")
    e(f"s_lshl_b32 s{T[3]}, s{T[1]}, 7")
    e(f"s_add_u32 s{T[2]}, s{T[2]}, s{T[3]}")
    e(f"s_add_u32 s{T[2]}, s{T[2]}, {L_HC}")
    e(f"v_add_u32 v{V_H}, s{T[2]}, v{c}")


def wd_addr(e, role):
    a, b, c = TMP[0], TMP[1], TMP[2]
    e(f"v_lshrrev_b32 v{a}, 3, v{V_LANE}")
    e(f"v_bfe_u32 v{b}, v{V_LANE}, 4, 1")
    e(f"v_lshlrev_b32 v{b}, 2, v{b}")
    e(f"v_and_b32 v{c}, 7, v{V_LANE}")
    e(f"v_xor_b32 v{c}, v{c}, v{b}")
    e(f"v_lshlrev_b32 v{c}, 4, v{c}")
    e(f"v_lshl_add_u32 v{c}, v{a}, 10, v{c}")
    e(f"s_lshl_b32 s{T[0]}, s{S_N2}, 7")
    e(f"v_add_u32 v{V_WDDMA}, s{T[0]}, v{c}")
    for m in range(1, 4):
        e(f"v_add_u32 v{V_WDDMA + m}, {m * (8192 - 1024)}, v{V_WDDMA}")
    e(f"s_lshl_b32 s{S_WDBASE}, s{S_WAVE}, 12")
    e(f"s_mov_b32 s{T[1]}, s{S_WDBASE}")
    e(f"v_lshrrev_b32 v{a}, 5, v{V_LANE}")
    e(f"v_lshlrev_b32 v{a}, 9, v{a}")
    e(f"v_bfe_u32 v{b}, v{V_LANE}, 2, 2")
    e(f"v_lshl_add_u32 v{a}, v{b}, 7, v{a}")
    e(f"v_bfe_u32 v{b}, v{V_LANE}, 4, 1")
    e(f"v_lshl_add_u32 v{a}, v{b}, 5, v{a}")
    e(f"v_and_b32 v{b}, 3, v{V_LANE}")
    e(f"v_lshl_add_u32 v{a}, v{b}, 3, v{a}")
    e(f"v_bfe_u32 v{b}, v{V_LANE}, 3, 1")
    e(f"v_lshl_add_u32 v{a}, v{b}, 6, v{a}")
    e(f"v_add_u32 v{V_WDTR}, s{T[1]}, v{a}")
    e(f"v_xor_b32 v{b}, 64, v{a}")
    e(f"v_add_u32 v{V_WDTR + 1}, s{T[1]}, v{b}")
    e(f"s_mul_i32 s{T[0]}, s{S_WAVE}, {3 * 2048}")
    for m in range(11):
        if m <= 2:
            e(f"s_add_u32 s{S_FT + m}, s{T[0]}, {12 * m * 2048}")
        elif m == 3:
            e(f"s_add_u32 s{S_FT + m}, s{T[0]}, {36 * 2048}")
            e(f"s_cmp_eq_u32 s{S_WAVE}, 3")
            e(f"s_cselect_b32 s{S_FT + m}, {1 * 2048}, s{S_FT + m}")
        elif m <= 6:
            e(f"s_add_u32 s{S_FT + m}, s{T[0]}, {(3 * (4 * m - 15) + 1) * 2048}")
        elif m == 7:
            e(f"s_add_u32 s{S_FT + m}, s{T[0]}, {(-1 * 2048) & 0xffffffff:#x}")
            e(f"s_cmp_eq_u32 s{S_WAVE}, 0")
            e(f"s_cselect_b32 s{S_FT + m}, {40 * 2048}, s{S_FT + m}")
        else:
            e(f"s_add_u32 s{S_FT + m}, s{T[0]}, {(3 * (4 * m - 29) + 2) * 2048}")
    e(f"s_mul_i32 s{S_XM0 if role == 0 else S_HOFF}, s{S_I2}, {86 * 2048}")


def w_tr(e, T_, idx):
    ft, mat = idx >> 1, idx & 1
    n, ts = T_ // 4, T_ % 4
    base = mat * 12288 + ts * 3072 + ft * 64
    vb = V_WTR + n % 3
    d = A_WF + 24 * (T_ % 2) + 4 * idx
    return [e.lg(f"ds_read_b64_tr_b16 {ar(d, 2)}, v{vb} offset:{base}"),
            e.lg(f"ds_read_b64_tr_b16 {ar(d + 2, 2)}, v{vb} offset:{base + 768}")]


def x_fr(e, T_):
    n, ts = T_ // 4, T_ % 4
    return e.lg(f"ds_read_b128 {ar(A_XF + 4 * (T_ % 2))}, v{V_XRD + n % 3} offset:{ts * 32}")


def g1_epilogue(e, ftl, mids=()):
    A = ACC_OF[ftl]
    e(f"s_mul_i32 s{T[6]}, s{S_GJ}, 3")
    e(f"s_cmp_lt_u32 s{T[6]}, {43 - ftl}")
    e(f"s_cselect_b32 s{S_HST + 2}, {WS_SIZE:#x}, 0")
    e(f"s_add_u32 s{T[7]}, s{S_HOFF}, {ftl * 2048}")
    toks = []
    for half in range(2):
        O = V_ET + 8 + 4 * half
        for pr in range(4):
            r = 8 * half + 2 * pr
            B = V_ET + 4 * (pr & 1)
            g0, g1, u0, u1 = A + r, A + r + 1, A + 16 + r, A + 16 + r + 1
            t0, t1, tp, tq = B, B + 1, B + 2, B + 3
            if CFG["EMU_G1"]:
                round2(e, g0, g1, tp)
            e(f"v_mul_f32 v{t0}, v{g0}, v{g0}")
            e(f"v_mul_f32 v{t1}, v{g1}, v{g1}")
            e(f"v_fma_f32 v{t0}, v{t0}, s{S_C1}, v{V_C0}")
            e(f"v_fma_f32 v{t1}, v{t1}, s{S_C1}, v{V_C0}")
            e(f"v_mul_f32 v{t0}, v{t0}, v{g0}")
            e(f"v_mul_f32 v{t1}, v{t1}, v{g1}")
            e(f"v_exp_f32 v{t0}, v{t0}")
            e(f"v_exp_f32 v{t1}, v{t1}")
            if CFG["EMU_G1"]:
                e(f"v_cvt_pk_bf16_f32 v{tq}, v{u0}, v{u1}")
            else:
                e(f"v_mul_f32 v{u0}, v{u0}, v{g0}")
            e(f"v_add_f32 v{t0}, 1.0, v{t0}")
            e(f"v_add_f32 v{t1}, 1.0, v{t1}")
            e(f"v_rcp_f32 v{t0}, v{t0}")
            e(f"v_rcp_f32 v{t1}, v{t1}")
            if CFG["EMU_G1"]:
                e(f"v_lshlrev_b32 v{u0}, 16, v{tq}")
                e(f"v_mul_f32 v{t0}, v{t0}, v{g0}")
                e(f"v_mul_f32 v{t1}, v{t1}, v{g1}")
                e(f"v_and_b32 v{u1}, s{S_MASKHI}, v{tq}")
                round2(e, t0, t1, tp)
            else:
                e(f"v_mul_f32 v{u1}, v{u1}, v{g1}")
            e(f"v_mul_f32 v{t0}, v{t0}, v{u0}")
            e(f"v_mul_f32 v{t1}, v{t1}, v{u1}")
            e(f"v_cvt_pk_bf16_f32 v{O + pr}, v{t0}, v{t1}")
        toks.append(e.vm(
            f"buffer_store_dwordx4 {vr(O)}, v{V_L16}, {srd(S_HST)}, s{T[7]} offen offset:{half * 1024} sc1"))
        if half < len(mids) and mids[half] is not None:
            mids[half](e)
    return toks


def h_flag(e, ftl, toks):
    e.wait(vm=toks)
    e(f"s_add_u32 s{T[0]}, s{S_FHOFF}, {ftl * 128}")
    return flag_store(e, T[0])


def g_path(e):
    GWR, GWU, G, TB = 128, 132, 140, 144
    gw = e.vm(f"buffer_load_dwordx4 {vr(GWR)}, v{V_L16}, {srd(S_GW)}, 0 offen")
    e(f"v_mov_b32 v{G}, 0")
    X0 = 32
    for half in range(2):
        xt = []
        for r in range(16):
            e(f"s_add_u32 s{T[1]}, s{S_XSOFF}, {(16 * half + r) * 1024}")
            xt.append(e.vm(f"buffer_load_dwordx4 {vr(X0 + 4 * r)}, v{V_L16}, {srd(S_X)}, s{T[1]} offen"))
        if half == 0:
            e.wait(vm=gw)
            for q in range(8):
                unpack(e, GWU + q, GWR + (q >> 1), q & 1)
        for r4 in range(0, 16, 4):
            e.wait(vm=xt[r4 + 3])
            accs = []
            for r in range(r4, r4 + 4):
                X = X0 + 4 * r
                tb = TB + 4 * (r - r4)
                acc = tb + 3
                for q in range(4):
                    e(f"v_lshlrev_b32 v{tb}, 16, v{X + q}")
                    e(f"v_and_b32 v{tb + 1}, s{S_MASKHI}, v{X + q}")
                    e(f"v_mul_f32 v{tb}, v{tb}, v{GWU + 2 * q}")
                    e(f"v_mul_f32 v{tb + 1}, v{tb + 1}, v{GWU + 1 + 2 * q}")
                    e(f"v_cvt_pk_bf16_f32 v{tb + 2}, v{tb}, v{tb + 1}")
                    e(f"v_lshlrev_b32 v{tb}, 16, v{tb + 2}")
                    e(f"v_and_b32 v{tb + 1}, s{S_MASKHI}, v{tb + 2}")
                    if q == 0:
                        e(f"v_add_f32 v{acc}, v{tb}, v{tb + 1}")
                    else:
                        e(f"v_add_f32 v{tb}, v{tb}, v{tb + 1}")
                        e(f"v_add_f32 v{acc}, v{acc}, v{tb}")
                accs.append(acc)
            for mod in ("row_shr:1 row_mask:0xf bank_mask:0xf bound_ctrl:0",
                        "row_shr:2 row_mask:0xf bank_mask:0xf bound_ctrl:0",
                        "row_shr:4 row_mask:0xf bank_mask:0xf bound_ctrl:0",
                        "row_shr:8 row_mask:0xf bank_mask:0xf bound_ctrl:0",
                        "row_bcast:15 row_mask:0xa bank_mask:0xf",
                        "row_bcast:31 row_mask:0xc bank_mask:0xf"):
                for acc in accs:
                    e(f"v_add_f32_dpp v{acc}, v{acc}, v{acc} {mod}")
            for i, acc in enumerate(accs):
                e(f"v_readlane_b32 s{T[2 + i]}, v{acc}, 63")
            for i, acc in enumerate(accs):
                e(f"v_writelane_b32 v{G}, s{T[2 + i]}, {16 * half + r4 + i}")
    a, b, c = TB, TB + 1, TB + 2
    e(f"v_cvt_pk_bf16_f32 v{a}, v{G}, v{G}")
    e(f"v_lshlrev_b32 v{a}, 16, v{a}")
    e(f"v_mul_f32 v{a}, {f32hex(-math.log2(math.e))}, v{a}")
    e(f"v_exp_f32 v{a}, v{a}")
    e(f"v_add_f32 v{a}, 1.0, v{a}")
    e(f"v_rcp_f32 v{a}, v{a}")
    e(f"v_cvt_pk_bf16_f32 v{a}, v{a}, v{a}")
    e(f"v_lshlrev_b32 v{a}, 16, v{a}")
    e(f"v_sub_f32 v{b}, 1.0, v{a}")
    e(f"v_cvt_pk_bf16_f32 v{a}, v{a}, v{b}")
    e(f"v_lshlrev_b32 v{c}, 2, v{V_LANE}")
    e(f"s_lshl_b32 s{T[0]}, s{S_GI}, 9")
    e(f"s_lshl_b32 s{T[1]}, s{S_WAVE}, 7")
    e(f"s_add_u32 s{T[0]}, s{T[0]}, s{T[1]}")
    e(f"s_add_u32 s{T[0]}, s{T[0]}, {WS_G:#x}")
    e("s_mov_b64 exec, 0xffffffff")
    st = e.vm(f"buffer_store_dword v{a}, v{c}, {srd(S_WS)}, s{T[0]} offen sc1")
    e("s_mov_b64 exec, -1")
    return st


def conv_hraw(e, p, nn):
    d = C_H + 20 * p + 4 * (nn % 5)
    off = p * 1536 + 16 * nn
    return [e.lg(f"ds_read_b64 {vr(d, 2)}, v{V_H} offset:{off}"),
            e.lg(f"ds_read_b64 {vr(d + 2, 2)}, v{V_H} offset:{off + 8}")]


def conv_align(e, p, nn):
    d = C_H + 20 * p + 4 * (nn % 5)
    nx = C_H + 20 * p + 4 * ((nn + 1) % 5)
    for k in range(3):
        e(f"v_alignbit_b32 v{d + k}, v{d + k + 1}, v{d + k}, v{V_SHF}")
    e(f"v_alignbit_b32 v{d + 3}, v{nx}, v{d + 3}, v{V_SHF}")


def conv_f(e, tt, delta):
    d = A_F + 16 * (tt % 2) + 4 * delta
    off = 1280 * (3 - delta) + 80 * (tt >> 2) + 16 * (tt & 3)
    return e.lg(f"ds_read_b128 {ar(d)}, v{V_F} offset:{off}")


def conv_epilogue(e):
    a, b, c, u = TMP[0], TMP[1], TMP[2], TMP[3]
    OA, OB, OC, OU = V_ET, V_ET + 1, V_ET + 2, V_ET + 3
    e(f"s_xor_b32 s{T[2]}, s{S_WAVE}, 1")
    e(f"s_lshl_b32 s{T[8]}, s{S_WAVE}, 12")
    e(f"s_add_u32 s{T[8]}, s{T[8]}, {L_EX}")
    e(f"s_lshl_b32 s{T[1]}, s{T[2]}, 12")
    e(f"s_add_u32 s{T[1]}, s{T[1]}, {L_EX}")
    e(f"v_add_u32 v{OA}, s{T[8]}, v{V_L16}")
    e(f"v_add_u32 v{OB}, s{T[1]}, v{V_L16}")
    e(f"s_and_b32 s{T[3]}, s{S_WAVE}, 1")
    A0, A1 = C_ACC, C_ACC + 16
    e(f"v_and_b32 v{OC}, 15, v{V_LANE}")
    e(f"v_sub_u32 v{OU}, 47, v{OC}")
    e(f"v_mul_u32_u24 v{OU}, 80, v{OU}")
    e(f"v_lshrrev_b32 v{TMP[4]}, 4, v{V_LANE}")
    e(f"v_lshlrev_b32 v{TMP[5]}, 3, v{TMP[4]}")
    e(f"v_sub_u32 v{OU}, v{OU}, v{TMP[5]}")
    e(f"s_lshr_b32 s{T[4]}, s{S_WAVE}, 1")
    e(f"s_mul_i32 s{T[4]}, s{T[4]}, 6400")
    e(f"s_mul_i32 s{T[5]}, s{T[3]}, 2560")
    e(f"s_sub_u32 s{T[4]}, s{T[4]}, s{T[5]}")
    e(f"s_add_u32 s{T[4]}, s{T[4]}, {L_UR + 24}")
    e(f"v_add_u32 v{OU}, s{T[4]}, v{OU}")
    e(f"v_lshlrev_b32 v{OC}, 6, v{OC}")
    e(f"v_add_u32 v{OC}, v{OC}, v{TMP[5]}")
    e(f"v_add_u32 v{OC}, s{T[8]}, v{OC}")
    e(f"s_lshl_b32 s{T[4]}, s{S_CH}, 12")
    e(f"s_lshl_b32 s{T[5]}, s{T[3]}, 11")
    e(f"s_add_u32 s{T[4]}, s{T[4]}, s{T[5]}")
    e(f"s_add_u32 s{T[4]}, s{T[4]}, {WS_Y2:#x}")
    e(f"s_cmp_eq_u32 s{T[3]}, 0")
    e("s_cbranch_scc1 L_cv_noswap")
    for q in range(16):
        e(f"v_swap_b32 v{A0 + q}, v{A1 + q}")
    e.label("L_cv_noswap")
    e("s_nop 7")
    wr = [e.lg(f"ds_write_b128 v{OB}, {vr(A1 + 4 * q)} offset:{q * 1024}") for q in range(4)]
    RX, UU, t = C_H, C_H + 16, C_H + 24
    ur = {}
    for jj in range(2):
        for bb in range(2):
            ur[(jj, bb)] = e.lg(
                f"ds_read_b64 {vr(UU + 4 * jj + 2 * bb, 2)}, v{OU} offset:{(1 - jj) * 1280 + (1 - bb) * 32}")
    e.wait(lg=wr)
    e(f"s_add_u32 s{T[9]}, s{T[2]}, 4")
    lds_set(e, f"s{T[9]}")
    e(f"s_add_u32 s{T[9]}, s{S_WAVE}, 4")
    lds_wait1(e, T[9])
    rd = [e.lg(f"ds_read_b128 {vr(RX + 4 * q)}, v{OA} offset:{q * 1024}") for q in range(4)]
    outs = []
    for q in range(4):
        jj, bb = q >> 1, q & 1
        e.wait(lg=[rd[q], ur[(jj, bb)]])
        A = A0 + 4 * q
        U = UU + 4 * jj + 2 * bb
        for r in range(4):
            e(f"v_add_f32 v{A + r}, v{A + r}, v{RX + 4 * q + r}")
        round2(e, A, A + 1, t + 4)
        round2(e, A + 2, A + 3, t + 5)
        unpack(e, t, U + 1, 1)
        unpack(e, t + 1, U + 1, 0)
        unpack(e, t + 2, U, 1)
        unpack(e, t + 3, U, 0)
        for r in range(4):
            e(f"v_mul_f32 v{t + r}, s{S_DF}, v{t + r}")
        round2(e, t, t + 1, t + 4)
        round2(e, t + 2, t + 3, t + 5)
        for r in range(4):
            e(f"v_add_f32 v{A + r}, v{A + r}, v{t + r}")
        O = A1 + 2 * q
        e(f"v_cvt_pk_bf16_f32 v{O}, v{A}, v{A + 1}")
        e(f"v_cvt_pk_bf16_f32 v{O + 1}, v{A + 2}, v{A + 3}")
        outs.append(O)
    e.wait(lg=rd)
    for q in range(4):
        e.lg(f"ds_write_b64 v{OC}, {vr(outs[q], 2)} offset:{(q >> 1) * 1024 + (q & 1) * 32}")
    r0 = e.lg(f"ds_read_b128 {vr(RX)}, v{OA}")
    r1 = e.lg(f"ds_read_b128 {vr(RX + 4)}, v{OA} offset:1024")
    e.wait(lg=[r0, r1])
    return [e.vm(f"buffer_store_dwordx4 {vr(RX)}, v{V_L16}, {srd(S_WS)}, s{T[4]} offen sc1"),
            e.vm(f"buffer_store_dwordx4 {vr(RX + 4)}, v{V_L16}, {srd(S_WS)}, s{T[4]} offen offset:1024 sc1")]


def y_flag(e, toks):
    e.wait(vm=toks)
    e(f"s_lshl_b32 s{T[0]}, s{S_U}, 4")
    e(f"s_lshl_b32 s{T[1]}, s{S_WAVE}, 2")
    e(f"s_add_u32 s{T[0]}, s{T[0]}, s{T[1]}")
    e(f"s_add_u32 s{T[0]}, s{T[0]}, {FL_Y:#x}")
    return flag_store(e, T[0])


def y_stage(e):
    a, b, c, d = TMP[0], TMP[1], TMP[2], TMP[3]
    YD, YA = 96, 104
    e(f"s_lshl_b32 s{T[13]}, s{S_N2}, 9")
    e(f"s_add_u32 s{T[13]}, s{T[13]}, {FL_Y:#x}")
    e(f"v_add_u32 v{V_PA}, s{T[13]}, v{V_L16}")
    e(f"s_lshr_b32 s{T[13]}, s{S_I2}, 1")
    e(f"s_lshl_b32 s{T[13]}, s{T[13]}, 4")
    e(f"s_add_u32 s{T[13]}, s{T[13]}, {FL_G:#x}")
    e(f"v_mov_b32 v{a}, s{T[13]}")
    e(f"v_cmp_gt_u32 vcc, 32, v{V_LANE}")
    e(f"s_mov_b32 s{T[13]}, 0")
    e(f"v_cndmask_b32 v{V_PA}, v{a}, v{V_PA}, vcc")
    e(f"v_lshrrev_b32 v{b}, 3, v0")
    e(f"v_and_b32 v{d}, 7, v0")
    e(f"v_lshlrev_b32 v{a}, 4, v{d}")
    e(f"v_lshl_add_u32 v{YA}, v{b}, 12, v{a}")
    e(f"v_lshrrev_b32 v{c}, 6, v0")
    e(f"v_xor_b32 v{c}, v{c}, v{d}")
    e(f"v_lshlrev_b32 v{c}, 4, v{c}")
    e(f"v_lshl_add_u32 v{c}, v{b}, 7, v{c}")
    e(f"v_xor_b32 v{YA + 2}, 64, v{c}")
    e(f"v_add_u32 v{YA + 1}, {L_YT}, v{c}")
    e(f"v_add_u32 v{YA + 2}, {L_YT}, v{YA + 2}")
    e(f"s_lshl_b32 s{T[2]}, s{S_N2}, 18")
    e(f"s_lshl_b32 s{T[3]}, s{S_I2}, 7")
    e(f"s_add_u32 s{T[2]}, s{T[2]}, s{T[3]}")
    e(f"s_add_u32 s{T[2]}, s{T[2]}, {WS_Y2:#x}")
    e(f"s_add_u32 s{T[3]}, s{T[2]}, {32 * 4096:#x}")
    poll_one(e, V_PA, T[13], 15, 4)
    y0 = e.vm(f"buffer_load_dwordx4 {vr(YD)}, v{YA}, {srd(S_WS)}, s{T[2]} offen sc1")
    y1 = e.vm(f"buffer_load_dwordx4 {vr(YD + 4)}, v{YA}, {srd(S_WS)}, s{T[3]} offen sc1")
    e(f"v_lshlrev_b32 v{a}, 2, v{V_LANE}")
    e(f"s_lshl_b32 s{T[2]}, s{S_I2}, 8")
    e(f"s_add_u32 s{T[2]}, s{T[2]}, {WS_G:#x}")
    g0 = e.vm(f"buffer_load_dword v{YA + 3}, v{a}, {srd(S_WS)}, s{T[2]} offen sc1")
    e(f"v_add_u32 v{a}, {L_GT}, v{a}")
    e.wait(vm=[y0, y1, g0])
    e.lg(f"ds_write_b32 v{a}, v{YA + 3}")
    e.lg(f"ds_write_b128 v{YA + 1}, {vr(YD)}")
    e.lg(f"ds_write_b128 v{YA + 2}, {vr(YD + 4)} offset:4096")


B_Q, B_G = 140, 144 + 8


def qg_loads(e):
    a = TMP[0]
    e(f"v_lshrrev_b32 v{a}, 3, v0")
    e(f"v_lshlrev_b32 v{a}, 2, v{a}")
    e(f"s_lshl_b32 s{T[0]}, s{S_I2}, 8")
    e(f"s_add_u32 s{T[0]}, s{T[0]}, {WS_G:#x}")
    return [e.vm(f"buffer_load_dwordx4 {vr(BQ)}, v{V_OUTO}, {srd(S_X)}, 0 offen")]


BQ, BG = 28, 12


def blend(e, qgt):
    a, b, c, d = TMP[0], TMP[1], TMP[2], TMP[3]
    P, Y = 32, 96
    e(f"v_lshrrev_b32 v{b}, 3, v0")
    e(f"v_and_b32 v{d}, 7, v0")
    e(f"v_mul_u32_u24 v{a}, 272, v{b}")
    e(f"v_lshl_add_u32 v{a}, v{d}, 5, v{a}")
    e(f"v_add_u32 v{TMP[4]}, {L_P2L}, v{a}")
    e(f"v_lshrrev_b32 v{c}, 6, v0")
    e(f"v_xor_b32 v{c}, v{c}, v{d}")
    e(f"v_lshlrev_b32 v{c}, 4, v{c}")
    e(f"v_lshl_add_u32 v{c}, v{d}, 10, v{c}")
    e(f"v_lshlrev_b32 v{TMP[5]}, 2, v{b}")
    e(f"v_add_u32 v{TMP[5]}, {L_GT}, v{TMP[5]}")
    e(f"v_and_b32 v{b}, 7, v{b}")
    e(f"v_lshl_add_u32 v{c}, v{b}, 1, v{c}")
    e(f"v_add_u32 v{c}, {L_YT}, v{c}")
    e.wait_all(vm=False, lg=True)
    for q in range(8):
        e(f"v_mov_b32 v{Y + q}, 0")
    e("s_barrier")
    gr = e.lg(f"ds_read_b32 v{BG}, v{TMP[5]}")
    rd = []
    for wv in range(4):
        for h in range(2):
            rd.append(e.lg(f"ds_read_b128 {vr(P + 8 * wv + 4 * h)}, v{a} offset:{wv * 17408 + h * 16}"))
    for wv in range(4):
        for h in range(2):
            rd.append(e.lg(f"ds_read_b128 {vr(P + 32 + 8 * wv + 4 * h)}, v{TMP[4]} offset:{wv * 17408 + h * 16}"))
    yr = [e.lg(f"ds_read_u16_d16_hi v{Y + cc}, v{c} offset:{cc * 128}") for cc in range(8)]
    e.wait(vm=qgt, lg=gr)
    e(f"v_lshlrev_b32 v104, 16, v{BG}")
    e(f"v_and_b32 v105, s{S_MASKHI}, v{BG}")
    for pr in range(4):
        unpack(e, 112 + 2 * pr, BQ + pr, 0)
        unpack(e, 113 + 2 * pr, BQ + pr, 1)
    for k in range(4):
        e.wait(lg=rd[4 * k:4 * k + 4])
        for r in range(8):
            e(f"v_add_f32 v{P + 16 * k + r}, v{P + 16 * k + r}, v{P + 16 * k + 8 + r}")
    for r in range(8):
        e(f"v_add_f32 v{P + r}, v{P + r}, v{P + 16 + r}")
        e(f"v_add_f32 v{P + 32 + r}, v{P + 32 + r}, v{P + 48 + r}")
    for r in range(8):
        e(f"v_add_f32 v{P + r}, v{P + r}, v{P + 32 + r}")
    e.wait(lg=yr)
    for pr in range(4):
        b0, b1 = P + 2 * pr, P + 2 * pr + 1
        q0, q1, tp, tq = 112 + 2 * pr, 113 + 2 * pr, 106 + 2 * (pr & 1), 107 + 2 * (pr & 1)
        round2(e, b0, b1, tp)
        e(f"v_mul_f32 v{q0}, v{q0}, v{Y + 2 * pr}")
        e(f"v_mul_f32 v{q1}, v{q1}, v{Y + 2 * pr + 1}")
        e(f"v_mul_f32 v{b0}, v{b0}, v105")
        e(f"v_mul_f32 v{b1}, v{b1}, v105")
        round2(e, q0, q1, tq)
        e(f"v_mul_f32 v{q0}, v{q0}, v104")
        e(f"v_mul_f32 v{q1}, v{q1}, v104")
        round2(e, b0, b1, tp)
        round2(e, q0, q1, tq)
        e(f"v_add_f32 v{b0}, v{b0}, v{q0}")
        e(f"v_add_f32 v{b1}, v{b1}, v{q1}")
        e(f"v_cvt_pk_bf16_f32 v{P + 16 + pr}, v{b0}, v{b1}")
    e.vm(f"buffer_store_dwordx4 {vr(P + 16)}, v{V_OUTO}, {srd(S_OUT)}, 0 offen")


def c_body():
    e = Em()
    if CFG["CPRIO"]:
        e(f"s_setprio {CFG['CPRIO']}")
    ptoks, mt = prep_a(e)
    stamp(e, 1)
    e(f"s_cmp_eq_u32 s{S_GJ}, 15")
    e("s_cbranch_scc1 L_c_g")
    if CFG["PINLINE"]:
        pc, pwr = prep_compute(ptoks)
        e.extend(pc)
        misc_use(e, mt, False)
        prep_rb_addr(e)
        e.wait(lg=pwr)
    e("s_barrier")
    NK = 32
    gaps = [Em() for _ in range(6 * NK)]
    trtok, xf = {}, {}
    xf[0] = x_fr(e, 0)
    for idx in range(6):
        trtok[(0, idx)] = w_tr(e, 0, idx)
    stamp(e, 2)
    if CFG["PINLINE"]:
        PB = -1
        prd = prep_readback(gaps[0])
        pst = prep_store(gaps[4], prd)
        prep_flag(gaps[6 * 8 + 2], pst)
    else:
        pc, pwr = prep_compute(ptoks)
        PB = CFG["PB"]
        spread(gaps, pc.L, 6 * CFG["PC0"], 6 * PB - 2)
        prep_rb_addr(gaps[6 * PB])
        prd = prep_readback(gaps[6 * PB + 1])
        misc_use(gaps[6 * PB + 3], mt, False)
        pst = prep_store(gaps[6 * PB + 5], prd)
        prep_flag(gaps[6 * (PB + 7) + 2], pst)
    for T_ in range(1, NK):
        xf[T_] = x_fr(gaps[6 * (T_ - 1)], T_)
        for idx in range(6):
            trtok[(T_, idx)] = w_tr(gaps[6 * (T_ - 1) + idx], T_, idx)
    for T_ in range(NK):
        if T_ in (8, 16, 24):
            stamp(e, 2 + T_ // 8)
        last = (T_ % 4 == 3) and T_ < NK - 5
        if T_ == 27 and CFG["S7F"]:
            lds_wait4(e, 32)
        if last:
            e.wait(lg=[t for idx in range(6) for t in trtok[(T_, idx)]] + [xf[T_]] + (pwr if T_ == PB else []))
            e("s_barrier")
        else:
            e.wait(lg=trtok[(T_, 0)] + trtok[(T_, 1)] + [xf[T_]])
        for idx in range(6):
            ft, mat = idx >> 1, idx & 1
            A = ACC_OF[ft] + 16 * mat
            if idx in (2, 4):
                e.wait(lg=trtok[(T_, idx)] + trtok[(T_, idx + 1)])
            c = "0" if T_ == 0 else vr(A, 16)
            e(f"v_mfma_f32_32x32x16_bf16 {vr(A, 16)}, {ar(A_WF + 24 * (T_ % 2) + 4 * idx)}, "
              f"{ar(A_XF + 4 * (T_ % 2))}, {c}")
            e.extend(gaps[6 * T_ + idx])
    e("s_branch L_c_join")
    e.label("L_c_g")
    ge = Em()
    ge.wait_all()
    gpc, gwr = prep_compute([])
    ge.extend(gpc)
    misc_use(ge, [], False)
    prep_rb_addr(ge)
    ge.wait_all()
    ge("s_barrier")
    gps = prep_store(ge, prep_readback(ge))
    ge(f"s_add_u32 s{T[9]}, s{S_WAVE}, 8")
    lds_set(ge, f"s{T[9]}")
    prep_flag(ge, gps)
    for ftl in range(3):
        h_flag(ge, ftl, [])
    g_path(ge)
    ge.wait_all()
    ge(f"s_lshl_b32 s{T[0]}, s{S_GI}, 4")
    ge(f"s_lshl_b32 s{T[1]}, s{S_WAVE}, 2")
    ge(f"s_add_u32 s{T[0]}, s{T[0]}, s{T[1]}")
    ge(f"s_add_u32 s{T[0]}, s{T[0]}, {FL_G:#x}")
    flag_store(ge, T[0])
    ge.wait_all()
    ge("s_branch L_c_join2")
    e.L.append(("SUB", ge))
    e.label("L_c_join")
    stamp(e, 6)
    e(f"s_add_u32 s{T[9]}, s{S_WAVE}, 8")
    lds_set(e, f"s{T[9]}")
    ht, wtr, wdt, hl = {}, {}, {}, {}
    ht[0] = g1_epilogue(e, 0)
    f0 = lambda em: h_flag(em, 0, ht[0])
    f1 = lambda em: h_flag(em, 1, ht[1])
    ht[1] = g1_epilogue(e, 1, mids=(None, f0) if CFG["FLATE"] else (f0,))
    stamp(e, 7)
    ht[2] = g1_epilogue(e, 2, mids=(None, f1) if CFG["FLATE"] else (f1,))
    e.label("L_c_join2")
    stamp(e, 8)
    e(f"s_add_u32 s{T[9]}, s{S_WAVE}, 24")
    lds_wait1(e, T[9])
    for m in range(5):
        wtr[m] = wd_tr(e, m, CW_SET[m])
    h_flag(e, 2, ht[2])
    h_poll(e, 0)
    stamp(e, 9)
    for m in range(3):
        hl[m] = h_loads(e, m, CH_SET[m], S_XM0)
    for n in (5, 6):
        wdt[n] = wd_dma(e, n, n - 5)
    stamp(e, 10)
    h_poll(e, 1)
    for m in range(3, 5):
        hl[m] = h_loads(e, m, CH_SET[m], S_XM0)
    stamp(e, 11)
    for m in range(7):
        g2_slot(e, m == 0, CW_SET[m % 5], CH_SET[m % 5], hl[m], wtr[m], "a", 0)
        n = m + 5
        if n < 7:
            hl[n] = h_loads(e, n, CH_SET[n % 5], S_XM0)
            e.wait(vm=wdt[n])
            wtr[n] = wd_tr(e, n % 5, CW_SET[n % 5])
        if m == 2:
            e.wait(lg=wtr[6])
            e(f"s_add_u32 s{T[9]}, s{S_WAVE}, 20")
            lds_set(e, f"s{T[9]}")
    stamp(e, 12)
    qgt = qg_loads(e)
    lds_wait4(e, 20)
    e(f"s_mul_i32 s{T[9]}, s{S_WAVE}, 17408")
    partials(e, f"s{T[9]}", "a", 0)
    lds_wait4(e, 28)
    stamp(e, 13)
    y_stage(e)
    stamp(e, 14)
    blend(e, qgt)
    stamp(e, 15)
    e("s_branch L_fin")
    return e


def l_addr(e):
    a, b, c = TMP[0], TMP[1], TMP[2]
    e(f"s_mov_b32 s{T[0]}, 0x5556")
    for i in range(3):
        e(f"v_add_u32 v{a}, {64 * i}, v{V_LANE}")
        e(f"v_mul_u32_u24 v{b}, s{T[0]}, v{a}")
        e(f"v_lshrrev_b32 v{b}, 18, v{b}")
        e(f"v_mul_u32_u24 v{c}, 12, v{b}")
        e(f"v_sub_u32 v{a}, v{a}, v{c}")
        e(f"v_lshlrev_b32 v{a}, 4, v{a}")
        e(f"v_mul_u32_u24 v{b}, 2752, v{b}")
        e(f"v_add_u32 v{V_WDMA + i}, v{a}, v{b}")
        if i:
            e(f"v_subrev_u32 v{V_WDMA + i}, {1024 * i}, v{V_WDMA + i}")
    e(f"s_mul_i32 s{S_WSOFF}, s{S_GJ}, 192")
    e(f"s_mul_i32 s{T[0]}, s{S_WAVE}, {16 * 2752}")
    e(f"s_add_u32 s{S_WSOFF}, s{S_WSOFF}, s{T[0]}")
    e(f"v_lshrrev_b32 v{a}, 3, v{V_LANE}")
    e(f"v_lshlrev_b32 v{a}, 10, v{a}")
    e(f"v_and_b32 v{b}, 7, v{V_LANE}")
    e(f"v_lshl_add_u32 v{V_XDMA}, v{b}, 4, v{a}")
    for m in range(1, 4):
        e(f"v_add_u32 v{V_XDMA + m}, {m * (8192 - 1040)}, v{V_XDMA}")
    e(f"s_lshl_b32 s{S_RHO}, s{S_GJ}, 1")
    e(f"s_add_u32 s{S_RHO}, s{S_RHO}, s{S_GI}")
    e(f"s_and_b32 s{S_RHO}, s{S_RHO}, {CFG['ROT']}")
    e(f"s_mul_i32 s{S_WRB}, s{S_WAVE}, 3072")
    e(f"s_mul_i32 s{S_XM0}, s{S_WAVE}, 4160")


def l_addr2(e):
    a, b, c = TMP[0], TMP[1], TMP[2]
    e(f"v_and_b32 v{V_T}, 255, v0")
    e(f"s_and_b32 s{T[1]}, s{S_WAVE}, 1")
    e(f"s_lshl_b32 s{T[2]}, s{S_CH}, 12")
    e(f"s_lshl_b32 s{T[3]}, s{T[1]}, 2")
    e(f"s_add_u32 s{T[2]}, s{T[2]}, s{T[3]}")
    e(f"s_sub_u32 s{T[2]}, s{T[2]}, 64")
    e(f"s_mov_b32 s{T[1]}, 0xaaab")
    for phi in range(3):
        e(f"v_add_u32 v{a}, {phi * 64}, v{V_LANE}")
        e(f"v_mul_u32_u24 v{b}, s{T[1]}, v{a}")
        e(f"v_lshrrev_b32 v{b}, 20, v{b}")
        e(f"v_mul_u32_u24 v{c}, 24, v{b}")
        e(f"v_sub_u32 v{c}, v{a}, v{c}")
        e(f"v_lshlrev_b32 v{c}, 4, v{c}")
        e(f"v_lshl_add_u32 v{c}, v{b}, 8, v{c}")
        e(f"v_add_u32 v{V_HC + phi}, s{T[2]}, v{c}")
        e(f"v_add_u32 v{V_HC + 3 + phi}, 2048, v{V_HC + phi}")
    wd_addr(e, 1)
    out_addr(e)


def stage_dma(e, n):
    toks = []
    base = PHYS[n % 3]
    e(f"s_add_u32 s{T[4]}, s{S_RHO}, {n}")
    e(f"s_and_b32 s{T[4]}, s{T[4]}, 7")
    e(f"s_lshl_b32 s{T[5]}, s{T[4]}, 7")
    e(f"s_add_u32 s{T[5]}, s{T[5]}, s{S_XSOFF}")
    e(f"s_mul_i32 s{T[4]}, s{T[4]}, {64 * 2752}")
    e(f"s_add_u32 s{T[4]}, s{T[4]}, s{S_WSOFF}")
    e(f"s_add_u32 m0, s{S_XM0}, {base + 24576}")
    e("s_nop 0")
    for m in range(4):
        toks.append(e.vm(f"buffer_load_dwordx4 v{V_XDMA + m}, {srd(S_X)}, s{T[5]} offen offset:{m * 1040} lds"))
    for mat, sr in ((0, S_WG), (1, S_WU)):
        e(f"s_add_u32 m0, s{S_WRB}, {base + mat * 12288}")
        e("s_nop 0")
        for i in range(3):
            toks.append(e.vm(f"buffer_load_dwordx4 v{V_WDMA + i}, {srd(sr)}, s{T[4]} offen offset:{1024 * i} lds"))
    return toks


def hc_dma(e):
    toks = []
    e(f"s_mul_i32 s{T[8]}, s{S_WAVE}, 6208")
    for q in range(6):
        e(f"s_add_u32 m0, s{T[8]}, {L_HC + q * 1024}")
        e("s_nop 0")
        toks.append(e.vm(f"buffer_load_dwordx4 v{V_HC + q}, {srd(S_SSM)}, 0 offen lds"))
    e(f"s_lshl_b32 s{T[8]}, s{S_CH}, 12")
    e(f"v_mov_b32 v{TMP[4]}, 0")
    toks.append(e.vm(f"buffer_load_dword v{V_H01}, v{TMP[4]}, {srd(S_SSM)}, s{T[8]} offen"))
    return toks


def hc_fix(e, toks):
    a, b = TMP[4], TMP[5]
    e.wait(vm=toks)
    e(f"s_and_b32 s{T[8]}, s{S_WAVE}, 1")
    e(f"s_cmp_eq_u32 s{T[8]}, 1")
    e(f"s_cselect_b32 s{T[9]}, 15, 99")
    e(f"v_cmp_eq_u32 vcc, s{T[9]}, v{V_LANE}")
    e(f"s_mul_i32 s{T[8]}, s{S_WAVE}, 6208")
    e(f"s_add_u32 s{T[8]}, s{T[8]}, {L_HC}")
    e(f"v_cndmask_b32 v{a}, 0, v{V_H01}, vcc")
    e(f"v_lshlrev_b32 v{b}, 2, v{V_LANE}")
    e(f"v_add_u32 v{b}, s{T[8]}, v{b}")
    e("s_mov_b64 exec, 0xffff")
    t = e.lg(f"ds_write_b32 v{b}, v{a}")
    e("s_mov_b64 exec, -1")
    return t


K_D, K_A, K_Z = 144, 152, 156


def ur_zero(e):
    a = TMP[4]
    for q in range(4):
        e(f"v_mov_b32 v{K_Z + q}, 0")
    e(f"v_lshlrev_b32 v{a}, 4, v{V_T}")
    e(f"v_add_u32 v{a}, {L_UR}, v{a}")
    e(f"v_cmp_gt_u32 vcc, 80, v{V_T}")
    e(f"s_and_saveexec_b64 s[{S_EXSAVE}:{S_EXSAVE + 1}], vcc")
    e.lg(f"ds_write_b128 v{a}, {vr(K_Z)} offset:5120")
    e.lg(f"ds_write_b128 v{a}, {vr(K_Z)} offset:{6400 + 5120}")
    e("s_mov_b64 exec, -1")


def kv_poll_issue(e):
    e(f"v_and_b32 v{V_PA}, 31, v{V_LANE}")
    e(f"v_lshlrev_b32 v{V_PA}, 4, v{V_PA}")
    e(f"s_lshr_b32 s{T[10]}, s{S_U}, 5")
    e(f"s_lshl_b32 s{T[10]}, s{T[10]}, 9")
    e(f"s_add_u32 s{T[10]}, s{T[10]}, {FL_P:#x}")
    return None


def kv_load(e, tok, slp=None):
    poll_one(e, V_PA, T[10], 14, slp)
    e(f"v_lshlrev_b32 v{K_A}, 4, v{V_T}")
    e(f"s_lshl_b32 s{T[11]}, s{S_U}, 13")
    e(f"s_add_u32 s{T[11]}, s{T[11]}, {WS_KV:#x}")
    e(f"s_add_u32 s{T[12]}, s{T[11]}, 4096")
    return [e.vm(f"buffer_load_dwordx4 {vr(K_D)}, v{K_A}, {srd(S_WS)}, s{T[11]} offen sc1"),
            e.vm(f"buffer_load_dwordx4 {vr(K_D + 4)}, v{K_A}, {srd(S_WS)}, s{T[12]} offen sc1")]


def kv_write(e, toks):
    e(f"v_lshrrev_b32 v{K_A}, 2, v{V_T}")
    e(f"v_mul_u32_u24 v{K_A}, 80, v{K_A}")
    e(f"v_and_b32 v{K_A + 1}, 3, v{V_T}")
    e(f"v_lshl_add_u32 v{K_A}, v{K_A + 1}, 4, v{K_A}")
    e(f"v_add_u32 v{K_A}, {L_UR}, v{K_A}")
    e.wait(vm=toks)
    return [e.lg(f"ds_write_b128 v{K_A}, {vr(K_D)}"),
            e.lg(f"ds_write_b128 v{K_A}, {vr(K_D + 4)} offset:6400")]


def touch_loads(e):
    b = TMP[1]
    e(f"s_and_b32 s{T[0]}, s{S_I2}, 7")
    e(f"s_lshl_b32 s{T[0]}, s{T[0]}, 2")
    e(f"s_add_u32 s{T[0]}, s{T[0]}, s{S_WAVE}")
    e(f"s_lshl_b32 s{T[0]}, s{T[0]}, 16")
    e(f"s_lshl_b32 s{T[1]}, s{S_N2}, 7")
    e(f"s_add_u32 s{T[0]}, s{T[0]}, s{T[1]}")
    e(f"v_lshlrev_b32 v{b}, 10, v{V_LANE}")
    e.vm(f"buffer_load_dword v12, v{b}, {srd(S_WD)}, s{T[0]} offen")


def wd_dma(e, m, buf):
    toks = []
    e(f"s_add_u32 m0, s{S_WDBASE}, {buf * 16384}")
    e(f"s_lshl_b32 s{T[8]}, s{S_FT + m}, 4")
    for q in range(4):
        toks.append(e.vm(f"buffer_load_dwordx4 v{V_WDDMA + q}, {srd(S_WD)}, s{T[8]} offen offset:{q * 1024} lds"))
    return toks


def wd_tr(e, buf, kr):
    toks = []
    k, r0 = kr
    base, vb = buf * 16384, (V_WDTR, V_WDTR + 1)
    if buf == 4:
        e(f"v_add_u32 v{TMP[2]}, 0x10000, v{V_WDTR}")
        e(f"v_add_u32 v{TMP[3]}, 0x10000, v{V_WDTR + 1}")
        base, vb = 0, (TMP[2], TMP[3])
    for half in range(2):
        for dt in range(2):
            r = r0 + 4 * (half * 2 + dt)
            for q in range(2):
                toks.append(e.lg(
                    f"ds_read_b64_tr_b16 {rr(k, r + 2 * q, 2)}, v{vb[dt]} offset:{base + (16 * half + 8 * q) * 128}"))
    return toks


def h_poll(e, level):
    e(f"v_and_b32 v{V_PA}, 7, v{V_LANE}")
    e(f"v_lshlrev_b32 v{V_PA}, 4, v{V_PA}")
    e(f"s_lshl_b32 s{T[13]}, s{S_I2}, 9")
    e(f"s_add_u32 s{T[13]}, s{T[13]}, {FL_H + 128 * level:#x}")
    poll_one(e, V_PA, T[13], (12, 16, 13)[level], 4)


def h_loads(e, m, kr, sbase):
    toks = {}
    k, r0 = kr
    for st in range(2):
        e(f"s_add_u32 s{T[9]}, s{sbase}, s{S_FT + m}")
        if st:
            e(f"s_add_u32 s{T[9]}, s{T[9]}, {43 * 2048}")
        if m == 10:
            e(f"s_cmp_eq_u32 s{S_WAVE}, 3")
            e(f"s_cselect_b32 s{T[9]}, {WS_SIZE:#x}, s{T[9]}")
        for half in range(2):
            r = r0 + 4 * (st * 2 + half)
            toks[(st, half)] = e.vm(
                f"buffer_load_dwordx4 {rr(k, r, 4)}, v{V_L16}, {srd(S_WS)}, s{T[9]} offen offset:{half * 1024} sc1")
    return toks


def g2_slot(e, first, wk, hk, ht, wtr, acck, acc0):
    ka, ra0 = wk
    kb, rb0 = hk
    for half in range(2):
        for stt in range(2):
            e.wait(vm=ht[(stt, half)], lg=wtr if (half == 0 and stt == 0) else None)
            for dt in range(2):
                acc = rr(acck, acc0 + 32 * dt + 16 * stt, 16)
                c = "0" if (first and half == 0) else acc
                e(f"v_mfma_f32_32x32x16_bf16 {acc}, {rr(ka, ra0 + 4 * (half * 2 + dt), 4)}, "
                  f"{rr(kb, rb0 + 4 * (stt * 2 + half), 4)}, {c}")


def partials(e, sbase_expr, acck, acc0):
    a, b = TMP[0], TMP[1]
    e(f"v_and_b32 v{a}, 31, v{V_LANE}")
    e(f"v_mul_u32_u24 v{a}, 272, v{a}")
    e(f"v_lshrrev_b32 v{b}, 5, v{V_LANE}")
    e(f"v_lshl_add_u32 v{a}, v{b}, 4, v{a}")
    e(f"v_add_u32 v{a}, {sbase_expr}, v{a}")
    e("s_nop 7")
    for dt in range(2):
        for stt in range(2):
            for q in range(4):
                e.lg(f"ds_write_b128 v{a}, {rr(acck, acc0 + 32 * dt + 16 * stt + 4 * q, 4)} "
                     f"offset:{stt * 32 * 272 + dt * 128 + q * 32}")


def epoch_cond(e, lbl):
    e(f"s_lshl_b32 s{T[0]}, s{S_GI}, 2")
    e(f"s_add_u32 s{T[0]}, s{T[0]}, s{S_WAVE}")
    e(f"s_lshl_b32 s{T[0]}, s{T[0]}, 4")
    e(f"s_add_u32 s{T[0]}, s{T[0]}, s{S_GJ}")
    e(f"s_cmp_lg_u32 s{T[0]}, 15")
    e(f"s_cbranch_scc1 {lbl}")


def epoch_finish(e):
    epoch_cond(e, "L_noep2")
    for q in range(4):
        e(f"s_mov_b32 s{T[1]}, {FL_P + q * 1024:#x}")
        e(f"buffer_load_dwordx4 {vr(96 + 4 * q)}, v{V_L16}, {srd(S_WS)}, s{T[1]} offen sc1")
    e("s_waitcnt vmcnt(0)")
    for q in range(4):
        e(f"s_mov_b32 s{T[10]}, {FL_P + q * 1024:#x}")
        poll_check(e, None, V_L16, T[10], 96 + 4 * q, 20)
    e(f"s_sub_u32 s{T[0]}, s{S_TAG}, {TAGK - 1:#x}")
    e(f"v_mov_b32 v{TMP[0]}, s{T[0]}")
    e(f"v_mov_b32 v{TMP[1]}, 0")
    e(f"s_mov_b32 s{T[1]}, {FL_EPOCH:#x}")
    e("s_mov_b64 exec, 1")
    e(f"buffer_store_dword v{TMP[0]}, v{TMP[1]}, {srd(S_WS)}, s{T[1]} offen sc1")
    e("s_mov_b64 exec, -1")
    e.label("L_noep2")


def conv_staging(e, hct, slp=None):
    pt = kv_poll_issue(e)
    ur_zero(e)
    kt = kv_load(e, pt, slp)
    hc_fix(e, hct)
    return kt


def l_body():
    e = Em()
    e.label("L_loader")
    l_addr(e)
    e(f"v_lshlrev_b32 v{TMP[0]}, 2, v{V_LANE}")
    e(f"v_add_u32 v{TMP[0]}, {L_FL}, v{TMP[0]}")
    e(f"v_mov_b32 v{TMP[1]}, 0")
    e.wait_all(vm=False, lg=True)
    e.lg(f"ds_write_b32 v{TMP[0]}, v{TMP[1]}")
    stamp(e, 0)
    e(f"s_cmp_eq_u32 s{S_GJ}, 15")
    e("s_cbranch_scc1 L_l_g")
    st = {}
    for n in range(CFG["PRE"]):
        st[n] = stage_dma(e, n)
    stamp(e, 1)
    for n in range(7):
        e.wait(vm=st[n] if (n < 6 or CFG['S7F']) else st[7])
        e.wait_all(vm=False, lg=True)
        e("s_barrier")
        if n in (0, 4):
            stamp(e, 2 + n // 4)
        for k in range(n + 1, min(n + 3, 8)):
            if k not in st:
                st[k] = stage_dma(e, k)
        if n == 0:
            mt = misc_loads(e, True)
            l_addr2(e)
        if n == 2:
            misc_use(e, mt, True)
        if n == 3 and CFG["TOUCH"]:
            touch_loads(e)
        if n == 5:
            hct = hc_dma(e)
            conv_addr(e)
            kv_poll_issue(e)
            ur_zero(e)
    if CFG["S7F"]:
        e.wait(vm=st[7])
        e(f"s_add_u32 s{T[9]}, s{S_WAVE}, 32")
        lds_set(e, f"s{T[9]}")
    e("s_branch L_l_join")
    e.label("L_l_g")
    ge = Em()
    misc_loads(ge, True)
    l_addr2(ge)
    ge.wait_all()
    ge("s_barrier")
    misc_use(ge, [], True)
    hc_dma(ge)
    conv_addr(ge)
    lds_wait4(ge, 8)
    ge("s_sleep 100")
    kv_poll_issue(ge)
    ur_zero(ge)
    ge.wait_all()
    e.L.append(("SUB", ge))
    e.label("L_l_join")
    stamp(e, 4)
    kt = kv_load(e, None)
    lwt = {}
    lw = {0: wd_dma(e, 7, 0), 1: wd_dma(e, 8, 1)}
    hc_fix(e, hct)
    kv_write(e, kt)
    e.wait_all(vm=False, lg=True)
    lds_set(e, f"s{S_WAVE}")
    if CFG["LPRIO"] and CFG["PRIO_AT"] == 0:
        e(f"s_setprio {CFG['LPRIO']}")
    lds_wait4(e, 0)
    stamp(e, 5)
    hr, ft = {}, {}
    for nn in range(4):
        for p in range(4):
            hr[(p, nn)] = conv_hraw(e, p, nn)
    for dl in range(4):
        ft[(0, dl)] = conv_f(e, 0, dl)
    for nn in range(3):
        for p in range(4):
            e.wait(lg=hr[(p, nn)] + hr[(p, nn + 1)][:1])
            conv_align(e, p, nn)
    stamp(e, 6)
    cg = [Em() for _ in range(160)]
    for tt in range(8):
        g0 = 20 * tt
        if tt + 4 <= 10:
            for p in range(4):
                hr[(p, tt + 4)] = conv_hraw(cg[g0 + p], p, tt + 4)
        if tt + 1 < 8:
            for dl in range(4):
                ft[(tt + 1, dl)] = conv_f(cg[g0 + 4 + dl], tt + 1, dl)
            g = cg[g0 + 11]
            g.wait(lg=[t for p in range(4) for t in hr[(p, tt + 3)] + hr[(p, tt + 4)][:1]])
            for p in range(4):
                conv_align(cg[g0 + 11 + 2 * p], p, tt + 3)
    G0, G1, G2, G3, G4 = CFG["LG"]
    g = cg[G0]
    for i in range(2):
        g.wait(vm=lw[i])
        lwt[i] = wd_tr(g, i, LW_SET[i])
    g = cg[G1]
    g.wait(lg=lwt[1])
    cw = wd_dma(g, 0, 0) + wd_dma(cg[G1 + 3], 1, 1)
    g = cg[G2]
    lds_wait4(g, 8)
    lw[2] = wd_dma(g, 9, 2)
    lw[3] = wd_dma(cg[G2 + 3], 10, 3)
    cw += wd_dma(cg[G2 + 6], 4, 4)
    g = cg[G3]
    for i in range(2, 4):
        g.wait(vm=lw[i])
        lwt[i] = wd_tr(g, i, LW_SET[i])
    g = cg[G3 + 6]
    g.wait(lg=lwt[3])
    cw += wd_dma(g, 2, 2) + wd_dma(cg[G3 + 9], 3, 3)
    g = cg[G4]
    g.wait(vm=cw)
    g(f"s_add_u32 s{T[9]}, s{S_WAVE}, 24")
    lds_set(g, f"s{T[9]}")
    for tt in range(8):
        idx = 0
        if tt == 4:
            stamp(e, 7)
        if CFG["LPRIO"] and CFG["PRIO_AT"] and tt == CFG["PRIO_AT"]:
            e(f"s_setprio {CFG['LPRIO']}")
        for dl in range(4):
            e.wait(lg=ft[(tt, dl)])
            for p in range(4 - dl):
                j = p + dl
                for bb in range(2):
                    acc = C_ACC + 8 * j + 4 * bb
                    h = C_H + 20 * p + 4 * ((tt + 2 * bb) % 5)
                    f = A_F + 16 * (tt % 2) + 4 * dl
                    c = "0" if (tt == 0 and dl == 0) else vr(acc)
                    e(f"v_mfma_f32_16x16x32_bf16 {vr(acc)}, {vr(h)}, {ar(f)}, {c}")
                    e.extend(cg[20 * tt + idx])
                    idx += 1
    stamp(e, 8)
    lds_wait4(e, 8)
    yst = conv_epilogue(e)
    e.wait_all(vm=False, lg=True)
    e(f"s_add_u32 s{T[9]}, s{S_WAVE}, 28")
    lds_set(e, f"s{T[9]}")
    y_flag(e, yst)
    if CFG["LPRIO"]:
        e("s_setprio 0")
    stamp(e, 9)
    lds_wait1i(e, 12)
    lds_wait1i(e, 16)
    h_poll(e, 2)
    hl = {}
    for i in range(4):
        hl[i] = h_loads(e, 7 + i, LH_SET[i], S_HOFF)
    qgt = qg_loads(e)
    stamp(e, 10)
    for i in range(4):
        g2_slot(e, i == 0, LW_SET[i], LH_SET[i], hl[i], lwt[i], "v", 32)
    stamp(e, 11)
    lds_wait4(e, 28)
    e(f"s_mul_i32 s{T[9]}, s{S_WAVE}, 17408")
    e(f"s_add_u32 s{T[9]}, s{T[9]}, {L_P2L}")
    partials(e, f"s{T[9]}", "v", 32)
    stamp(e, 12)
    blend(e, qgt)
    stamp(e, 15)
    epoch_finish(e)
    return e


def resolve_sub(ge):
    own = {id(i) for i in ge.L}
    L = []
    for i in ge.L:
        if i.kind == "wait":
            L.append(Ins("", "wait", [t for t in i.vm if id(t) in own], [t for t in i.lg if id(t) in own]))
        else:
            L.append(i)
    return resolve_waits(L)


def flatten(e):
    subs, L = {}, []
    for i in e.L:
        if isinstance(i, tuple):
            key = f";;SUB{len(subs)}"
            subs[key] = i[1]
            L.append(Ins(key))
        else:
            L.append(i)
    out = []
    for ln in resolve_waits(L):
        if ln in subs:
            out.extend(resolve_sub(subs[ln]))
        else:
            out.append(ln)
    return out


def emit(path):
    _lbl[0] = 0
    e0 = Em()
    setup(e0)
    lines = flatten(e0) + flatten(c_body()) + flatten(l_body())
    lines, npad = pad_hazards(lines)
    hdr = open("gated_mix__ssm_conv_h3__geglu_ffn__prompt.s.ref").read().split("; @launch")[0]
    txt = hdr
    txt += f"; @launch grid=(256,1,1) block=(512,1,1) lds={LDS_SIZE}\n"
    txt += '.amdgcn_target "amdgcn-amd-amdhsa--gfx950"\n.text\n'
    txt += f".globl {KNAME}\n.p2align 8\n.type {KNAME},@function\n{KNAME}:\n"
    for ln in lines:
        txt += ("" if ln.endswith(":") else "    ") + ln + "\n"
    txt += "L_fin:\nL_end:\n    s_endpgm\n"
    txt += f""".section .rodata,"a"
.p2align 6
.amdhsa_kernel {KNAME}
  .amdhsa_next_free_vgpr 256
  .amdhsa_next_free_sgpr 102
  .amdhsa_accum_offset 160
  .amdhsa_group_segment_fixed_size 0
  .amdhsa_kernarg_size 112
  .amdhsa_user_sgpr_count 2
  .amdhsa_user_sgpr_kernarg_segment_ptr 1
  .amdhsa_system_sgpr_workgroup_id_x 1
.end_amdhsa_kernel
"""
    open(path, "w").write(txt)
    return len(lines), npad


if __name__ == "__main__":
    out = sys.argv[1] if len(sys.argv) > 1 else "k6.s"
    for a in sys.argv[2:]:
        k, v = a.split("=")
        CFG[k] = eval(v)
    print(emit(out))
```

```python
import sys, struct, math
sys.path.insert(0, "work")
from asmlib import Em, Ins, resolve_waits, pad_hazards

KNAME = "gated_mix__ssm_conv_h3__geglu_ffn__prompt_kernel"

CFG = dict(EMU_PREP=True, EMU_G1=True, STAMPS=False, POLL_MAX=200000, ROT=7, SLEEP=8, TOUCH=True,
           KV_AFTER=5, CPRIO=0, PRE=2, LPRE=True, LPRIO=2, PDELAY=0, DBGW=0, S7F=True, LG=(9, 18, 29, 69, 118), FLATE=False, PINLINE=True, CWF=29, TOUCH2=False, TDELAY=0, PC0=4, PB=15, PRIO_AT=0)

WS_KV = 0x600000
WS_Y2 = 0x800000
WS_G = 0xA00000
WS_FLG = 0xB00000
FL_EPOCH = WS_FLG
FL_P = WS_FLG + 0x1000
FL_H = WS_FLG + 0x2000
FL_Y = WS_FLG + 0x8000
FL_G = WS_FLG + 0xA000
WS_STAMP = 0xC00000
WS_SIZE = 0x10000000
TAGK = 0x9E3779B9

SLOT = 41216
PHYS = {2: 0, 0: SLOT, 1: 2 * SLOT}
L_WDB = 0
WDB_STRIDE = 20608
L_LWD = 2 * SLOT
L_EX = 2 * SLOT + 16384
L_P2L = 2 * SLOT
L_YT = 2 * SLOT + 4 * 17408
L_HC = 123648
L_UR = 148480
L_PT = 148480
L_SH = 161280
L_FL = 162304
L_GT = 162816
LDS_SIZE = 163840

S_X, S_K, S_V, S_SH, S_SSM, S_WG, S_WU, S_WD, S_GW, S_OUT, S_WS, S_HST, S_DD = [4 + 4 * i for i in range(13)]
S_WAVE, S_GI, S_GJ, S_I2, S_N2, S_TAG = 56, 57, 58, 59, 60, 61
T = list(range(62, 76))
S_C1, S_MASKHI = 76, 77
S_EXSAVE = 78
S_WSOFF, S_XSOFF, S_XM0, S_HOFF, S_FHOFF, S_CH, S_POLL, S_U, S_DF = 80, 81, 82, 83, 84, 85, 86, 87, 88
S_WDBASE = 89
S_RHO, S_WRB = 3, 2
S_FT = 90
S_STI = 101


def srd(b): return f"s[{b}:{b + 3}]"
def vr(b, n=4): return f"v[{b}:{b + n - 1}]"
def ar(b, n=4): return f"a[{b}:{b + n - 1}]"
def rr(k, b, n): return f"{k}[{b}:{b + n - 1}]"
def f32hex(x): return "0x%08x" % struct.unpack("<I", struct.pack("<f", x))[0]


V_LANE, V_L16 = 1, 2
TMP = [13, 14, 15, 16, 17, 18]
V_PA = 19
V_PD = 20
V_EPO, V_H01, V_OUTO, V_T = 24, 25, 26, 27
V_WTR = 3
V_XRD = 6
V_C0 = 9
ACC_OF = {0: 96, 1: 64, 2: 32}
V_ET = 144
A_WF = 0
A_XF = 48
P_K, P_V, P_SH, P_AD, P_T = 32, 52, 60, 76, 84
V_WDMA = 3
V_XDMA = 6
V_F, V_H, V_SHF = 3, 4, 5
V_HC = 32
C_ACC, C_H = 32, 64
A_F = 0
V_WDDMA = 28
V_WDTR = 10
CW_SET = [("v", 96), ("v", 112), ("v", 64), ("v", 80), ("v", 32)]
CH_SET = [("a", 64), ("a", 80), ("v", 128), ("v", 48), ("v", 144)]
LW_SET = [("a", 32), ("a", 48), ("a", 64), ("a", 80)]
LH_SET = [("v", 96), ("v", 112), ("v", 128), ("v", 144)]


_lbl = [0]


def stamp(e, idx):
    if not CFG["STAMPS"] or (CFG["STAMPS"] == 2 and idx not in (0, 15)):
        return
    if CFG["STAMPS"] == 3:
        n = _lbl[0]
        _lbl[0] += 1
        e.wait_all(vm=False, lg=True)
        e(f"s_cmp_lg_u32 s{S_STI}, {CFG['DBGW']}")
        e(f"s_cbranch_scc1 L_st{n}")
        e(f"s_load_dwordx2 s[{S_EXSAVE}:{S_EXSAVE + 1}], s[0:1], 96")
        e("s_memrealtime vcc")
        e("s_waitcnt lgkmcnt(0)")
        e(f"v_mov_b32 v{TMP[0]}, vcc_lo")
        e(f"v_mov_b32 v{TMP[1]}, 0")
        e("s_mov_b64 exec, 1")
        e(f"global_store_dword v{TMP[1]}, v{TMP[0]}, s[{S_EXSAVE}:{S_EXSAVE + 1}] offset:{idx * 4}")
        e("s_mov_b64 exec, -1")
        e.label(f"L_st{n}")
        return
    e.wait_all(vm=False, lg=True)
    e("s_memrealtime s[0:1]")
    e(f"s_memtime s[{S_EXSAVE}:{S_EXSAVE + 1}]")
    e.wait_all(vm=False, lg=True)
    e(f"v_mov_b32 v{TMP[0]}, s0")
    e(f"v_mov_b32 v{TMP[1]}, s{S_STI}")
    e(f"v_mov_b32 v{TMP[2]}, s{S_EXSAVE}")
    e("s_mov_b64 exec, 1")
    e.vm(f"buffer_store_dword v{TMP[0]}, v{TMP[1]}, {srd(S_WS)}, 0 offen offset:{idx * 4}")
    e.vm(f"buffer_store_dword v{TMP[2]}, v{TMP[1]}, {srd(S_WS)}, 0 offen offset:{128 + idx * 4}")
    e("s_mov_b64 exec, -1")


def flag_store(e, s_addr):
    e(f"v_mov_b32 v{TMP[0]}, s{S_TAG}")
    e(f"v_mov_b32 v{TMP[1]}, 0")
    e("s_mov_b64 exec, 1")
    t = e.vm(f"buffer_store_dword v{TMP[0]}, v{TMP[1]}, {srd(S_WS)}, s{s_addr} offen sc1")
    e("s_mov_b64 exec, -1")
    return t


def poll_issue(e, vaddr, s_addr, vdst):
    return e.vm(f"buffer_load_dwordx4 {vr(vdst)}, v{vaddr}, {srd(S_WS)}, s{s_addr} offen sc1")


def poll_check(e, tok, vaddr, s_addr, vdst, slp=None):
    n = _lbl[0]
    _lbl[0] += 1
    e.wait(vm=tok)
    e(f"s_mov_b32 s{S_POLL}, 0")
    e.label(f"L_pc{n}")
    for q in range(4):
        e(f"v_xor_b32 v{vdst + q}, s{S_TAG}, v{vdst + q}")
    e(f"v_or3_b32 v{vdst}, v{vdst}, v{vdst + 1}, v{vdst + 2}")
    e(f"v_or_b32 v{vdst}, v{vdst}, v{vdst + 3}")
    e(f"v_cmp_eq_u32 vcc, 0, v{vdst}")
    e("s_nop 1")
    e("s_cmp_eq_u64 vcc, -1")
    e(f"s_cbranch_scc1 L_pd{n}")
    e(f"s_add_u32 s{S_POLL}, s{S_POLL}, 1")
    e(f"s_cmp_ge_u32 s{S_POLL}, {CFG['POLL_MAX']}")
    e(f"s_cbranch_scc1 L_pd{n}")
    e(f"s_sleep {slp if slp is not None else CFG['SLEEP']}")
    e(f"buffer_load_dwordx4 {vr(vdst)}, v{vaddr}, {srd(S_WS)}, s{s_addr} offen sc1")
    e("s_waitcnt vmcnt(0)")
    e(f"s_branch L_pc{n}")
    e.label(f"L_pd{n}")


def lds_set(e, word_sgpr_or_int, val=1):
    if isinstance(word_sgpr_or_int, int):
        e(f"v_mov_b32 v{TMP[0]}, {L_FL + 4 * word_sgpr_or_int}")
    else:
        e(f"s_lshl_b32 s{T[0]}, {word_sgpr_or_int}, 2")
        e(f"s_add_u32 s{T[0]}, s{T[0]}, {L_FL}")
        e(f"v_mov_b32 v{TMP[0]}, s{T[0]}")
    e(f"v_mov_b32 v{TMP[1]}, {val}")
    e("s_mov_b64 exec, 1")
    t = e.lg(f"ds_write_b32 v{TMP[0]}, v{TMP[1]}")
    e("s_mov_b64 exec, -1")
    return t


def lds_wait4(e, word0):
    n = _lbl[0]
    _lbl[0] += 1
    e(f"v_mov_b32 v{TMP[0]}, {L_FL + 4 * word0}")
    e(f"s_mov_b32 s{S_POLL}, 0")
    e.label(f"L_lw{n}")
    e(f"ds_read_b128 {vr(V_PD)}, v{TMP[0]}")
    e("s_waitcnt lgkmcnt(0)")
    e(f"v_and_b32 v{V_PD}, v{V_PD}, v{V_PD + 1}")
    e(f"v_and_b32 v{V_PD + 2}, v{V_PD + 2}, v{V_PD + 3}")
    e(f"v_and_b32 v{V_PD}, v{V_PD}, v{V_PD + 2}")
    e(f"v_cmp_eq_u32 vcc, 1, v{V_PD}")
    e("s_nop 1")
    e("s_cmp_eq_u64 vcc, -1")
    e(f"s_cbranch_scc1 L_ld{n}")
    e(f"s_add_u32 s{S_POLL}, s{S_POLL}, 1")
    e(f"s_cmp_ge_u32 s{S_POLL}, {CFG['POLL_MAX'] * 8}")
    e(f"s_cbranch_scc1 L_ld{n}")
    e("s_sleep 1")
    e(f"s_branch L_lw{n}")
    e.label(f"L_ld{n}")
    e.wait_all(vm=False, lg=True)


def lds_wait1(e, s_word):
    n = _lbl[0]
    _lbl[0] += 1
    e(f"s_lshl_b32 s{T[0]}, s{s_word}, 2")
    e(f"s_add_u32 s{T[0]}, s{T[0]}, {L_FL}")
    e(f"v_mov_b32 v{TMP[4]}, s{T[0]}")
    e(f"s_mov_b32 s{S_POLL}, 0")
    e.label(f"L_lw{n}")
    e(f"ds_read_b32 v{V_PD}, v{TMP[4]}")
    e("s_waitcnt lgkmcnt(0)")
    e(f"v_cmp_eq_u32 vcc, 1, v{V_PD}")
    e("s_nop 1")
    e("s_cmp_eq_u64 vcc, -1")
    e(f"s_cbranch_scc1 L_ld{n}")
    e(f"s_add_u32 s{S_POLL}, s{S_POLL}, 1")
    e(f"s_cmp_ge_u32 s{S_POLL}, {CFG['POLL_MAX'] * 8}")
    e(f"s_cbranch_scc1 L_ld{n}")
    e(f"s_branch L_lw{n}")
    e.label(f"L_ld{n}")
    e.wait_all(vm=False, lg=True)


def lds_wait1i(e, word, slp=1):
    n = _lbl[0]
    _lbl[0] += 1
    e(f"v_mov_b32 v{TMP[4]}, {L_FL + 4 * word}")
    e(f"s_mov_b32 s{S_POLL}, 0")
    e.label(f"L_lw{n}")
    e(f"ds_read_b32 v{V_PD}, v{TMP[4]}")
    e("s_waitcnt lgkmcnt(0)")
    e(f"v_cmp_eq_u32 vcc, 1, v{V_PD}")
    e("s_nop 1")
    e("s_cmp_eq_u64 vcc, -1")
    e(f"s_cbranch_scc1 L_ld{n}")
    e(f"s_add_u32 s{S_POLL}, s{S_POLL}, 1")
    e(f"s_cmp_ge_u32 s{S_POLL}, {CFG['POLL_MAX'] * 8}")
    e(f"s_cbranch_scc1 L_ld{n}")
    e(f"s_sleep {slp}")
    e(f"s_branch L_lw{n}")
    e.label(f"L_ld{n}")
    e.wait_all(vm=False, lg=True)


def poll_one(e, vaddr, s_addr, word, slp=None):
    n = _lbl[0]
    _lbl[0] += 1
    e(f"s_cmp_lg_u32 s{S_WAVE}, 0")
    e(f"s_cbranch_scc1 L_po{n}")
    e(f"buffer_load_dwordx4 {vr(V_PD)}, v{vaddr}, {srd(S_WS)}, s{s_addr} offen sc1")
    e("s_waitcnt vmcnt(0)")
    poll_check(e, None, vaddr, s_addr, V_PD, slp)
    e(f"v_mov_b32 v{TMP[0]}, {L_FL + 4 * word}")
    e(f"v_mov_b32 v{TMP[1]}, 1")
    e(f"ds_write_b32 v{TMP[0]}, v{TMP[1]}")
    e(f"s_branch L_pe{n}")
    e.label(f"L_po{n}")
    lds_wait1i(e, word)
    e.label(f"L_pe{n}")
    e.wait_all(vm=False, lg=True)


def unpack(e, dst, src, hi):
    if hi:
        e(f"v_and_b32 v{dst}, s{S_MASKHI}, v{src}")
    else:
        e(f"v_lshlrev_b32 v{dst}, 16, v{src}")


def round2(e, a, b, tmp):
    e(f"v_cvt_pk_bf16_f32 v{tmp}, v{a}, v{b}")
    e(f"v_lshlrev_b32 v{a}, 16, v{tmp}")
    e(f"v_and_b32 v{b}, s{S_MASKHI}, v{tmp}")


def spread(gaps, L, lo, hi):
    n = len(L)
    for idx, ins in enumerate(L):
        gaps[lo + idx * (hi - lo) // n].L.append(ins)


def setup(e):
    e("s_cmp_ge_u32 s2, 256")
    e("s_cbranch_scc1 L_end")
    ptrs = [(S_WG, 56), (S_WU, 64), (S_X, 0), (S_K, 8), (S_V, 16), (S_SH, 24), (S_WS, 104), (S_SSM, 32), (S_DD, 40),
            (S_WD, 72), (S_GW, 80), (S_OUT, 88), (S_HST, 104)]
    for r, off in ptrs:
        e(f"s_load_dwordx2 s[{r}:{r + 1}], s[0:1], {off}")
    sizes = {S_X: 0x200000, S_K: 0x200000, S_V: 0x200000, S_SH: 4096, S_SSM: 0x200000, S_WG: 512 * 2752,
             S_WU: 512 * 2752, S_WD: 1376 * 1024, S_GW: 1024, S_OUT: 0x200000, S_WS: WS_SIZE, S_HST: WS_SIZE,
             S_DD: 1024}
    for r, sz in sizes.items():
        e(f"s_mov_b32 s{r + 2}, {sz:#x}")
        e(f"s_mov_b32 s{r + 3}, 0x00020000")
    e(f"v_lshrrev_b32 v{TMP[0]}, 6, v0")
    e(f"v_and_b32 v{V_LANE}, 63, v0")
    e(f"v_readfirstlane_b32 s{T[13]}, v{TMP[0]}")
    e(f"s_mov_b32 s{S_U}, s2")
    e(f"s_and_b32 s{T[0]}, s2, 7")
    e(f"s_lshr_b32 s{T[1]}, s2, 3")
    e(f"s_and_b32 s{T[2]}, s{T[1]}, 7")
    e(f"s_lshr_b32 s{T[3]}, s{T[1]}, 3")
    e(f"s_and_b32 s{T[4]}, s{T[0]}, 1")
    e(f"s_lshr_b32 s{T[5]}, s{T[0]}, 1")
    e(f"s_lshl_b32 s{S_GI}, s{T[4]}, 3")
    e(f"s_add_u32 s{S_GI}, s{S_GI}, s{T[2]}")
    e(f"s_lshl_b32 s{S_GJ}, s{T[5]}, 2")
    e(f"s_add_u32 s{S_GJ}, s{S_GJ}, s{T[3]}")
    e(f"s_lshl_b32 s{S_I2}, s{T[5]}, 3")
    e(f"s_add_u32 s{S_I2}, s{S_I2}, s{T[2]}")
    e(f"s_lshl_b32 s{S_N2}, s{T[4]}, 2")
    e(f"s_add_u32 s{S_N2}, s{S_N2}, s{T[3]}")
    e(f"s_and_b32 s{S_WAVE}, s{T[13]}, 3")
    e(f"s_mov_b32 s{S_MASKHI}, 0xffff0000")
    e(f"v_lshlrev_b32 v{V_L16}, 4, v{V_LANE}")
    if CFG["STAMPS"]:
        e(f"s_lshl_b32 s{S_STI}, s2, 3")
        e(f"s_add_u32 s{S_STI}, s{S_STI}, s{T[13]}")
        if CFG["STAMPS"] != 3:
            e(f"s_lshl_b32 s{S_STI}, s{S_STI}, 8")
            e(f"s_add_u32 s{S_STI}, s{S_STI}, {WS_STAMP:#x}")
    e(f"s_lshl_b32 s{S_XSOFF}, s{S_GI}, 17")
    e(f"s_lshl_b32 s{T[0]}, s{S_WAVE}, 15")
    e(f"s_add_u32 s{S_XSOFF}, s{S_XSOFF}, s{T[0]}")
    e(f"s_lshr_b32 s{T[0]}, s{S_WAVE}, 1")
    e(f"s_lshl_b32 s{S_CH}, s{S_U}, 1")
    e(f"s_add_u32 s{S_CH}, s{S_CH}, s{T[0]}")
    e(f"s_cmp_ge_u32 s{T[13]}, 4")
    e("s_cbranch_scc1 L_loader")


def misc_loads(e, need_d):
    e(f"v_mov_b32 v{TMP[0]}, 0")
    e(f"s_mov_b32 s{T[0]}, {FL_EPOCH:#x}")
    toks = [e.vm(f"buffer_load_dword v{V_EPO}, v{TMP[0]}, {srd(S_WS)}, s{T[0]} offen sc1")]
    if need_d:
        e(f"s_lshl_b32 s{T[1]}, s{S_U}, 2")
        toks.append(e.vm(f"buffer_load_dword v{V_H01}, v{TMP[0]}, {srd(S_DD)}, s{T[1]} offen"))
    return toks


def misc_use(e, toks, need_d):
    e.wait(vm=toks)
    e(f"v_readfirstlane_b32 s{S_TAG}, v{V_EPO}")
    if need_d:
        e(f"v_readfirstlane_b32 s{T[0]}, v{V_H01}")
    e("s_nop 3")
    e(f"s_add_u32 s{S_TAG}, s{S_TAG}, {TAGK:#x}")
    if need_d:
        e(f"s_lshl_b32 s{T[2]}, s{T[0]}, 16")
        e(f"s_and_b32 s{T[3]}, s{T[0]}, 0xffff0000")
        e(f"s_cmp_lt_u32 s{S_WAVE}, 2")
        e(f"s_cselect_b32 s{S_DF}, s{T[2]}, s{T[3]}")


def out_addr(e):
    a, b = TMP[0], TMP[1]
    e(f"v_lshrrev_b32 v{a}, 3, v0")
    e(f"v_and_b32 v{b}, 7, v0")
    e(f"v_lshlrev_b32 v{b}, 4, v{b}")
    e(f"v_lshl_add_u32 v{a}, v{a}, 10, v{b}")
    e(f"s_lshl_b32 s{T[0]}, s{S_I2}, 16")
    e(f"s_lshl_b32 s{T[1]}, s{S_N2}, 7")
    e(f"s_add_u32 s{T[0]}, s{T[0]}, s{T[1]}")
    e(f"v_add_u32 v{V_OUTO}, s{T[0]}, v{a}")


A_PK, A_PV = 56, 76
Q_RAW, Q_SH, Q_KC, Q_VV, Q_S4, Q_P, Q_W, Q_SA = 128, 136, 140, 145, 147, 151, 156, 157


def prep_a(e):
    a, b = TMP[0], TMP[1]
    AD = 128
    e(f"v_and_b32 v{a}, 7, v0")
    e(f"v_lshrrev_b32 v{b}, 3, v0")
    e(f"v_lshlrev_b32 v{a}, 4, v{a}")
    e(f"v_lshl_add_u32 v{a}, v{b}, 11, v{a}")
    e(f"s_lshl_b32 s{T[0]}, s{S_I2}, 16")
    e(f"s_lshl_b32 s{T[1]}, s{S_N2}, 7")
    e(f"s_add_u32 s{T[0]}, s{T[0]}, s{T[1]}")
    e(f"s_sub_u32 s{T[0]}, s{T[0]}, 3072")
    e(f"v_add_u32 v{AD}, s{T[0]}, v{a}")
    for m in range(1, 5):
        e(f"v_add_u32 v{AD + m}, {1024 * m}, v{AD}")
    c_addr(e)
    w = Q_W
    e(f"v_lshrrev_b32 v{b}, 3, v0")
    e(f"v_sub_u32 v{b}, 31, v{b}")
    e(f"v_lshrrev_b32 v{w}, 2, v{b}")
    e(f"v_and_b32 v{TMP[3]}, 7, v0")
    e(f"v_xor_b32 v{w}, v{w}, v{TMP[3]}")
    e(f"v_lshlrev_b32 v{w}, 4, v{w}")
    e(f"v_and_b32 v{b}, 3, v{b}")
    e(f"v_lshl_add_u32 v{w}, v{b}, 2, v{w}")
    e(f"v_lshl_add_u32 v{w}, v{TMP[3]}, 10, v{w}")
    e(f"v_add_u32 v{w}, {L_PT}, v{w}")
    e(f"v_lshlrev_b32 v{Q_SA}, 6, v{TMP[3]}")
    e(f"v_add_u32 v{Q_SA}, {L_SH}, v{Q_SA}")
    e.wait_all(vm=False, lg=True)
    stamp(e, 0)
    if CFG["TOUCH2"]:
        e(f"v_lshrrev_b32 v{a}, 3, v{V_LANE}")
        e(f"v_lshlrev_b32 v{a}, 10, v{a}")
        e(f"v_and_b32 v{b}, 7, v{V_LANE}")
        e(f"v_lshl_add_u32 v{a}, v{b}, 7, v{a}")
        e(f"s_and_b32 s{T[0]}, s{S_GJ}, 3")
        e(f"s_lshl_b32 s{T[0]}, s{T[0]}, 15")
        e(f"s_lshl_b32 s{T[1]}, s{S_WAVE}, 13")
        e(f"s_add_u32 s{T[0]}, s{T[0]}, s{T[1]}")
        e(f"s_lshl_b32 s{T[1]}, s{S_GI}, 17")
        e(f"s_add_u32 s{T[0]}, s{T[0]}, s{T[1]}")
        e(f"v_mul_u32_u24 v{b}, 2752, v{V_LANE}")
        e(f"s_and_b32 s{T[2]}, s{S_GI}, 7")
        e(f"s_mul_i32 s{T[2]}, s{T[2]}, {64 * 2752}")
        e(f"s_mul_i32 s{T[3]}, s{S_GJ}, 192")
        e(f"s_add_u32 s{T[2]}, s{T[2]}, s{T[3]}")
        e(f"s_lshr_b32 s{T[3]}, s{S_WAVE}, 1")
        e(f"s_mul_i32 s{T[3]}, s{T[3]}, 188")
        e(f"s_add_u32 s{T[2]}, s{T[2]}, s{T[3]}")
        if CFG["TDELAY"]:
            e(f"s_sleep {CFG['TDELAY']}")
        e.vm(f"buffer_load_dword v{V_PD}, v{a}, {srd(S_X)}, s{T[0]} offen")
        e(f"s_bitcmp1_b32 s{S_WAVE}, 0")
        e("s_cbranch_scc1 L_t2u")
        e(f"buffer_load_dword v{V_PD + 1}, v{b}, {srd(S_WG)}, s{T[2]} offen")
        e("s_branch L_t2j")
        e.label("L_t2u")
        e(f"buffer_load_dword v{V_PD + 1}, v{b}, {srd(S_WU)}, s{T[2]} offen")
        e.label("L_t2j")
        e.vm("s_nop 0")
    if CFG["PDELAY"]:
        e(f"s_sleep {CFG['PDELAY']}")
    toks = []
    for m in range(5):
        toks.append(e.vm(f"buffer_load_dwordx4 {ar(A_PK + 4 * m)}, v{AD + m}, {srd(S_K)}, 0 offen"))
    for m in range(2):
        toks.append(e.vm(f"buffer_load_dwordx4 {ar(A_PV + 4 * m)}, v{AD + 3 + m}, {srd(S_V)}, 0 offen"))
    e(f"s_mov_b32 m0, {L_SH}")
    e(f"s_lshl_b32 s{T[1]}, s{S_N2}, 9")
    toks.append(e.vm(f"buffer_load_dwordx4 v{V_L16}, {srd(S_SH)}, s{T[1]} offen lds"))
    mt = misc_loads(e, False)
    return toks, mt


def prep_compute(toks):
    e = Em()
    e.wait(vm=toks)
    wr = []
    for q in range(4):
        sh = e.lg(f"ds_read_b128 {vr(Q_SH)}, v{Q_SA} offset:{16 * q}")
        for m in range(5):
            e(f"v_accvgpr_read_b32 v{Q_RAW + m}, a{A_PK + 4 * m + q}")
        for m in range(2):
            e(f"v_accvgpr_read_b32 v{Q_RAW + 5 + m}, a{A_PV + 4 * m + q}")
        e.wait(lg=sh)
        for hi in range(2):
            c = 2 * q + hi
            kc = [Q_KC + m for m in range(5)]
            vv = [Q_VV, Q_VV + 1]
            s4 = [Q_S4 + j for j in range(4)]
            p0, p1, a0, a1, tp = Q_P, Q_P + 1, Q_P + 2, Q_P + 3, Q_P + 4
            for m in range(5):
                unpack(e, kc[m], Q_RAW + m, hi)
            for m in range(2):
                unpack(e, vv[m], Q_RAW + 5 + m, hi)
            for j in range(4):
                unpack(e, s4[j], Q_SH + 2 * hi + (j >> 1), j & 1)
            e(f"v_mul_f32 v{a0}, v{kc[0]}, v{s4[3]}")
            e(f"v_mul_f32 v{a1}, v{kc[1]}, v{s4[3]}")
            if CFG["EMU_PREP"]:
                round2(e, a0, a1, tp)
                for tt in range(1, 4):
                    e(f"v_mul_f32 v{p0}, v{kc[tt]}, v{s4[3 - tt]}")
                    e(f"v_mul_f32 v{p1}, v{kc[tt + 1]}, v{s4[3 - tt]}")
                    round2(e, p0, p1, tp)
                    e(f"v_add_f32 v{a0}, v{a0}, v{p0}")
                    e(f"v_add_f32 v{a1}, v{a1}, v{p1}")
                    round2(e, a0, a1, tp)
            else:
                for tt in range(1, 4):
                    e(f"v_fmac_f32 v{a0}, v{kc[tt]}, v{s4[3 - tt]}")
                    e(f"v_fmac_f32 v{a1}, v{kc[tt + 1]}, v{s4[3 - tt]}")
            e(f"v_mul_f32 v{a0}, v{a0}, v{vv[0]}")
            e(f"v_mul_f32 v{a1}, v{a1}, v{vv[1]}")
            e(f"v_cvt_pk_bf16_f32 v{p0}, v{a1}, v{a0}")
            wr.append(e.lg(f"ds_write_b32 v{Q_W}, v{p0} offset:{c * 128}"))
    return e, wr


def prep_rb_addr(e):
    a, b = TMP[0], TMP[1]
    RA, RB, RG = V_ET + 8, V_ET + 9, V_ET + 10
    e(f"v_lshrrev_b32 v{b}, 3, v0")
    e(f"v_lshrrev_b32 v{a}, 6, v0")
    e(f"v_and_b32 v{RG}, 7, v0")
    e(f"v_xor_b32 v{a}, v{a}, v{RG}")
    e(f"v_lshlrev_b32 v{a}, 4, v{a}")
    e(f"v_lshl_add_u32 v{a}, v{b}, 7, v{a}")
    e(f"v_xor_b32 v{RB}, 64, v{a}")
    e(f"v_add_u32 v{RA}, {L_PT}, v{a}")
    e(f"v_add_u32 v{RB}, {L_PT}, v{RB}")
    e(f"v_lshlrev_b32 v{RG}, 4, v{RG}")
    e(f"v_lshl_add_u32 v{RG}, v{b}, 12, v{RG}")


def prep_readback(e):
    RA, RB = V_ET + 8, V_ET + 9
    return [e.lg(f"ds_read_b128 {vr(V_ET)}, v{RA}"),
            e.lg(f"ds_read_b128 {vr(V_ET + 4)}, v{RB} offset:4096")]


def prep_store(e, rd):
    RG = V_ET + 10
    e(f"s_lshl_b32 s{T[0]}, s{S_N2}, 18")
    e(f"s_lshl_b32 s{T[1]}, s{S_I2}, 7")
    e(f"s_sub_u32 s{T[0]}, s{T[0]}, s{T[1]}")
    e(f"s_add_u32 s{T[0]}, s{T[0]}, {WS_KV + 3968:#x}")
    e(f"s_add_u32 s{T[1]}, s{T[0]}, {32 * 4096:#x}")
    e.wait(lg=rd)
    return [e.vm(f"buffer_store_dwordx4 {vr(V_ET)}, v{RG}, {srd(S_WS)}, s{T[0]} offen sc1"),
            e.vm(f"buffer_store_dwordx4 {vr(V_ET + 4)}, v{RG}, {srd(S_WS)}, s{T[1]} offen sc1")]


def prep_flag(e, toks):
    e.wait(vm=toks)
    e(f"s_lshl_b32 s{T[0]}, s{S_N2}, 9")
    e(f"s_lshl_b32 s{T[1]}, s{S_I2}, 4")
    e(f"s_add_u32 s{T[0]}, s{T[0]}, s{T[1]}")
    e(f"s_lshl_b32 s{T[1]}, s{S_WAVE}, 2")
    e(f"s_add_u32 s{T[0]}, s{T[0]}, s{T[1]}")
    e(f"s_add_u32 s{T[0]}, s{T[0]}, {FL_P:#x}")
    return flag_store(e, T[0])


def c_addr(e):
    a, b, c = TMP[0], TMP[1], TMP[2]
    e(f"v_lshrrev_b32 v{a}, 5, v{V_LANE}")
    e(f"v_lshlrev_b32 v{a}, 3, v{a}")
    e(f"v_bfe_u32 v{b}, v{V_LANE}, 2, 2")
    e(f"v_add_u32 v{a}, v{a}, v{b}")
    e(f"v_mul_u32_u24 v{a}, 192, v{a}")
    e(f"v_bfe_u32 v{b}, v{V_LANE}, 4, 1")
    e(f"v_lshl_add_u32 v{a}, v{b}, 5, v{a}")
    e(f"v_and_b32 v{b}, 3, v{V_LANE}")
    e(f"v_lshl_add_u32 v{a}, v{b}, 3, v{a}")
    for s in range(3):
        e(f"v_add_u32 v{V_WTR + s}, {PHYS[s]}, v{a}")
    e(f"v_bfe_u32 v{a}, v{V_LANE}, 3, 2")
    e(f"v_mul_u32_u24 v{a}, 1040, v{a}")
    e(f"v_and_b32 v{b}, 7, v{V_LANE}")
    e(f"v_lshl_add_u32 v{a}, v{b}, 7, v{a}")
    e(f"v_lshrrev_b32 v{b}, 5, v{V_LANE}")
    e(f"v_lshl_add_u32 v{a}, v{b}, 4, v{a}")
    e(f"s_mul_i32 s{T[0]}, s{S_WAVE}, 4160")
    e(f"v_add_u32 v{a}, s{T[0]}, v{a}")
    for s in range(3):
        e(f"v_add_u32 v{V_XRD + s}, {PHYS[s] + 24576}, v{a}")
    c0 = -2.0 * math.sqrt(2.0 / math.pi) * math.log2(math.e)
    e(f"v_mov_b32 v{V_C0}, {f32hex(c0)}")
    e(f"s_mov_b32 s{S_C1}, {f32hex(c0 * 0.044715)}")
    e(f"s_lshl_b32 s{T[0]}, s{S_GI}, 2")
    e(f"s_add_u32 s{T[0]}, s{T[0]}, s{S_WAVE}")
    e(f"s_mul_i32 s{T[1]}, s{T[0]}, 43")
    e(f"s_mul_i32 s{T[2]}, s{S_GJ}, 3")
    e(f"s_add_u32 s{T[1]}, s{T[1]}, s{T[2]}")
    e(f"s_lshl_b32 s{S_HOFF}, s{T[1]}, 11")
    e(f"s_lshr_b32 s{T[1]}, s{T[0]}, 1")
    e(f"s_lshl_b32 s{T[1]}, s{T[1]}, 9")
    e(f"s_and_b32 s{T[0]}, s{T[0]}, 1")
    e(f"s_lshl_b32 s{T[2]}, s{S_GJ}, 1")
    e(f"s_add_u32 s{T[0]}, s{T[0]}, s{T[2]}")
    e(f"s_lshl_b32 s{T[0]}, s{T[0]}, 2")
    e(f"s_add_u32 s{T[0]}, s{T[0]}, s{T[1]}")
    e(f"s_add_u32 s{S_FHOFF}, s{T[0]}, {FL_H:#x}")
    wd_addr(e, 0)
    out_addr(e)


def conv_addr(e):
    a, b, c = TMP[0], TMP[1], TMP[2]
    e(f"s_lshr_b32 s{T[0]}, s{S_WAVE}, 1")
    e(f"s_and_b32 s{T[1]}, s{S_WAVE}, 1")
    e(f"v_and_b32 v{a}, 15, v{V_LANE}")
    e(f"v_lshrrev_b32 v{b}, 4, v{V_LANE}")
    e(f"v_lshlrev_b32 v{c}, 2, v{b}")
    e(f"v_sub_u32 v{c}, v{c}, v{a}")
    e(f"v_add_u32 v{c}, 63, v{c}")
    e(f"v_mul_u32_u24 v{c}, 80, v{c}")
    e(f"s_mul_i32 s{T[2]}, s{T[0]}, 6400")
    e(f"s_mul_i32 s{T[3]}, s{T[1]}, 160")
    e(f"s_add_u32 s{T[2]}, s{T[2]}, s{T[3]}")
    e(f"s_add_u32 s{T[2]}, s{T[2]}, {L_UR - 3840}")
    e(f"v_add_u32 v{V_F}, s{T[2]}, v{c}")
    e(f"v_add_u32 v{a}, 1, v{a}")
    e(f"v_and_b32 v{V_SHF}, 1, v{a}")
    e(f"v_lshlrev_b32 v{V_SHF}, 4, v{V_SHF}")
    e(f"v_bfe_u32 v{c}, v{a}, 1, 1")
    e(f"v_mul_u32_u24 v{c}, 6208, v{c}")
    e(f"v_and_b32 v{a}, 28, v{a}")
    e(f"v_lshl_add_u32 v{c}, v{a}, 1, v{c}")
    e(f"v_mul_u32_u24 v{b}, 384, v{b}")
    e(f"v_add_u32 v{c}, v{c}, v{b}")
    e(f"s_mul_i32 s{T[2]}, s{T[0]}, 12416")
    e(f"s_lshl_b32 s{T[3]}, s{T[1]}, 7")
    e(f"s_add_u32 s{T[2]}, s{T[2]}, s{T[3]}")
    e(f"s_add_u32 s{T[2]}, s{T[2]}, {L_HC}")
    e(f"v_add_u32 v{V_H}, s{T[2]}, v{c}")


def wd_addr(e, role):
    a, b, c = TMP[0], TMP[1], TMP[2]
    e(f"v_lshrrev_b32 v{a}, 3, v{V_LANE}")
    e(f"v_bfe_u32 v{b}, v{V_LANE}, 4, 1")
    e(f"v_lshlrev_b32 v{b}, 2, v{b}")
    e(f"v_and_b32 v{c}, 7, v{V_LANE}")
    e(f"v_xor_b32 v{c}, v{c}, v{b}")
    e(f"v_lshlrev_b32 v{c}, 4, v{c}")
    e(f"v_lshl_add_u32 v{c}, v{a}, 10, v{c}")
    e(f"s_lshl_b32 s{T[0]}, s{S_N2}, 7")
    e(f"v_add_u32 v{V_WDDMA}, s{T[0]}, v{c}")
    for m in range(1, 4):
        e(f"v_add_u32 v{V_WDDMA + m}, {m * (8192 - 1024)}, v{V_WDDMA}")
    e(f"s_lshl_b32 s{S_WDBASE}, s{S_WAVE}, 12")
    e(f"s_mov_b32 s{T[1]}, s{S_WDBASE}")
    e(f"v_lshrrev_b32 v{a}, 5, v{V_LANE}")
    e(f"v_lshlrev_b32 v{a}, 9, v{a}")
    e(f"v_bfe_u32 v{b}, v{V_LANE}, 2, 2")
    e(f"v_lshl_add_u32 v{a}, v{b}, 7, v{a}")
    e(f"v_bfe_u32 v{b}, v{V_LANE}, 4, 1")
    e(f"v_lshl_add_u32 v{a}, v{b}, 5, v{a}")
    e(f"v_and_b32 v{b}, 3, v{V_LANE}")
    e(f"v_lshl_add_u32 v{a}, v{b}, 3, v{a}")
    e(f"v_bfe_u32 v{b}, v{V_LANE}, 3, 1")
    e(f"v_lshl_add_u32 v{a}, v{b}, 6, v{a}")
    e(f"v_add_u32 v{V_WDTR}, s{T[1]}, v{a}")
    e(f"v_xor_b32 v{b}, 64, v{a}")
    e(f"v_add_u32 v{V_WDTR + 1}, s{T[1]}, v{b}")
    e(f"s_mul_i32 s{T[0]}, s{S_WAVE}, {3 * 2048}")
    for m in range(11):
        if m <= 2:
            e(f"s_add_u32 s{S_FT + m}, s{T[0]}, {12 * m * 2048}")
        elif m == 3:
            e(f"s_add_u32 s{S_FT + m}, s{T[0]}, {36 * 2048}")
            e(f"s_cmp_eq_u32 s{S_WAVE}, 3")
            e(f"s_cselect_b32 s{S_FT + m}, {1 * 2048}, s{S_FT + m}")
        elif m <= 6:
            e(f"s_add_u32 s{S_FT + m}, s{T[0]}, {(3 * (4 * m - 15) + 1) * 2048}")
        elif m == 7:
            e(f"s_add_u32 s{S_FT + m}, s{T[0]}, {(-1 * 2048) & 0xffffffff:#x}")
            e(f"s_cmp_eq_u32 s{S_WAVE}, 0")
            e(f"s_cselect_b32 s{S_FT + m}, {40 * 2048}, s{S_FT + m}")
        else:
            e(f"s_add_u32 s{S_FT + m}, s{T[0]}, {(3 * (4 * m - 29) + 2) * 2048}")
    e(f"s_mul_i32 s{S_XM0 if role == 0 else S_HOFF}, s{S_I2}, {86 * 2048}")


def w_tr(e, T_, idx):
    ft, mat = idx >> 1, idx & 1
    n, ts = T_ // 4, T_ % 4
    base = mat * 12288 + ts * 3072 + ft * 64
    vb = V_WTR + n % 3
    d = A_WF + 24 * (T_ % 2) + 4 * idx
    return [e.lg(f"ds_read_b64_tr_b16 {ar(d, 2)}, v{vb} offset:{base}"),
            e.lg(f"ds_read_b64_tr_b16 {ar(d + 2, 2)}, v{vb} offset:{base + 768}")]


def x_fr(e, T_):
    n, ts = T_ // 4, T_ % 4
    return e.lg(f"ds_read_b128 {ar(A_XF + 4 * (T_ % 2))}, v{V_XRD + n % 3} offset:{ts * 32}")


def g1_epilogue(e, ftl, mids=()):
    A = ACC_OF[ftl]
    e(f"s_mul_i32 s{T[6]}, s{S_GJ}, 3")
    e(f"s_cmp_lt_u32 s{T[6]}, {43 - ftl}")
    e(f"s_cselect_b32 s{S_HST + 2}, {WS_SIZE:#x}, 0")
    e(f"s_add_u32 s{T[7]}, s{S_HOFF}, {ftl * 2048}")
    toks = []
    for half in range(2):
        O = V_ET + 8 + 4 * half
        for pr in range(4):
            r = 8 * half + 2 * pr
            B = V_ET + 4 * (pr & 1)
            g0, g1, u0, u1 = A + r, A + r + 1, A + 16 + r, A + 16 + r + 1
            t0, t1, tp, tq = B, B + 1, B + 2, B + 3
            if CFG["EMU_G1"]:
                round2(e, g0, g1, tp)
            e(f"v_mul_f32 v{t0}, v{g0}, v{g0}")
            e(f"v_mul_f32 v{t1}, v{g1}, v{g1}")
            e(f"v_fma_f32 v{t0}, v{t0}, s{S_C1}, v{V_C0}")
            e(f"v_fma_f32 v{t1}, v{t1}, s{S_C1}, v{V_C0}")
            e(f"v_mul_f32 v{t0}, v{t0}, v{g0}")
            e(f"v_mul_f32 v{t1}, v{t1}, v{g1}")
            e(f"v_exp_f32 v{t0}, v{t0}")
            e(f"v_exp_f32 v{t1}, v{t1}")
            if CFG["EMU_G1"]:
                e(f"v_cvt_pk_bf16_f32 v{tq}, v{u0}, v{u1}")
            else:
                e(f"v_mul_f32 v{u0}, v{u0}, v{g0}")
            e(f"v_add_f32 v{t0}, 1.0, v{t0}")
            e(f"v_add_f32 v{t1}, 1.0, v{t1}")
            e(f"v_rcp_f32 v{t0}, v{t0}")
            e(f"v_rcp_f32 v{t1}, v{t1}")
            if CFG["EMU_G1"]:
                e(f"v_lshlrev_b32 v{u0}, 16, v{tq}")
                e(f"v_mul_f32 v{t0}, v{t0}, v{g0}")
                e(f"v_mul_f32 v{t1}, v{t1}, v{g1}")
                e(f"v_and_b32 v{u1}, s{S_MASKHI}, v{tq}")
                round2(e, t0, t1, tp)
            else:
                e(f"v_mul_f32 v{u1}, v{u1}, v{g1}")
            e(f"v_mul_f32 v{t0}, v{t0}, v{u0}")
            e(f"v_mul_f32 v{t1}, v{t1}, v{u1}")
            e(f"v_cvt_pk_bf16_f32 v{O + pr}, v{t0}, v{t1}")
        toks.append(e.vm(
            f"buffer_store_dwordx4 {vr(O)}, v{V_L16}, {srd(S_HST)}, s{T[7]} offen offset:{half * 1024} sc1"))
        if half < len(mids) and mids[half] is not None:
            mids[half](e)
    return toks


def h_flag(e, ftl, toks):
    e.wait(vm=toks)
    e(f"s_add_u32 s{T[0]}, s{S_FHOFF}, {ftl * 128}")
    return flag_store(e, T[0])


def g_path(e):
    GWR, GWU, G, TB = 128, 132, 140, 144
    gw = e.vm(f"buffer_load_dwordx4 {vr(GWR)}, v{V_L16}, {srd(S_GW)}, 0 offen")
    e(f"v_mov_b32 v{G}, 0")
    X0 = 32
    for half in range(2):
        xt = []
        for r in range(16):
            e(f"s_add_u32 s{T[1]}, s{S_XSOFF}, {(16 * half + r) * 1024}")
            xt.append(e.vm(f"buffer_load_dwordx4 {vr(X0 + 4 * r)}, v{V_L16}, {srd(S_X)}, s{T[1]} offen"))
        if half == 0:
            e.wait(vm=gw)
            for q in range(8):
                unpack(e, GWU + q, GWR + (q >> 1), q & 1)
        for r4 in range(0, 16, 4):
            e.wait(vm=xt[r4 + 3])
            accs = []
            for r in range(r4, r4 + 4):
                X = X0 + 4 * r
                tb = TB + 4 * (r - r4)
                acc = tb + 3
                for q in range(4):
                    e(f"v_lshlrev_b32 v{tb}, 16, v{X + q}")
                    e(f"v_and_b32 v{tb + 1}, s{S_MASKHI}, v{X + q}")
                    e(f"v_mul_f32 v{tb}, v{tb}, v{GWU + 2 * q}")
                    e(f"v_mul_f32 v{tb + 1}, v{tb + 1}, v{GWU + 1 + 2 * q}")
                    e(f"v_cvt_pk_bf16_f32 v{tb + 2}, v{tb}, v{tb + 1}")
                    e(f"v_lshlrev_b32 v{tb}, 16, v{tb + 2}")
                    e(f"v_and_b32 v{tb + 1}, s{S_MASKHI}, v{tb + 2}")
                    if q == 0:
                        e(f"v_add_f32 v{acc}, v{tb}, v{tb + 1}")
                    else:
                        e(f"v_add_f32 v{tb}, v{tb}, v{tb + 1}")
                        e(f"v_add_f32 v{acc}, v{acc}, v{tb}")
                accs.append(acc)
            for mod in ("row_shr:1 row_mask:0xf bank_mask:0xf bound_ctrl:0",
                        "row_shr:2 row_mask:0xf bank_mask:0xf bound_ctrl:0",
                        "row_shr:4 row_mask:0xf bank_mask:0xf bound_ctrl:0",
                        "row_shr:8 row_mask:0xf bank_mask:0xf bound_ctrl:0",
                        "row_bcast:15 row_mask:0xa bank_mask:0xf",
                        "row_bcast:31 row_mask:0xc bank_mask:0xf"):
                for acc in accs:
                    e(f"v_add_f32_dpp v{acc}, v{acc}, v{acc} {mod}")
            for i, acc in enumerate(accs):
                e(f"v_readlane_b32 s{T[2 + i]}, v{acc}, 63")
            for i, acc in enumerate(accs):
                e(f"v_writelane_b32 v{G}, s{T[2 + i]}, {16 * half + r4 + i}")
    a, b, c = TB, TB + 1, TB + 2
    e(f"v_cvt_pk_bf16_f32 v{a}, v{G}, v{G}")
    e(f"v_lshlrev_b32 v{a}, 16, v{a}")
    e(f"v_mul_f32 v{a}, {f32hex(-math.log2(math.e))}, v{a}")
    e(f"v_exp_f32 v{a}, v{a}")
    e(f"v_add_f32 v{a}, 1.0, v{a}")
    e(f"v_rcp_f32 v{a}, v{a}")
    e(f"v_cvt_pk_bf16_f32 v{a}, v{a}, v{a}")
    e(f"v_lshlrev_b32 v{a}, 16, v{a}")
    e(f"v_sub_f32 v{b}, 1.0, v{a}")
    e(f"v_cvt_pk_bf16_f32 v{a}, v{a}, v{b}")
    e(f"v_lshlrev_b32 v{c}, 2, v{V_LANE}")
    e(f"s_lshl_b32 s{T[0]}, s{S_GI}, 9")
    e(f"s_lshl_b32 s{T[1]}, s{S_WAVE}, 7")
    e(f"s_add_u32 s{T[0]}, s{T[0]}, s{T[1]}")
    e(f"s_add_u32 s{T[0]}, s{T[0]}, {WS_G:#x}")
    e("s_mov_b64 exec, 0xffffffff")
    st = e.vm(f"buffer_store_dword v{a}, v{c}, {srd(S_WS)}, s{T[0]} offen sc1")
    e("s_mov_b64 exec, -1")
    return st


def conv_hraw(e, p, nn):
    d = C_H + 20 * p + 4 * (nn % 5)
    off = p * 1536 + 16 * nn
    return [e.lg(f"ds_read_b64 {vr(d, 2)}, v{V_H} offset:{off}"),
            e.lg(f"ds_read_b64 {vr(d + 2, 2)}, v{V_H} offset:{off + 8}")]


def conv_align(e, p, nn):
    d = C_H + 20 * p + 4 * (nn % 5)
    nx = C_H + 20 * p + 4 * ((nn + 1) % 5)
    for k in range(3):
        e(f"v_alignbit_b32 v{d + k}, v{d + k + 1}, v{d + k}, v{V_SHF}")
    e(f"v_alignbit_b32 v{d + 3}, v{nx}, v{d + 3}, v{V_SHF}")


def conv_f(e, tt, delta):
    d = A_F + 16 * (tt % 2) + 4 * delta
    off = 1280 * (3 - delta) + 80 * (tt >> 2) + 16 * (tt & 3)
    return e.lg(f"ds_read_b128 {ar(d)}, v{V_F} offset:{off}")


def conv_epilogue(e):
    a, b, c, u = TMP[0], TMP[1], TMP[2], TMP[3]
    OA, OB, OC, OU = V_ET, V_ET + 1, V_ET + 2, V_ET + 3
    e(f"s_xor_b32 s{T[2]}, s{S_WAVE}, 1")
    e(f"s_lshl_b32 s{T[8]}, s{S_WAVE}, 12")
    e(f"s_add_u32 s{T[8]}, s{T[8]}, {L_EX}")
    e(f"s_lshl_b32 s{T[1]}, s{T[2]}, 12")
    e(f"s_add_u32 s{T[1]}, s{T[1]}, {L_EX}")
    e(f"v_add_u32 v{OA}, s{T[8]}, v{V_L16}")
    e(f"v_add_u32 v{OB}, s{T[1]}, v{V_L16}")
    e(f"s_and_b32 s{T[3]}, s{S_WAVE}, 1")
    A0, A1 = C_ACC, C_ACC + 16
    e(f"v_and_b32 v{OC}, 15, v{V_LANE}")
    e(f"v_sub_u32 v{OU}, 47, v{OC}")
    e(f"v_mul_u32_u24 v{OU}, 80, v{OU}")
    e(f"v_lshrrev_b32 v{TMP[4]}, 4, v{V_LANE}")
    e(f"v_lshlrev_b32 v{TMP[5]}, 3, v{TMP[4]}")
    e(f"v_sub_u32 v{OU}, v{OU}, v{TMP[5]}")
    e(f"s_lshr_b32 s{T[4]}, s{S_WAVE}, 1")
    e(f"s_mul_i32 s{T[4]}, s{T[4]}, 6400")
    e(f"s_mul_i32 s{T[5]}, s{T[3]}, 2560")
    e(f"s_sub_u32 s{T[4]}, s{T[4]}, s{T[5]}")
    e(f"s_add_u32 s{T[4]}, s{T[4]}, {L_UR + 24}")
    e(f"v_add_u32 v{OU}, s{T[4]}, v{OU}")
    e(f"v_lshlrev_b32 v{OC}, 6, v{OC}")
    e(f"v_add_u32 v{OC}, v{OC}, v{TMP[5]}")
    e(f"v_add_u32 v{OC}, s{T[8]}, v{OC}")
    e(f"s_lshl_b32 s{T[4]}, s{S_CH}, 12")
    e(f"s_lshl_b32 s{T[5]}, s{T[3]}, 11")
    e(f"s_add_u32 s{T[4]}, s{T[4]}, s{T[5]}")
    e(f"s_add_u32 s{T[4]}, s{T[4]}, {WS_Y2:#x}")
    e(f"s_cmp_eq_u32 s{T[3]}, 0")
    e("s_cbranch_scc1 L_cv_noswap")
    for q in range(16):
        e(f"v_swap_b32 v{A0 + q}, v{A1 + q}")
    e.label("L_cv_noswap")
    e("s_nop 7")
    wr = [e.lg(f"ds_write_b128 v{OB}, {vr(A1 + 4 * q)} offset:{q * 1024}") for q in range(4)]
    RX, UU, t = C_H, C_H + 16, C_H + 24
    ur = {}
    for jj in range(2):
        for bb in range(2):
            ur[(jj, bb)] = e.lg(
                f"ds_read_b64 {vr(UU + 4 * jj + 2 * bb, 2)}, v{OU} offset:{(1 - jj) * 1280 + (1 - bb) * 32}")
    e.wait(lg=wr)
    e(f"s_add_u32 s{T[9]}, s{T[2]}, 4")
    lds_set(e, f"s{T[9]}")
    e(f"s_add_u32 s{T[9]}, s{S_WAVE}, 4")
    lds_wait1(e, T[9])
    rd = [e.lg(f"ds_read_b128 {vr(RX + 4 * q)}, v{OA} offset:{q * 1024}") for q in range(4)]
    outs = []
    for q in range(4):
        jj, bb = q >> 1, q & 1
        e.wait(lg=[rd[q], ur[(jj, bb)]])
        A = A0 + 4 * q
        U = UU + 4 * jj + 2 * bb
        for r in range(4):
            e(f"v_add_f32 v{A + r}, v{A + r}, v{RX + 4 * q + r}")
        round2(e, A, A + 1, t + 4)
        round2(e, A + 2, A + 3, t + 5)
        unpack(e, t, U + 1, 1)
        unpack(e, t + 1, U + 1, 0)
        unpack(e, t + 2, U, 1)
        unpack(e, t + 3, U, 0)
        for r in range(4):
            e(f"v_mul_f32 v{t + r}, s{S_DF}, v{t + r}")
        round2(e, t, t + 1, t + 4)
        round2(e, t + 2, t + 3, t + 5)
        for r in range(4):
            e(f"v_add_f32 v{A + r}, v{A + r}, v{t + r}")
        O = A1 + 2 * q
        e(f"v_cvt_pk_bf16_f32 v{O}, v{A}, v{A + 1}")
        e(f"v_cvt_pk_bf16_f32 v{O + 1}, v{A + 2}, v{A + 3}")
        outs.append(O)
    e.wait(lg=rd)
    for q in range(4):
        e.lg(f"ds_write_b64 v{OC}, {vr(outs[q], 2)} offset:{(q >> 1) * 1024 + (q & 1) * 32}")
    r0 = e.lg(f"ds_read_b128 {vr(RX)}, v{OA}")
    r1 = e.lg(f"ds_read_b128 {vr(RX + 4)}, v{OA} offset:1024")
    e.wait(lg=[r0, r1])
    return [e.vm(f"buffer_store_dwordx4 {vr(RX)}, v{V_L16}, {srd(S_WS)}, s{T[4]} offen sc1"),
            e.vm(f"buffer_store_dwordx4 {vr(RX + 4)}, v{V_L16}, {srd(S_WS)}, s{T[4]} offen offset:1024 sc1")]


def y_flag(e, toks):
    e.wait(vm=toks)
    e(f"s_lshl_b32 s{T[0]}, s{S_U}, 4")
    e(f"s_lshl_b32 s{T[1]}, s{S_WAVE}, 2")
    e(f"s_add_u32 s{T[0]}, s{T[0]}, s{T[1]}")
    e(f"s_add_u32 s{T[0]}, s{T[0]}, {FL_Y:#x}")
    return flag_store(e, T[0])


def y_stage(e):
    a, b, c, d = TMP[0], TMP[1], TMP[2], TMP[3]
    YD, YA = 96, 104
    e(f"s_lshl_b32 s{T[13]}, s{S_N2}, 9")
    e(f"s_add_u32 s{T[13]}, s{T[13]}, {FL_Y:#x}")
    e(f"v_add_u32 v{V_PA}, s{T[13]}, v{V_L16}")
    e(f"s_lshr_b32 s{T[13]}, s{S_I2}, 1")
    e(f"s_lshl_b32 s{T[13]}, s{T[13]}, 4")
    e(f"s_add_u32 s{T[13]}, s{T[13]}, {FL_G:#x}")
    e(f"v_mov_b32 v{a}, s{T[13]}")
    e(f"v_cmp_gt_u32 vcc, 32, v{V_LANE}")
    e(f"s_mov_b32 s{T[13]}, 0")
    e(f"v_cndmask_b32 v{V_PA}, v{a}, v{V_PA}, vcc")
    e(f"v_lshrrev_b32 v{b}, 3, v0")
    e(f"v_and_b32 v{d}, 7, v0")
    e(f"v_lshlrev_b32 v{a}, 4, v{d}")
    e(f"v_lshl_add_u32 v{YA}, v{b}, 12, v{a}")
    e(f"v_lshrrev_b32 v{c}, 6, v0")
    e(f"v_xor_b32 v{c}, v{c}, v{d}")
    e(f"v_lshlrev_b32 v{c}, 4, v{c}")
    e(f"v_lshl_add_u32 v{c}, v{b}, 7, v{c}")
    e(f"v_xor_b32 v{YA + 2}, 64, v{c}")
    e(f"v_add_u32 v{YA + 1}, {L_YT}, v{c}")
    e(f"v_add_u32 v{YA + 2}, {L_YT}, v{YA + 2}")
    e(f"s_lshl_b32 s{T[2]}, s{S_N2}, 18")
    e(f"s_lshl_b32 s{T[3]}, s{S_I2}, 7")
    e(f"s_add_u32 s{T[2]}, s{T[2]}, s{T[3]}")
    e(f"s_add_u32 s{T[2]}, s{T[2]}, {WS_Y2:#x}")
    e(f"s_add_u32 s{T[3]}, s{T[2]}, {32 * 4096:#x}")
    poll_one(e, V_PA, T[13], 15, 4)
    y0 = e.vm(f"buffer_load_dwordx4 {vr(YD)}, v{YA}, {srd(S_WS)}, s{T[2]} offen sc1")
    y1 = e.vm(f"buffer_load_dwordx4 {vr(YD + 4)}, v{YA}, {srd(S_WS)}, s{T[3]} offen sc1")
    e(f"v_lshlrev_b32 v{a}, 2, v{V_LANE}")
    e(f"s_lshl_b32 s{T[2]}, s{S_I2}, 8")
    e(f"s_add_u32 s{T[2]}, s{T[2]}, {WS_G:#x}")
    g0 = e.vm(f"buffer_load_dword v{YA + 3}, v{a}, {srd(S_WS)}, s{T[2]} offen sc1")
    e(f"v_add_u32 v{a}, {L_GT}, v{a}")
    e.wait(vm=[y0, y1, g0])
    e.lg(f"ds_write_b32 v{a}, v{YA + 3}")
    e.lg(f"ds_write_b128 v{YA + 1}, {vr(YD)}")
    e.lg(f"ds_write_b128 v{YA + 2}, {vr(YD + 4)} offset:4096")


B_Q, B_G = 140, 144 + 8


def qg_loads(e):
    a = TMP[0]
    e(f"v_lshrrev_b32 v{a}, 3, v0")
    e(f"v_lshlrev_b32 v{a}, 2, v{a}")
    e(f"s_lshl_b32 s{T[0]}, s{S_I2}, 8")
    e(f"s_add_u32 s{T[0]}, s{T[0]}, {WS_G:#x}")
    return [e.vm(f"buffer_load_dwordx4 {vr(BQ)}, v{V_OUTO}, {srd(S_X)}, 0 offen")]


BQ, BG = 28, 12


def blend(e, qgt):
    a, b, c, d = TMP[0], TMP[1], TMP[2], TMP[3]
    P, Y = 32, 96
    e(f"v_lshrrev_b32 v{b}, 3, v0")
    e(f"v_and_b32 v{d}, 7, v0")
    e(f"v_mul_u32_u24 v{a}, 272, v{b}")
    e(f"v_lshl_add_u32 v{a}, v{d}, 5, v{a}")
    e(f"v_add_u32 v{TMP[4]}, {L_P2L}, v{a}")
    e(f"v_lshrrev_b32 v{c}, 6, v0")
    e(f"v_xor_b32 v{c}, v{c}, v{d}")
    e(f"v_lshlrev_b32 v{c}, 4, v{c}")
    e(f"v_lshl_add_u32 v{c}, v{d}, 10, v{c}")
    e(f"v_lshlrev_b32 v{TMP[5]}, 2, v{b}")
    e(f"v_add_u32 v{TMP[5]}, {L_GT}, v{TMP[5]}")
    e(f"v_and_b32 v{b}, 7, v{b}")
    e(f"v_lshl_add_u32 v{c}, v{b}, 1, v{c}")
    e(f"v_add_u32 v{c}, {L_YT}, v{c}")
    e.wait_all(vm=False, lg=True)
    for q in range(8):
        e(f"v_mov_b32 v{Y + q}, 0")
    e("s_barrier")
    gr = e.lg(f"ds_read_b32 v{BG}, v{TMP[5]}")
    rd = []
    for wv in range(4):
        for h in range(2):
            rd.append(e.lg(f"ds_read_b128 {vr(P + 8 * wv + 4 * h)}, v{a} offset:{wv * 17408 + h * 16}"))
    for wv in range(4):
        for h in range(2):
            rd.append(e.lg(f"ds_read_b128 {vr(P + 32 + 8 * wv + 4 * h)}, v{TMP[4]} offset:{wv * 17408 + h * 16}"))
    yr = [e.lg(f"ds_read_u16_d16_hi v{Y + cc}, v{c} offset:{cc * 128}") for cc in range(8)]
    e.wait(vm=qgt, lg=gr)
    e(f"v_lshlrev_b32 v104, 16, v{BG}")
    e(f"v_and_b32 v105, s{S_MASKHI}, v{BG}")
    for pr in range(4):
        unpack(e, 112 + 2 * pr, BQ + pr, 0)
        unpack(e, 113 + 2 * pr, BQ + pr, 1)
    for k in range(4):
        e.wait(lg=rd[4 * k:4 * k + 4])
        for r in range(8):
            e(f"v_add_f32 v{P + 16 * k + r}, v{P + 16 * k + r}, v{P + 16 * k + 8 + r}")
    for r in range(8):
        e(f"v_add_f32 v{P + r}, v{P + r}, v{P + 16 + r}")
        e(f"v_add_f32 v{P + 32 + r}, v{P + 32 + r}, v{P + 48 + r}")
    for r in range(8):
        e(f"v_add_f32 v{P + r}, v{P + r}, v{P + 32 + r}")
    e.wait(lg=yr)
    for pr in range(4):
        b0, b1 = P + 2 * pr, P + 2 * pr + 1
        q0, q1, tp, tq = 112 + 2 * pr, 113 + 2 * pr, 106 + 2 * (pr & 1), 107 + 2 * (pr & 1)
        round2(e, b0, b1, tp)
        e(f"v_mul_f32 v{q0}, v{q0}, v{Y + 2 * pr}")
        e(f"v_mul_f32 v{q1}, v{q1}, v{Y + 2 * pr + 1}")
        e(f"v_mul_f32 v{b0}, v{b0}, v105")
        e(f"v_mul_f32 v{b1}, v{b1}, v105")
        round2(e, q0, q1, tq)
        e(f"v_mul_f32 v{q0}, v{q0}, v104")
        e(f"v_mul_f32 v{q1}, v{q1}, v104")
        round2(e, b0, b1, tp)
        round2(e, q0, q1, tq)
        e(f"v_add_f32 v{b0}, v{b0}, v{q0}")
        e(f"v_add_f32 v{b1}, v{b1}, v{q1}")
        e(f"v_cvt_pk_bf16_f32 v{P + 16 + pr}, v{b0}, v{b1}")
    e.vm(f"buffer_store_dwordx4 {vr(P + 16)}, v{V_OUTO}, {srd(S_OUT)}, 0 offen")


def c_body():
    e = Em()
    if CFG["CPRIO"]:
        e(f"s_setprio {CFG['CPRIO']}")
    ptoks, mt = prep_a(e)
    stamp(e, 1)
    e(f"s_cmp_eq_u32 s{S_GJ}, 15")
    e("s_cbranch_scc1 L_c_g")
    if CFG["PINLINE"]:
        pc, pwr = prep_compute(ptoks)
        e.extend(pc)
        misc_use(e, mt, False)
        prep_rb_addr(e)
        e.wait(lg=pwr)
    e("s_barrier")
    NK = 32
    gaps = [Em() for _ in range(6 * NK)]
    trtok, xf = {}, {}
    xf[0] = x_fr(e, 0)
    for idx in range(6):
        trtok[(0, idx)] = w_tr(e, 0, idx)
    stamp(e, 2)
    if CFG["PINLINE"]:
        PB = -1
        prd = prep_readback(gaps[0])
        pst = prep_store(gaps[4], prd)
        prep_flag(gaps[6 * 8 + 2], pst)
    else:
        pc, pwr = prep_compute(ptoks)
        PB = CFG["PB"]
        spread(gaps, pc.L, 6 * CFG["PC0"], 6 * PB - 2)
        prep_rb_addr(gaps[6 * PB])
        prd = prep_readback(gaps[6 * PB + 1])
        misc_use(gaps[6 * PB + 3], mt, False)
        pst = prep_store(gaps[6 * PB + 5], prd)
        prep_flag(gaps[6 * (PB + 7) + 2], pst)
    for T_ in range(1, NK):
        xf[T_] = x_fr(gaps[6 * (T_ - 1)], T_)
        for idx in range(6):
            trtok[(T_, idx)] = w_tr(gaps[6 * (T_ - 1) + idx], T_, idx)
    for T_ in range(NK):
        if T_ in (8, 16, 24):
            stamp(e, 2 + T_ // 8)
        last = (T_ % 4 == 3) and T_ < NK - 5
        if T_ == 27 and CFG["S7F"]:
            lds_wait4(e, 32)
        if last:
            e.wait(lg=[t for idx in range(6) for t in trtok[(T_, idx)]] + [xf[T_]] + (pwr if T_ == PB else []))
            e("s_barrier")
        else:
            e.wait(lg=trtok[(T_, 0)] + trtok[(T_, 1)] + [xf[T_]])
        for idx in range(6):
            ft, mat = idx >> 1, idx & 1
            A = ACC_OF[ft] + 16 * mat
            if idx in (2, 4):
                e.wait(lg=trtok[(T_, idx)] + trtok[(T_, idx + 1)])
            c = "0" if T_ == 0 else vr(A, 16)
            e(f"v_mfma_f32_32x32x16_bf16 {vr(A, 16)}, {ar(A_WF + 24 * (T_ % 2) + 4 * idx)}, "
              f"{ar(A_XF + 4 * (T_ % 2))}, {c}")
            e.extend(gaps[6 * T_ + idx])
    e("s_branch L_c_join")
    e.label("L_c_g")
    ge = Em()
    ge.wait_all()
    gpc, gwr = prep_compute([])
    ge.extend(gpc)
    misc_use(ge, [], False)
    prep_rb_addr(ge)
    ge.wait_all()
    ge("s_barrier")
    gps = prep_store(ge, prep_readback(ge))
    ge(f"s_add_u32 s{T[9]}, s{S_WAVE}, 8")
    lds_set(ge, f"s{T[9]}")
    prep_flag(ge, gps)
    for ftl in range(3):
        h_flag(ge, ftl, [])
    g_path(ge)
    ge.wait_all()
    ge(f"s_lshl_b32 s{T[0]}, s{S_GI}, 4")
    ge(f"s_lshl_b32 s{T[1]}, s{S_WAVE}, 2")
    ge(f"s_add_u32 s{T[0]}, s{T[0]}, s{T[1]}")
    ge(f"s_add_u32 s{T[0]}, s{T[0]}, {FL_G:#x}")
    flag_store(ge, T[0])
    ge.wait_all()
    ge("s_branch L_c_join2")
    e.L.append(("SUB", ge))
    e.label("L_c_join")
    stamp(e, 6)
    e(f"s_add_u32 s{T[9]}, s{S_WAVE}, 8")
    lds_set(e, f"s{T[9]}")
    ht, wtr, wdt, hl = {}, {}, {}, {}
    ht[0] = g1_epilogue(e, 0)
    f0 = lambda em: h_flag(em, 0, ht[0])
    f1 = lambda em: h_flag(em, 1, ht[1])
    ht[1] = g1_epilogue(e, 1, mids=(None, f0) if CFG["FLATE"] else (f0,))
    stamp(e, 7)
    ht[2] = g1_epilogue(e, 2, mids=(None, f1) if CFG["FLATE"] else (f1,))
    e.label("L_c_join2")
    stamp(e, 8)
    e(f"s_add_u32 s{T[9]}, s{S_WAVE}, 24")
    lds_wait1(e, T[9])
    for m in range(5):
        wtr[m] = wd_tr(e, m, CW_SET[m])
    h_flag(e, 2, ht[2])
    h_poll(e, 0)
    stamp(e, 9)
    for m in range(3):
        hl[m] = h_loads(e, m, CH_SET[m], S_XM0)
    for n in (5, 6):
        wdt[n] = wd_dma(e, n, n - 5)
    stamp(e, 10)
    h_poll(e, 1)
    for m in range(3, 5):
        hl[m] = h_loads(e, m, CH_SET[m], S_XM0)
    stamp(e, 11)
    for m in range(7):
        g2_slot(e, m == 0, CW_SET[m % 5], CH_SET[m % 5], hl[m], wtr[m], "a", 0)
        n = m + 5
        if n < 7:
            hl[n] = h_loads(e, n, CH_SET[n % 5], S_XM0)
            e.wait(vm=wdt[n])
            wtr[n] = wd_tr(e, n % 5, CW_SET[n % 5])
        if m == 2:
            e.wait(lg=wtr[6])
            e(f"s_add_u32 s{T[9]}, s{S_WAVE}, 20")
            lds_set(e, f"s{T[9]}")
    stamp(e, 12)
    qgt = qg_loads(e)
    lds_wait4(e, 20)
    e(f"s_mul_i32 s{T[9]}, s{S_WAVE}, 17408")
    partials(e, f"s{T[9]}", "a", 0)
    lds_wait4(e, 28)
    stamp(e, 13)
    y_stage(e)
    stamp(e, 14)
    blend(e, qgt)
    stamp(e, 15)
    e("s_branch L_fin")
    return e


def l_addr(e):
    a, b, c = TMP[0], TMP[1], TMP[2]
    e(f"s_mov_b32 s{T[0]}, 0x5556")
    for i in range(3):
        e(f"v_add_u32 v{a}, {64 * i}, v{V_LANE}")
        e(f"v_mul_u32_u24 v{b}, s{T[0]}, v{a}")
        e(f"v_lshrrev_b32 v{b}, 18, v{b}")
        e(f"v_mul_u32_u24 v{c}, 12, v{b}")
        e(f"v_sub_u32 v{a}, v{a}, v{c}")
        e(f"v_lshlrev_b32 v{a}, 4, v{a}")
        e(f"v_mul_u32_u24 v{b}, 2752, v{b}")
        e(f"v_add_u32 v{V_WDMA + i}, v{a}, v{b}")
        if i:
            e(f"v_subrev_u32 v{V_WDMA + i}, {1024 * i}, v{V_WDMA + i}")
    e(f"s_mul_i32 s{S_WSOFF}, s{S_GJ}, 192")
    e(f"s_mul_i32 s{T[0]}, s{S_WAVE}, {16 * 2752}")
    e(f"s_add_u32 s{S_WSOFF}, s{S_WSOFF}, s{T[0]}")
    e(f"v_lshrrev_b32 v{a}, 3, v{V_LANE}")
    e(f"v_lshlrev_b32 v{a}, 10, v{a}")
    e(f"v_and_b32 v{b}, 7, v{V_LANE}")
    e(f"v_lshl_add_u32 v{V_XDMA}, v{b}, 4, v{a}")
    for m in range(1, 4):
        e(f"v_add_u32 v{V_XDMA + m}, {m * (8192 - 1040)}, v{V_XDMA}")
    e(f"s_lshl_b32 s{S_RHO}, s{S_GJ}, 1")
    e(f"s_add_u32 s{S_RHO}, s{S_RHO}, s{S_GI}")
    e(f"s_and_b32 s{S_RHO}, s{S_RHO}, {CFG['ROT']}")
    e(f"s_mul_i32 s{S_WRB}, s{S_WAVE}, 3072")
    e(f"s_mul_i32 s{S_XM0}, s{S_WAVE}, 4160")


def l_addr2(e):
    a, b, c = TMP[0], TMP[1], TMP[2]
    e(f"v_and_b32 v{V_T}, 255, v0")
    e(f"s_and_b32 s{T[1]}, s{S_WAVE}, 1")
    e(f"s_lshl_b32 s{T[2]}, s{S_CH}, 12")
    e(f"s_lshl_b32 s{T[3]}, s{T[1]}, 2")
    e(f"s_add_u32 s{T[2]}, s{T[2]}, s{T[3]}")
    e(f"s_sub_u32 s{T[2]}, s{T[2]}, 64")
    e(f"s_mov_b32 s{T[1]}, 0xaaab")
    for phi in range(3):
        e(f"v_add_u32 v{a}, {phi * 64}, v{V_LANE}")
        e(f"v_mul_u32_u24 v{b}, s{T[1]}, v{a}")
        e(f"v_lshrrev_b32 v{b}, 20, v{b}")
        e(f"v_mul_u32_u24 v{c}, 24, v{b}")
        e(f"v_sub_u32 v{c}, v{a}, v{c}")
        e(f"v_lshlrev_b32 v{c}, 4, v{c}")
        e(f"v_lshl_add_u32 v{c}, v{b}, 8, v{c}")
        e(f"v_add_u32 v{V_HC + phi}, s{T[2]}, v{c}")
        e(f"v_add_u32 v{V_HC + 3 + phi}, 2048, v{V_HC + phi}")
    wd_addr(e, 1)
    out_addr(e)


def stage_dma(e, n):
    toks = []
    base = PHYS[n % 3]
    e(f"s_add_u32 s{T[4]}, s{S_RHO}, {n}")
    e(f"s_and_b32 s{T[4]}, s{T[4]}, 7")
    e(f"s_lshl_b32 s{T[5]}, s{T[4]}, 7")
    e(f"s_add_u32 s{T[5]}, s{T[5]}, s{S_XSOFF}")
    e(f"s_mul_i32 s{T[4]}, s{T[4]}, {64 * 2752}")
    e(f"s_add_u32 s{T[4]}, s{T[4]}, s{S_WSOFF}")
    e(f"s_add_u32 m0, s{S_XM0}, {base + 24576}")
    e("s_nop 0")
    for m in range(4):
        toks.append(e.vm(f"buffer_load_dwordx4 v{V_XDMA + m}, {srd(S_X)}, s{T[5]} offen offset:{m * 1040} lds"))
    for mat, sr in ((0, S_WG), (1, S_WU)):
        e(f"s_add_u32 m0, s{S_WRB}, {base + mat * 12288}")
        e("s_nop 0")
        for i in range(3):
            toks.append(e.vm(f"buffer_load_dwordx4 v{V_WDMA + i}, {srd(sr)}, s{T[4]} offen offset:{1024 * i} lds"))
    return toks


def hc_dma(e):
    toks = []
    e(f"s_mul_i32 s{T[8]}, s{S_WAVE}, 6208")
    for q in range(6):
        e(f"s_add_u32 m0, s{T[8]}, {L_HC + q * 1024}")
        e("s_nop 0")
        toks.append(e.vm(f"buffer_load_dwordx4 v{V_HC + q}, {srd(S_SSM)}, 0 offen lds"))
    e(f"s_lshl_b32 s{T[8]}, s{S_CH}, 12")
    e(f"v_mov_b32 v{TMP[4]}, 0")
    toks.append(e.vm(f"buffer_load_dword v{V_H01}, v{TMP[4]}, {srd(S_SSM)}, s{T[8]} offen"))
    return toks


def hc_fix(e, toks):
    a, b = TMP[4], TMP[5]
    e.wait(vm=toks)
    e(f"s_and_b32 s{T[8]}, s{S_WAVE}, 1")
    e(f"s_cmp_eq_u32 s{T[8]}, 1")
    e(f"s_cselect_b32 s{T[9]}, 15, 99")
    e(f"v_cmp_eq_u32 vcc, s{T[9]}, v{V_LANE}")
    e(f"s_mul_i32 s{T[8]}, s{S_WAVE}, 6208")
    e(f"s_add_u32 s{T[8]}, s{T[8]}, {L_HC}")
    e(f"v_cndmask_b32 v{a}, 0, v{V_H01}, vcc")
    e(f"v_lshlrev_b32 v{b}, 2, v{V_LANE}")
    e(f"v_add_u32 v{b}, s{T[8]}, v{b}")
    e("s_mov_b64 exec, 0xffff")
    t = e.lg(f"ds_write_b32 v{b}, v{a}")
    e("s_mov_b64 exec, -1")
    return t


K_D, K_A, K_Z = 144, 152, 156


def ur_zero(e):
    a = TMP[4]
    for q in range(4):
        e(f"v_mov_b32 v{K_Z + q}, 0")
    e(f"v_lshlrev_b32 v{a}, 4, v{V_T}")
    e(f"v_add_u32 v{a}, {L_UR}, v{a}")
    e(f"v_cmp_gt_u32 vcc, 80, v{V_T}")
    e(f"s_and_saveexec_b64 s[{S_EXSAVE}:{S_EXSAVE + 1}], vcc")
    e.lg(f"ds_write_b128 v{a}, {vr(K_Z)} offset:5120")
    e.lg(f"ds_write_b128 v{a}, {vr(K_Z)} offset:{6400 + 5120}")
    e("s_mov_b64 exec, -1")


def kv_poll_issue(e):
    e(f"v_and_b32 v{V_PA}, 31, v{V_LANE}")
    e(f"v_lshlrev_b32 v{V_PA}, 4, v{V_PA}")
    e(f"s_lshr_b32 s{T[10]}, s{S_U}, 5")
    e(f"s_lshl_b32 s{T[10]}, s{T[10]}, 9")
    e(f"s_add_u32 s{T[10]}, s{T[10]}, {FL_P:#x}")
    return None


def kv_load(e, tok, slp=None):
    poll_one(e, V_PA, T[10], 14, slp)
    e(f"v_lshlrev_b32 v{K_A}, 4, v{V_T}")
    e(f"s_lshl_b32 s{T[11]}, s{S_U}, 13")
    e(f"s_add_u32 s{T[11]}, s{T[11]}, {WS_KV:#x}")
    e(f"s_add_u32 s{T[12]}, s{T[11]}, 4096")
    return [e.vm(f"buffer_load_dwordx4 {vr(K_D)}, v{K_A}, {srd(S_WS)}, s{T[11]} offen sc1"),
            e.vm(f"buffer_load_dwordx4 {vr(K_D + 4)}, v{K_A}, {srd(S_WS)}, s{T[12]} offen sc1")]


def kv_write(e, toks):
    e(f"v_lshrrev_b32 v{K_A}, 2, v{V_T}")
    e(f"v_mul_u32_u24 v{K_A}, 80, v{K_A}")
    e(f"v_and_b32 v{K_A + 1}, 3, v{V_T}")
    e(f"v_lshl_add_u32 v{K_A}, v{K_A + 1}, 4, v{K_A}")
    e(f"v_add_u32 v{K_A}, {L_UR}, v{K_A}")
    e.wait(vm=toks)
    return [e.lg(f"ds_write_b128 v{K_A}, {vr(K_D)}"),
            e.lg(f"ds_write_b128 v{K_A}, {vr(K_D + 4)} offset:6400")]


def touch_loads(e):
    b = TMP[1]
    e(f"s_and_b32 s{T[0]}, s{S_I2}, 7")
    e(f"s_lshl_b32 s{T[0]}, s{T[0]}, 2")
    e(f"s_add_u32 s{T[0]}, s{T[0]}, s{S_WAVE}")
    e(f"s_lshl_b32 s{T[0]}, s{T[0]}, 16")
    e(f"s_lshl_b32 s{T[1]}, s{S_N2}, 7")
    e(f"s_add_u32 s{T[0]}, s{T[0]}, s{T[1]}")
    e(f"v_lshlrev_b32 v{b}, 10, v{V_LANE}")
    e.vm(f"buffer_load_dword v12, v{b}, {srd(S_WD)}, s{T[0]} offen")


def wd_dma(e, m, buf):
    toks = []
    e(f"s_add_u32 m0, s{S_WDBASE}, {buf * 16384}")
    e(f"s_lshl_b32 s{T[8]}, s{S_FT + m}, 4")
    for q in range(4):
        toks.append(e.vm(f"buffer_load_dwordx4 v{V_WDDMA + q}, {srd(S_WD)}, s{T[8]} offen offset:{q * 1024} lds"))
    return toks


def wd_tr(e, buf, kr):
    toks = []
    k, r0 = kr
    base, vb = buf * 16384, (V_WDTR, V_WDTR + 1)
    if buf == 4:
        e(f"v_add_u32 v{TMP[2]}, 0x10000, v{V_WDTR}")
        e(f"v_add_u32 v{TMP[3]}, 0x10000, v{V_WDTR + 1}")
        base, vb = 0, (TMP[2], TMP[3])
    for half in range(2):
        for dt in range(2):
            r = r0 + 4 * (half * 2 + dt)
            for q in range(2):
                toks.append(e.lg(
                    f"ds_read_b64_tr_b16 {rr(k, r + 2 * q, 2)}, v{vb[dt]} offset:{base + (16 * half + 8 * q) * 128}"))
    return toks


def h_poll(e, level):
    e(f"v_and_b32 v{V_PA}, 7, v{V_LANE}")
    e(f"v_lshlrev_b32 v{V_PA}, 4, v{V_PA}")
    e(f"s_lshl_b32 s{T[13]}, s{S_I2}, 9")
    e(f"s_add_u32 s{T[13]}, s{T[13]}, {FL_H + 128 * level:#x}")
    poll_one(e, V_PA, T[13], (12, 16, 13)[level], 4)


def h_loads(e, m, kr, sbase):
    toks = {}
    k, r0 = kr
    for st in range(2):
        e(f"s_add_u32 s{T[9]}, s{sbase}, s{S_FT + m}")
        if st:
            e(f"s_add_u32 s{T[9]}, s{T[9]}, {43 * 2048}")
        if m == 10:
            e(f"s_cmp_eq_u32 s{S_WAVE}, 3")
            e(f"s_cselect_b32 s{T[9]}, {WS_SIZE:#x}, s{T[9]}")
        for half in range(2):
            r = r0 + 4 * (st * 2 + half)
            toks[(st, half)] = e.vm(
                f"buffer_load_dwordx4 {rr(k, r, 4)}, v{V_L16}, {srd(S_WS)}, s{T[9]} offen offset:{half * 1024} sc1")
    return toks


def g2_slot(e, first, wk, hk, ht, wtr, acck, acc0):
    ka, ra0 = wk
    kb, rb0 = hk
    for half in range(2):
        for stt in range(2):
            e.wait(vm=ht[(stt, half)], lg=wtr if (half == 0 and stt == 0) else None)
            for dt in range(2):
                acc = rr(acck, acc0 + 32 * dt + 16 * stt, 16)
                c = "0" if (first and half == 0) else acc
                e(f"v_mfma_f32_32x32x16_bf16 {acc}, {rr(ka, ra0 + 4 * (half * 2 + dt), 4)}, "
                  f"{rr(kb, rb0 + 4 * (stt * 2 + half), 4)}, {c}")


def partials(e, sbase_expr, acck, acc0):
    a, b = TMP[0], TMP[1]
    e(f"v_and_b32 v{a}, 31, v{V_LANE}")
    e(f"v_mul_u32_u24 v{a}, 272, v{a}")
    e(f"v_lshrrev_b32 v{b}, 5, v{V_LANE}")
    e(f"v_lshl_add_u32 v{a}, v{b}, 4, v{a}")
    e(f"v_add_u32 v{a}, {sbase_expr}, v{a}")
    e("s_nop 7")
    for dt in range(2):
        for stt in range(2):
            for q in range(4):
                e.lg(f"ds_write_b128 v{a}, {rr(acck, acc0 + 32 * dt + 16 * stt + 4 * q, 4)} "
                     f"offset:{stt * 32 * 272 + dt * 128 + q * 32}")


def epoch_cond(e, lbl):
    e(f"s_lshl_b32 s{T[0]}, s{S_GI}, 2")
    e(f"s_add_u32 s{T[0]}, s{T[0]}, s{S_WAVE}")
    e(f"s_lshl_b32 s{T[0]}, s{T[0]}, 4")
    e(f"s_add_u32 s{T[0]}, s{T[0]}, s{S_GJ}")
    e(f"s_cmp_lg_u32 s{T[0]}, 15")
    e(f"s_cbranch_scc1 {lbl}")


def epoch_finish(e):
    epoch_cond(e, "L_noep2")
    for q in range(4):
        e(f"s_mov_b32 s{T[1]}, {FL_P + q * 1024:#x}")
        e(f"buffer_load_dwordx4 {vr(96 + 4 * q)}, v{V_L16}, {srd(S_WS)}, s{T[1]} offen sc1")
    e("s_waitcnt vmcnt(0)")
    for q in range(4):
        e(f"s_mov_b32 s{T[10]}, {FL_P + q * 1024:#x}")
        poll_check(e, None, V_L16, T[10], 96 + 4 * q, 20)
    e(f"s_sub_u32 s{T[0]}, s{S_TAG}, {TAGK - 1:#x}")
    e(f"v_mov_b32 v{TMP[0]}, s{T[0]}")
    e(f"v_mov_b32 v{TMP[1]}, 0")
    e(f"s_mov_b32 s{T[1]}, {FL_EPOCH:#x}")
    e("s_mov_b64 exec, 1")
    e(f"buffer_store_dword v{TMP[0]}, v{TMP[1]}, {srd(S_WS)}, s{T[1]} offen sc1")
    e("s_mov_b64 exec, -1")
    e.label("L_noep2")


def conv_staging(e, hct, slp=None):
    pt = kv_poll_issue(e)
    ur_zero(e)
    kt = kv_load(e, pt, slp)
    hc_fix(e, hct)
    return kt


def l_body():
    e = Em()
    e.label("L_loader")
    l_addr(e)
    e(f"v_lshlrev_b32 v{TMP[0]}, 2, v{V_LANE}")
    e(f"v_add_u32 v{TMP[0]}, {L_FL}, v{TMP[0]}")
    e(f"v_mov_b32 v{TMP[1]}, 0")
    e.wait_all(vm=False, lg=True)
    e.lg(f"ds_write_b32 v{TMP[0]}, v{TMP[1]}")
    stamp(e, 0)
    e(f"s_cmp_eq_u32 s{S_GJ}, 15")
    e("s_cbranch_scc1 L_l_g")
    st = {}
    for n in range(CFG["PRE"]):
        st[n] = stage_dma(e, n)
    stamp(e, 1)
    for n in range(7):
        e.wait(vm=st[n] if (n < 6 or CFG['S7F']) else st[7])
        e.wait_all(vm=False, lg=True)
        e("s_barrier")
        if n in (0, 4):
            stamp(e, 2 + n // 4)
        for k in range(n + 1, min(n + 3, 8)):
            if k not in st:
                st[k] = stage_dma(e, k)
        if n == 0:
            mt = misc_loads(e, True)
            l_addr2(e)
        if n == 2:
            misc_use(e, mt, True)
        if n == 3 and CFG["TOUCH"]:
            touch_loads(e)
        if n == 5:
            hct = hc_dma(e)
            conv_addr(e)
            kv_poll_issue(e)
            ur_zero(e)
    if CFG["S7F"]:
        e.wait(vm=st[7])
        e(f"s_add_u32 s{T[9]}, s{S_WAVE}, 32")
        lds_set(e, f"s{T[9]}")
    e("s_branch L_l_join")
    e.label("L_l_g")
    ge = Em()
    misc_loads(ge, True)
    l_addr2(ge)
    ge.wait_all()
    ge("s_barrier")
    misc_use(ge, [], True)
    hc_dma(ge)
    conv_addr(ge)
    lds_wait4(ge, 8)
    ge("s_sleep 100")
    kv_poll_issue(ge)
    ur_zero(ge)
    ge.wait_all()
    e.L.append(("SUB", ge))
    e.label("L_l_join")
    stamp(e, 4)
    kt = kv_load(e, None)
    lwt = {}
    lw = {0: wd_dma(e, 7, 0), 1: wd_dma(e, 8, 1)}
    hc_fix(e, hct)
    kv_write(e, kt)
    e.wait_all(vm=False, lg=True)
    lds_set(e, f"s{S_WAVE}")
    if CFG["LPRIO"] and CFG["PRIO_AT"] == 0:
        e(f"s_setprio {CFG['LPRIO']}")
    lds_wait4(e, 0)
    stamp(e, 5)
    hr, ft = {}, {}
    for nn in range(4):
        for p in range(4):
            hr[(p, nn)] = conv_hraw(e, p, nn)
    for dl in range(4):
        ft[(0, dl)] = conv_f(e, 0, dl)
    for nn in range(3):
        for p in range(4):
            e.wait(lg=hr[(p, nn)] + hr[(p, nn + 1)][:1])
            conv_align(e, p, nn)
    stamp(e, 6)
    cg = [Em() for _ in range(160)]
    for tt in range(8):
        g0 = 20 * tt
        if tt + 4 <= 10:
            for p in range(4):
                hr[(p, tt + 4)] = conv_hraw(cg[g0 + p], p, tt + 4)
        if tt + 1 < 8:
            for dl in range(4):
                ft[(tt + 1, dl)] = conv_f(cg[g0 + 4 + dl], tt + 1, dl)
            g = cg[g0 + 11]
            g.wait(lg=[t for p in range(4) for t in hr[(p, tt + 3)] + hr[(p, tt + 4)][:1]])
            for p in range(4):
                conv_align(cg[g0 + 11 + 2 * p], p, tt + 3)
    G0, G1, G2, G3, G4 = CFG["LG"]
    g = cg[G0]
    for i in range(2):
        g.wait(vm=lw[i])
        lwt[i] = wd_tr(g, i, LW_SET[i])
    g = cg[G1]
    g.wait(lg=lwt[1])
    cw = wd_dma(g, 0, 0) + wd_dma(cg[G1 + 3], 1, 1)
    g = cg[G2]
    lds_wait4(g, 8)
    lw[2] = wd_dma(g, 9, 2)
    lw[3] = wd_dma(cg[G2 + 3], 10, 3)
    cw += wd_dma(cg[G2 + 6], 4, 4)
    g = cg[G3]
    for i in range(2, 4):
        g.wait(vm=lw[i])
        lwt[i] = wd_tr(g, i, LW_SET[i])
    g = cg[G3 + 6]
    g.wait(lg=lwt[3])
    cw += wd_dma(g, 2, 2) + wd_dma(cg[G3 + 9], 3, 3)
    g = cg[G4]
    g.wait(vm=cw)
    g(f"s_add_u32 s{T[9]}, s{S_WAVE}, 24")
    lds_set(g, f"s{T[9]}")
    for tt in range(8):
        idx = 0
        if tt == 4:
            stamp(e, 7)
        if CFG["LPRIO"] and CFG["PRIO_AT"] and tt == CFG["PRIO_AT"]:
            e(f"s_setprio {CFG['LPRIO']}")
        for dl in range(4):
            e.wait(lg=ft[(tt, dl)])
            for p in range(4 - dl):
                j = p + dl
                for bb in range(2):
                    acc = C_ACC + 8 * j + 4 * bb
                    h = C_H + 20 * p + 4 * ((tt + 2 * bb) % 5)
                    f = A_F + 16 * (tt % 2) + 4 * dl
                    c = "0" if (tt == 0 and dl == 0) else vr(acc)
                    e(f"v_mfma_f32_16x16x32_bf16 {vr(acc)}, {vr(h)}, {ar(f)}, {c}")
                    e.extend(cg[20 * tt + idx])
                    idx += 1
    stamp(e, 8)
    lds_wait4(e, 8)
    yst = conv_epilogue(e)
    e.wait_all(vm=False, lg=True)
    e(f"s_add_u32 s{T[9]}, s{S_WAVE}, 28")
    lds_set(e, f"s{T[9]}")
    y_flag(e, yst)
    if CFG["LPRIO"]:
        e("s_setprio 0")
    stamp(e, 9)
    lds_wait1i(e, 12)
    lds_wait1i(e, 16)
    h_poll(e, 2)
    hl = {}
    for i in range(4):
        hl[i] = h_loads(e, 7 + i, LH_SET[i], S_HOFF)
    qgt = qg_loads(e)
    stamp(e, 10)
    for i in range(4):
        g2_slot(e, i == 0, LW_SET[i], LH_SET[i], hl[i], lwt[i], "v", 32)
    stamp(e, 11)
    lds_wait4(e, 28)
    e(f"s_mul_i32 s{T[9]}, s{S_WAVE}, 17408")
    e(f"s_add_u32 s{T[9]}, s{T[9]}, {L_P2L}")
    partials(e, f"s{T[9]}", "v", 32)
    stamp(e, 12)
    blend(e, qgt)
    stamp(e, 15)
    epoch_finish(e)
    return e


def resolve_sub(ge):
    own = {id(i) for i in ge.L}
    L = []
    for i in ge.L:
        if i.kind == "wait":
            L.append(Ins("", "wait", [t for t in i.vm if id(t) in own], [t for t in i.lg if id(t) in own]))
        else:
            L.append(i)
    return resolve_waits(L)


def flatten(e):
    subs, L = {}, []
    for i in e.L:
        if isinstance(i, tuple):
            key = f";;SUB{len(subs)}"
            subs[key] = i[1]
            L.append(Ins(key))
        else:
            L.append(i)
    out = []
    for ln in resolve_waits(L):
        if ln in subs:
            out.extend(resolve_sub(subs[ln]))
        else:
            out.append(ln)
    return out


def emit(path):
    _lbl[0] = 0
    e0 = Em()
    setup(e0)
    lines = flatten(e0) + flatten(c_body()) + flatten(l_body())
    lines, npad = pad_hazards(lines)
    hdr = open("gated_mix__ssm_conv_h3__geglu_ffn__prompt.s.ref").read().split("; @launch")[0]
    txt = hdr
    txt += f"; @launch grid=(256,1,1) block=(512,1,1) lds={LDS_SIZE}\n"
    txt += '.amdgcn_target "amdgcn-amd-amdhsa--gfx950"\n.text\n'
    txt += f".globl {KNAME}\n.p2align 8\n.type {KNAME},@function\n{KNAME}:\n"
    for ln in lines:
        txt += ("" if ln.endswith(":") else "    ") + ln + "\n"
    txt += "L_fin:\nL_end:\n    s_endpgm\n"
    txt += f""".section .rodata,"a"
.p2align 6
.amdhsa_kernel {KNAME}
  .amdhsa_next_free_vgpr 256
  .amdhsa_next_free_sgpr 102
  .amdhsa_accum_offset 160
  .amdhsa_group_segment_fixed_size 0
  .amdhsa_kernarg_size 112
  .amdhsa_user_sgpr_count 2
  .amdhsa_user_sgpr_kernarg_segment_ptr 1
  .amdhsa_system_sgpr_workgroup_id_x 1
.end_amdhsa_kernel
"""
    open(path, "w").write(txt)
    return len(lines), npad


if __name__ == "__main__":
    out = sys.argv[1] if len(sys.argv) > 1 else "k6.s"
    for a in sys.argv[2:]:
        k, v = a.split("=")
        CFG[k] = eval(v)
    print(emit(out))
```

```python
import sys, struct, math
sys.path.insert(0, "work")
from asmlib import Em, Ins, resolve_waits, pad_hazards

KNAME = "gated_mix__ssm_conv_h3__geglu_ffn__prompt_kernel"

CFG = dict(EMU_PREP=True, EMU_G1=True, STAMPS=False, POLL_MAX=200000, ROT=7, SLEEP=8, TOUCH=True,
           KV_AFTER=5, CPRIO=0, PRE=2, LPRE=True, LPRIO=2, PDELAY=0, EPRIO=0, GPRIO=0, DBGW=0, S7F=True, LG=(9, 18, 29, 69, 118), FLATE=False, PINLINE=True, CWF=29, TOUCH2=False, TDELAY=0, PC0=4, PB=15, PRIO_AT=0)

WS_KV = 0x600000
WS_Y2 = 0x800000
WS_G = 0xA00000
WS_FLG = 0xB00000
FL_EPOCH = WS_FLG
FL_P = WS_FLG + 0x1000
FL_H = WS_FLG + 0x2000
FL_Y = WS_FLG + 0x8000
FL_G = WS_FLG + 0xA000
WS_STAMP = 0xC00000
WS_SIZE = 0x10000000
TAGK = 0x9E3779B9

SLOT = 41216
PHYS = {2: 0, 0: SLOT, 1: 2 * SLOT}
L_WDB = 0
WDB_STRIDE = 20608
L_LWD = 2 * SLOT
L_EX = 2 * SLOT + 16384
L_P2L = 2 * SLOT
L_YT = 2 * SLOT + 4 * 17408
L_HC = 123648
L_UR = 148480
L_PT = 148480
L_SH = 161280
L_FL = 162304
L_GT = 162816
LDS_SIZE = 163840

S_X, S_K, S_V, S_SH, S_SSM, S_WG, S_WU, S_WD, S_GW, S_OUT, S_WS, S_HST, S_DD = [4 + 4 * i for i in range(13)]
S_WAVE, S_GI, S_GJ, S_I2, S_N2, S_TAG = 56, 57, 58, 59, 60, 61
T = list(range(62, 76))
S_C1, S_MASKHI = 76, 77
S_EXSAVE = 78
S_WSOFF, S_XSOFF, S_XM0, S_HOFF, S_FHOFF, S_CH, S_POLL, S_U, S_DF = 80, 81, 82, 83, 84, 85, 86, 87, 88
S_WDBASE = 89
S_RHO, S_WRB = 3, 2
S_FT = 90
S_STI = 101


def srd(b): return f"s[{b}:{b + 3}]"
def vr(b, n=4): return f"v[{b}:{b + n - 1}]"
def ar(b, n=4): return f"a[{b}:{b + n - 1}]"
def rr(k, b, n): return f"{k}[{b}:{b + n - 1}]"
def f32hex(x): return "0x%08x" % struct.unpack("<I", struct.pack("<f", x))[0]


V_LANE, V_L16 = 1, 2
TMP = [13, 14, 15, 16, 17, 18]
V_PA = 19
V_PD = 20
V_EPO, V_H01, V_OUTO, V_T = 24, 25, 26, 27
V_WTR = 3
V_XRD = 6
V_C0 = 9
ACC_OF = {0: 96, 1: 64, 2: 32}
V_ET = 144
A_WF = 0
A_XF = 48
P_K, P_V, P_SH, P_AD, P_T = 32, 52, 60, 76, 84
V_WDMA = 3
V_XDMA = 6
V_F, V_H, V_SHF = 3, 4, 5
V_HC = 32
C_ACC, C_H = 32, 64
A_F = 0
V_WDDMA = 28
V_WDTR = 10
CW_SET = [("v", 96), ("v", 112), ("v", 64), ("v", 80), ("v", 32)]
CH_SET = [("a", 64), ("a", 80), ("v", 128), ("v", 48), ("v", 144)]
LW_SET = [("a", 32), ("a", 48), ("a", 64), ("a", 80)]
LH_SET = [("v", 96), ("v", 112), ("v", 128), ("v", 144)]


_lbl = [0]


def stamp(e, idx):
    if not CFG["STAMPS"] or (CFG["STAMPS"] == 2 and idx not in (0, 15)):
        return
    if CFG["STAMPS"] == 3:
        n = _lbl[0]
        _lbl[0] += 1
        e.wait_all(vm=False, lg=True)
        e(f"s_cmp_lg_u32 s{S_STI}, {CFG['DBGW']}")
        e(f"s_cbranch_scc1 L_st{n}")
        e(f"s_load_dwordx2 s[{S_EXSAVE}:{S_EXSAVE + 1}], s[0:1], 96")
        e("s_memrealtime vcc")
        e("s_waitcnt lgkmcnt(0)")
        e(f"v_mov_b32 v{TMP[0]}, vcc_lo")
        e(f"v_mov_b32 v{TMP[1]}, 0")
        e("s_mov_b64 exec, 1")
        e(f"global_store_dword v{TMP[1]}, v{TMP[0]}, s[{S_EXSAVE}:{S_EXSAVE + 1}] offset:{idx * 4}")
        e("s_mov_b64 exec, -1")
        e.label(f"L_st{n}")
        return
    e.wait_all(vm=False, lg=True)
    e("s_memrealtime s[0:1]")
    e(f"s_memtime s[{S_EXSAVE}:{S_EXSAVE + 1}]")
    e.wait_all(vm=False, lg=True)
    e(f"v_mov_b32 v{TMP[0]}, s0")
    e(f"v_mov_b32 v{TMP[1]}, s{S_STI}")
    e(f"v_mov_b32 v{TMP[2]}, s{S_EXSAVE}")
    e("s_mov_b64 exec, 1")
    e.vm(f"buffer_store_dword v{TMP[0]}, v{TMP[1]}, {srd(S_WS)}, 0 offen offset:{idx * 4}")
    e.vm(f"buffer_store_dword v{TMP[2]}, v{TMP[1]}, {srd(S_WS)}, 0 offen offset:{128 + idx * 4}")
    e("s_mov_b64 exec, -1")


def flag_store(e, s_addr):
    e(f"v_mov_b32 v{TMP[0]}, s{S_TAG}")
    e(f"v_mov_b32 v{TMP[1]}, 0")
    e("s_mov_b64 exec, 1")
    t = e.vm(f"buffer_store_dword v{TMP[0]}, v{TMP[1]}, {srd(S_WS)}, s{s_addr} offen sc1")
    e("s_mov_b64 exec, -1")
    return t


def poll_issue(e, vaddr, s_addr, vdst):
    return e.vm(f"buffer_load_dwordx4 {vr(vdst)}, v{vaddr}, {srd(S_WS)}, s{s_addr} offen sc1")


def poll_check(e, tok, vaddr, s_addr, vdst, slp=None):
    n = _lbl[0]
    _lbl[0] += 1
    e.wait(vm=tok)
    e(f"s_mov_b32 s{S_POLL}, 0")
    e.label(f"L_pc{n}")
    for q in range(4):
        e(f"v_xor_b32 v{vdst + q}, s{S_TAG}, v{vdst + q}")
    e(f"v_or3_b32 v{vdst}, v{vdst}, v{vdst + 1}, v{vdst + 2}")
    e(f"v_or_b32 v{vdst}, v{vdst}, v{vdst + 3}")
    e(f"v_cmp_eq_u32 vcc, 0, v{vdst}")
    e("s_nop 1")
    e("s_cmp_eq_u64 vcc, -1")
    e(f"s_cbranch_scc1 L_pd{n}")
    e(f"s_add_u32 s{S_POLL}, s{S_POLL}, 1")
    e(f"s_cmp_ge_u32 s{S_POLL}, {CFG['POLL_MAX']}")
    e(f"s_cbranch_scc1 L_pd{n}")
    e(f"s_sleep {slp if slp is not None else CFG['SLEEP']}")
    e(f"buffer_load_dwordx4 {vr(vdst)}, v{vaddr}, {srd(S_WS)}, s{s_addr} offen sc1")
    e("s_waitcnt vmcnt(0)")
    e(f"s_branch L_pc{n}")
    e.label(f"L_pd{n}")


def lds_set(e, word_sgpr_or_int, val=1):
    if isinstance(word_sgpr_or_int, int):
        e(f"v_mov_b32 v{TMP[0]}, {L_FL + 4 * word_sgpr_or_int}")
    else:
        e(f"s_lshl_b32 s{T[0]}, {word_sgpr_or_int}, 2")
        e(f"s_add_u32 s{T[0]}, s{T[0]}, {L_FL}")
        e(f"v_mov_b32 v{TMP[0]}, s{T[0]}")
    e(f"v_mov_b32 v{TMP[1]}, {val}")
    e("s_mov_b64 exec, 1")
    t = e.lg(f"ds_write_b32 v{TMP[0]}, v{TMP[1]}")
    e("s_mov_b64 exec, -1")
    return t


def lds_wait4(e, word0):
    n = _lbl[0]
    _lbl[0] += 1
    e(f"v_mov_b32 v{TMP[0]}, {L_FL + 4 * word0}")
    e(f"s_mov_b32 s{S_POLL}, 0")
    e.label(f"L_lw{n}")
    e(f"ds_read_b128 {vr(V_PD)}, v{TMP[0]}")
    e("s_waitcnt lgkmcnt(0)")
    e(f"v_and_b32 v{V_PD}, v{V_PD}, v{V_PD + 1}")
    e(f"v_and_b32 v{V_PD + 2}, v{V_PD + 2}, v{V_PD + 3}")
    e(f"v_and_b32 v{V_PD}, v{V_PD}, v{V_PD + 2}")
    e(f"v_cmp_eq_u32 vcc, 1, v{V_PD}")
    e("s_nop 1")
    e("s_cmp_eq_u64 vcc, -1")
    e(f"s_cbranch_scc1 L_ld{n}")
    e(f"s_add_u32 s{S_POLL}, s{S_POLL}, 1")
    e(f"s_cmp_ge_u32 s{S_POLL}, {CFG['POLL_MAX'] * 8}")
    e(f"s_cbranch_scc1 L_ld{n}")
    e("s_sleep 1")
    e(f"s_branch L_lw{n}")
    e.label(f"L_ld{n}")
    e.wait_all(vm=False, lg=True)


def lds_wait1(e, s_word):
    n = _lbl[0]
    _lbl[0] += 1
    e(f"s_lshl_b32 s{T[0]}, s{s_word}, 2")
    e(f"s_add_u32 s{T[0]}, s{T[0]}, {L_FL}")
    e(f"v_mov_b32 v{TMP[4]}, s{T[0]}")
    e(f"s_mov_b32 s{S_POLL}, 0")
    e.label(f"L_lw{n}")
    e(f"ds_read_b32 v{V_PD}, v{TMP[4]}")
    e("s_waitcnt lgkmcnt(0)")
    e(f"v_cmp_eq_u32 vcc, 1, v{V_PD}")
    e("s_nop 1")
    e("s_cmp_eq_u64 vcc, -1")
    e(f"s_cbranch_scc1 L_ld{n}")
    e(f"s_add_u32 s{S_POLL}, s{S_POLL}, 1")
    e(f"s_cmp_ge_u32 s{S_POLL}, {CFG['POLL_MAX'] * 8}")
    e(f"s_cbranch_scc1 L_ld{n}")
    e(f"s_branch L_lw{n}")
    e.label(f"L_ld{n}")
    e.wait_all(vm=False, lg=True)


def lds_wait1i(e, word, slp=1):
    n = _lbl[0]
    _lbl[0] += 1
    e(f"v_mov_b32 v{TMP[4]}, {L_FL + 4 * word}")
    e(f"s_mov_b32 s{S_POLL}, 0")
    e.label(f"L_lw{n}")
    e(f"ds_read_b32 v{V_PD}, v{TMP[4]}")
    e("s_waitcnt lgkmcnt(0)")
    e(f"v_cmp_eq_u32 vcc, 1, v{V_PD}")
    e("s_nop 1")
    e("s_cmp_eq_u64 vcc, -1")
    e(f"s_cbranch_scc1 L_ld{n}")
    e(f"s_add_u32 s{S_POLL}, s{S_POLL}, 1")
    e(f"s_cmp_ge_u32 s{S_POLL}, {CFG['POLL_MAX'] * 8}")
    e(f"s_cbranch_scc1 L_ld{n}")
    e(f"s_sleep {slp}")
    e(f"s_branch L_lw{n}")
    e.label(f"L_ld{n}")
    e.wait_all(vm=False, lg=True)


def poll_one(e, vaddr, s_addr, word, slp=None):
    n = _lbl[0]
    _lbl[0] += 1
    e(f"s_cmp_lg_u32 s{S_WAVE}, 0")
    e(f"s_cbranch_scc1 L_po{n}")
    e(f"buffer_load_dwordx4 {vr(V_PD)}, v{vaddr}, {srd(S_WS)}, s{s_addr} offen sc1")
    e("s_waitcnt vmcnt(0)")
    poll_check(e, None, vaddr, s_addr, V_PD, slp)
    e(f"v_mov_b32 v{TMP[0]}, {L_FL + 4 * word}")
    e(f"v_mov_b32 v{TMP[1]}, 1")
    e(f"ds_write_b32 v{TMP[0]}, v{TMP[1]}")
    e(f"s_branch L_pe{n}")
    e.label(f"L_po{n}")
    lds_wait1i(e, word)
    e.label(f"L_pe{n}")
    e.wait_all(vm=False, lg=True)


def unpack(e, dst, src, hi):
    if hi:
        e(f"v_and_b32 v{dst}, s{S_MASKHI}, v{src}")
    else:
        e(f"v_lshlrev_b32 v{dst}, 16, v{src}")


def round2(e, a, b, tmp):
    e(f"v_cvt_pk_bf16_f32 v{tmp}, v{a}, v{b}")
    e(f"v_lshlrev_b32 v{a}, 16, v{tmp}")
    e(f"v_and_b32 v{b}, s{S_MASKHI}, v{tmp}")


def spread(gaps, L, lo, hi):
    n = len(L)
    for idx, ins in enumerate(L):
        gaps[lo + idx * (hi - lo) // n].L.append(ins)


def setup(e):
    e("s_cmp_ge_u32 s2, 256")
    e("s_cbranch_scc1 L_end")
    ptrs = [(S_WG, 56), (S_WU, 64), (S_X, 0), (S_K, 8), (S_V, 16), (S_SH, 24), (S_WS, 104), (S_SSM, 32), (S_DD, 40),
            (S_WD, 72), (S_GW, 80), (S_OUT, 88), (S_HST, 104)]
    for r, off in ptrs:
        e(f"s_load_dwordx2 s[{r}:{r + 1}], s[0:1], {off}")
    sizes = {S_X: 0x200000, S_K: 0x200000, S_V: 0x200000, S_SH: 4096, S_SSM: 0x200000, S_WG: 512 * 2752,
             S_WU: 512 * 2752, S_WD: 1376 * 1024, S_GW: 1024, S_OUT: 0x200000, S_WS: WS_SIZE, S_HST: WS_SIZE,
             S_DD: 1024}
    for r, sz in sizes.items():
        e(f"s_mov_b32 s{r + 2}, {sz:#x}")
        e(f"s_mov_b32 s{r + 3}, 0x00020000")
    e(f"v_lshrrev_b32 v{TMP[0]}, 6, v0")
    e(f"v_and_b32 v{V_LANE}, 63, v0")
    e(f"v_readfirstlane_b32 s{T[13]}, v{TMP[0]}")
    e(f"s_mov_b32 s{S_U}, s2")
    e(f"s_and_b32 s{T[0]}, s2, 7")
    e(f"s_lshr_b32 s{T[1]}, s2, 3")
    e(f"s_and_b32 s{T[2]}, s{T[1]}, 7")
    e(f"s_lshr_b32 s{T[3]}, s{T[1]}, 3")
    e(f"s_and_b32 s{T[4]}, s{T[0]}, 1")
    e(f"s_lshr_b32 s{T[5]}, s{T[0]}, 1")
    e(f"s_lshl_b32 s{S_GI}, s{T[4]}, 3")
    e(f"s_add_u32 s{S_GI}, s{S_GI}, s{T[2]}")
    e(f"s_lshl_b32 s{S_GJ}, s{T[5]}, 2")
    e(f"s_add_u32 s{S_GJ}, s{S_GJ}, s{T[3]}")
    e(f"s_lshl_b32 s{S_I2}, s{T[5]}, 3")
    e(f"s_add_u32 s{S_I2}, s{S_I2}, s{T[2]}")
    e(f"s_lshl_b32 s{S_N2}, s{T[4]}, 2")
    e(f"s_add_u32 s{S_N2}, s{S_N2}, s{T[3]}")
    e(f"s_and_b32 s{S_WAVE}, s{T[13]}, 3")
    e(f"s_mov_b32 s{S_MASKHI}, 0xffff0000")
    e(f"v_lshlrev_b32 v{V_L16}, 4, v{V_LANE}")
    if CFG["STAMPS"]:
        e(f"s_lshl_b32 s{S_STI}, s2, 3")
        e(f"s_add_u32 s{S_STI}, s{S_STI}, s{T[13]}")
        if CFG["STAMPS"] != 3:
            e(f"s_lshl_b32 s{S_STI}, s{S_STI}, 8")
            e(f"s_add_u32 s{S_STI}, s{S_STI}, {WS_STAMP:#x}")
    e(f"s_lshl_b32 s{S_XSOFF}, s{S_GI}, 17")
    e(f"s_lshl_b32 s{T[0]}, s{S_WAVE}, 15")
    e(f"s_add_u32 s{S_XSOFF}, s{S_XSOFF}, s{T[0]}")
    e(f"s_lshr_b32 s{T[0]}, s{S_WAVE}, 1")
    e(f"s_lshl_b32 s{S_CH}, s{S_U}, 1")
    e(f"s_add_u32 s{S_CH}, s{S_CH}, s{T[0]}")
    e(f"s_cmp_ge_u32 s{T[13]}, 4")
    e("s_cbranch_scc1 L_loader")


def misc_loads(e, need_d):
    e(f"v_mov_b32 v{TMP[0]}, 0")
    e(f"s_mov_b32 s{T[0]}, {FL_EPOCH:#x}")
    toks = [e.vm(f"buffer_load_dword v{V_EPO}, v{TMP[0]}, {srd(S_WS)}, s{T[0]} offen sc1")]
    if need_d:
        e(f"s_lshl_b32 s{T[1]}, s{S_U}, 2")
        toks.append(e.vm(f"buffer_load_dword v{V_H01}, v{TMP[0]}, {srd(S_DD)}, s{T[1]} offen"))
    return toks


def misc_use(e, toks, need_d):
    e.wait(vm=toks)
    e(f"v_readfirstlane_b32 s{S_TAG}, v{V_EPO}")
    if need_d:
        e(f"v_readfirstlane_b32 s{T[0]}, v{V_H01}")
    e("s_nop 3")
    e(f"s_add_u32 s{S_TAG}, s{S_TAG}, {TAGK:#x}")
    if need_d:
        e(f"s_lshl_b32 s{T[2]}, s{T[0]}, 16")
        e(f"s_and_b32 s{T[3]}, s{T[0]}, 0xffff0000")
        e(f"s_cmp_lt_u32 s{S_WAVE}, 2")
        e(f"s_cselect_b32 s{S_DF}, s{T[2]}, s{T[3]}")


def out_addr(e):
    a, b = TMP[0], TMP[1]
    e(f"v_lshrrev_b32 v{a}, 3, v0")
    e(f"v_and_b32 v{b}, 7, v0")
    e(f"v_lshlrev_b32 v{b}, 4, v{b}")
    e(f"v_lshl_add_u32 v{a}, v{a}, 10, v{b}")
    e(f"s_lshl_b32 s{T[0]}, s{S_I2}, 16")
    e(f"s_lshl_b32 s{T[1]}, s{S_N2}, 7")
    e(f"s_add_u32 s{T[0]}, s{T[0]}, s{T[1]}")
    e(f"v_add_u32 v{V_OUTO}, s{T[0]}, v{a}")


A_PK, A_PV = 56, 76
Q_RAW, Q_SH, Q_KC, Q_VV, Q_S4, Q_P, Q_W, Q_SA = 128, 136, 140, 145, 147, 151, 156, 157


def prep_a(e):
    a, b = TMP[0], TMP[1]
    AD = 128
    e(f"v_and_b32 v{a}, 7, v0")
    e(f"v_lshrrev_b32 v{b}, 3, v0")
    e(f"v_lshlrev_b32 v{a}, 4, v{a}")
    e(f"v_lshl_add_u32 v{a}, v{b}, 11, v{a}")
    e(f"s_lshl_b32 s{T[0]}, s{S_I2}, 16")
    e(f"s_lshl_b32 s{T[1]}, s{S_N2}, 7")
    e(f"s_add_u32 s{T[0]}, s{T[0]}, s{T[1]}")
    e(f"s_sub_u32 s{T[0]}, s{T[0]}, 3072")
    e(f"v_add_u32 v{AD}, s{T[0]}, v{a}")
    for m in range(1, 5):
        e(f"v_add_u32 v{AD + m}, {1024 * m}, v{AD}")
    c_addr(e)
    w = Q_W
    e(f"v_lshrrev_b32 v{b}, 3, v0")
    e(f"v_sub_u32 v{b}, 31, v{b}")
    e(f"v_lshrrev_b32 v{w}, 2, v{b}")
    e(f"v_and_b32 v{TMP[3]}, 7, v0")
    e(f"v_xor_b32 v{w}, v{w}, v{TMP[3]}")
    e(f"v_lshlrev_b32 v{w}, 4, v{w}")
    e(f"v_and_b32 v{b}, 3, v{b}")
    e(f"v_lshl_add_u32 v{w}, v{b}, 2, v{w}")
    e(f"v_lshl_add_u32 v{w}, v{TMP[3]}, 10, v{w}")
    e(f"v_add_u32 v{w}, {L_PT}, v{w}")
    e(f"v_lshlrev_b32 v{Q_SA}, 6, v{TMP[3]}")
    e(f"v_add_u32 v{Q_SA}, {L_SH}, v{Q_SA}")
    e.wait_all(vm=False, lg=True)
    stamp(e, 0)
    if CFG["TOUCH2"]:
        e(f"v_lshrrev_b32 v{a}, 3, v{V_LANE}")
        e(f"v_lshlrev_b32 v{a}, 10, v{a}")
        e(f"v_and_b32 v{b}, 7, v{V_LANE}")
        e(f"v_lshl_add_u32 v{a}, v{b}, 7, v{a}")
        e(f"s_and_b32 s{T[0]}, s{S_GJ}, 3")
        e(f"s_lshl_b32 s{T[0]}, s{T[0]}, 15")
        e(f"s_lshl_b32 s{T[1]}, s{S_WAVE}, 13")
        e(f"s_add_u32 s{T[0]}, s{T[0]}, s{T[1]}")
        e(f"s_lshl_b32 s{T[1]}, s{S_GI}, 17")
        e(f"s_add_u32 s{T[0]}, s{T[0]}, s{T[1]}")
        e(f"v_mul_u32_u24 v{b}, 2752, v{V_LANE}")
        e(f"s_and_b32 s{T[2]}, s{S_GI}, 7")
        e(f"s_mul_i32 s{T[2]}, s{T[2]}, {64 * 2752}")
        e(f"s_mul_i32 s{T[3]}, s{S_GJ}, 192")
        e(f"s_add_u32 s{T[2]}, s{T[2]}, s{T[3]}")
        e(f"s_lshr_b32 s{T[3]}, s{S_WAVE}, 1")
        e(f"s_mul_i32 s{T[3]}, s{T[3]}, 188")
        e(f"s_add_u32 s{T[2]}, s{T[2]}, s{T[3]}")
        if CFG["TDELAY"]:
            e(f"s_sleep {CFG['TDELAY']}")
        e.vm(f"buffer_load_dword v{V_PD}, v{a}, {srd(S_X)}, s{T[0]} offen")
        e(f"s_bitcmp1_b32 s{S_WAVE}, 0")
        e("s_cbranch_scc1 L_t2u")
        e(f"buffer_load_dword v{V_PD + 1}, v{b}, {srd(S_WG)}, s{T[2]} offen")
        e("s_branch L_t2j")
        e.label("L_t2u")
        e(f"buffer_load_dword v{V_PD + 1}, v{b}, {srd(S_WU)}, s{T[2]} offen")
        e.label("L_t2j")
        e.vm("s_nop 0")
    if CFG["PDELAY"]:
        e(f"s_sleep {CFG['PDELAY']}")
    toks = []
    for m in range(5):
        toks.append(e.vm(f"buffer_load_dwordx4 {ar(A_PK + 4 * m)}, v{AD + m}, {srd(S_K)}, 0 offen"))
    for m in range(2):
        toks.append(e.vm(f"buffer_load_dwordx4 {ar(A_PV + 4 * m)}, v{AD + 3 + m}, {srd(S_V)}, 0 offen"))
    e(f"s_mov_b32 m0, {L_SH}")
    e(f"s_lshl_b32 s{T[1]}, s{S_N2}, 9")
    toks.append(e.vm(f"buffer_load_dwordx4 v{V_L16}, {srd(S_SH)}, s{T[1]} offen lds"))
    mt = misc_loads(e, False)
    return toks, mt


def prep_compute(toks):
    e = Em()
    e.wait(vm=toks)
    wr = []
    for q in range(4):
        sh = e.lg(f"ds_read_b128 {vr(Q_SH)}, v{Q_SA} offset:{16 * q}")
        for m in range(5):
            e(f"v_accvgpr_read_b32 v{Q_RAW + m}, a{A_PK + 4 * m + q}")
        for m in range(2):
            e(f"v_accvgpr_read_b32 v{Q_RAW + 5 + m}, a{A_PV + 4 * m + q}")
        e.wait(lg=sh)
        for hi in range(2):
            c = 2 * q + hi
            kc = [Q_KC + m for m in range(5)]
            vv = [Q_VV, Q_VV + 1]
            s4 = [Q_S4 + j for j in range(4)]
            p0, p1, a0, a1, tp = Q_P, Q_P + 1, Q_P + 2, Q_P + 3, Q_P + 4
            for m in range(5):
                unpack(e, kc[m], Q_RAW + m, hi)
            for m in range(2):
                unpack(e, vv[m], Q_RAW + 5 + m, hi)
            for j in range(4):
                unpack(e, s4[j], Q_SH + 2 * hi + (j >> 1), j & 1)
            e(f"v_mul_f32 v{a0}, v{kc[0]}, v{s4[3]}")
            e(f"v_mul_f32 v{a1}, v{kc[1]}, v{s4[3]}")
            if CFG["EMU_PREP"]:
                round2(e, a0, a1, tp)
                for tt in range(1, 4):
                    e(f"v_mul_f32 v{p0}, v{kc[tt]}, v{s4[3 - tt]}")
                    e(f"v_mul_f32 v{p1}, v{kc[tt + 1]}, v{s4[3 - tt]}")
                    round2(e, p0, p1, tp)
                    e(f"v_add_f32 v{a0}, v{a0}, v{p0}")
                    e(f"v_add_f32 v{a1}, v{a1}, v{p1}")
                    round2(e, a0, a1, tp)
            else:
                for tt in range(1, 4):
                    e(f"v_fmac_f32 v{a0}, v{kc[tt]}, v{s4[3 - tt]}")
                    e(f"v_fmac_f32 v{a1}, v{kc[tt + 1]}, v{s4[3 - tt]}")
            e(f"v_mul_f32 v{a0}, v{a0}, v{vv[0]}")
            e(f"v_mul_f32 v{a1}, v{a1}, v{vv[1]}")
            e(f"v_cvt_pk_bf16_f32 v{p0}, v{a1}, v{a0}")
            wr.append(e.lg(f"ds_write_b32 v{Q_W}, v{p0} offset:{c * 128}"))
    return e, wr


def prep_rb_addr(e):
    a, b = TMP[0], TMP[1]
    RA, RB, RG = V_ET + 8, V_ET + 9, V_ET + 10
    e(f"v_lshrrev_b32 v{b}, 3, v0")
    e(f"v_lshrrev_b32 v{a}, 6, v0")
    e(f"v_and_b32 v{RG}, 7, v0")
    e(f"v_xor_b32 v{a}, v{a}, v{RG}")
    e(f"v_lshlrev_b32 v{a}, 4, v{a}")
    e(f"v_lshl_add_u32 v{a}, v{b}, 7, v{a}")
    e(f"v_xor_b32 v{RB}, 64, v{a}")
    e(f"v_add_u32 v{RA}, {L_PT}, v{a}")
    e(f"v_add_u32 v{RB}, {L_PT}, v{RB}")
    e(f"v_lshlrev_b32 v{RG}, 4, v{RG}")
    e(f"v_lshl_add_u32 v{RG}, v{b}, 12, v{RG}")


def prep_readback(e):
    RA, RB = V_ET + 8, V_ET + 9
    return [e.lg(f"ds_read_b128 {vr(V_ET)}, v{RA}"),
            e.lg(f"ds_read_b128 {vr(V_ET + 4)}, v{RB} offset:4096")]


def prep_store(e, rd):
    RG = V_ET + 10
    e(f"s_lshl_b32 s{T[0]}, s{S_N2}, 18")
    e(f"s_lshl_b32 s{T[1]}, s{S_I2}, 7")
    e(f"s_sub_u32 s{T[0]}, s{T[0]}, s{T[1]}")
    e(f"s_add_u32 s{T[0]}, s{T[0]}, {WS_KV + 3968:#x}")
    e(f"s_add_u32 s{T[1]}, s{T[0]}, {32 * 4096:#x}")
    e.wait(lg=rd)
    return [e.vm(f"buffer_store_dwordx4 {vr(V_ET)}, v{RG}, {srd(S_WS)}, s{T[0]} offen sc1"),
            e.vm(f"buffer_store_dwordx4 {vr(V_ET + 4)}, v{RG}, {srd(S_WS)}, s{T[1]} offen sc1")]


def prep_flag(e, toks):
    e.wait(vm=toks)
    e(f"s_lshl_b32 s{T[0]}, s{S_N2}, 9")
    e(f"s_lshl_b32 s{T[1]}, s{S_I2}, 4")
    e(f"s_add_u32 s{T[0]}, s{T[0]}, s{T[1]}")
    e(f"s_lshl_b32 s{T[1]}, s{S_WAVE}, 2")
    e(f"s_add_u32 s{T[0]}, s{T[0]}, s{T[1]}")
    e(f"s_add_u32 s{T[0]}, s{T[0]}, {FL_P:#x}")
    return flag_store(e, T[0])


def c_addr(e):
    a, b, c = TMP[0], TMP[1], TMP[2]
    e(f"v_lshrrev_b32 v{a}, 5, v{V_LANE}")
    e(f"v_lshlrev_b32 v{a}, 3, v{a}")
    e(f"v_bfe_u32 v{b}, v{V_LANE}, 2, 2")
    e(f"v_add_u32 v{a}, v{a}, v{b}")
    e(f"v_mul_u32_u24 v{a}, 192, v{a}")
    e(f"v_bfe_u32 v{b}, v{V_LANE}, 4, 1")
    e(f"v_lshl_add_u32 v{a}, v{b}, 5, v{a}")
    e(f"v_and_b32 v{b}, 3, v{V_LANE}")
    e(f"v_lshl_add_u32 v{a}, v{b}, 3, v{a}")
    for s in range(3):
        e(f"v_add_u32 v{V_WTR + s}, {PHYS[s]}, v{a}")
    e(f"v_bfe_u32 v{a}, v{V_LANE}, 3, 2")
    e(f"v_mul_u32_u24 v{a}, 1040, v{a}")
    e(f"v_and_b32 v{b}, 7, v{V_LANE}")
    e(f"v_lshl_add_u32 v{a}, v{b}, 7, v{a}")
    e(f"v_lshrrev_b32 v{b}, 5, v{V_LANE}")
    e(f"v_lshl_add_u32 v{a}, v{b}, 4, v{a}")
    e(f"s_mul_i32 s{T[0]}, s{S_WAVE}, 4160")
    e(f"v_add_u32 v{a}, s{T[0]}, v{a}")
    for s in range(3):
        e(f"v_add_u32 v{V_XRD + s}, {PHYS[s] + 24576}, v{a}")
    c0 = -2.0 * math.sqrt(2.0 / math.pi) * math.log2(math.e)
    e(f"v_mov_b32 v{V_C0}, {f32hex(c0)}")
    e(f"s_mov_b32 s{S_C1}, {f32hex(c0 * 0.044715)}")
    e(f"s_lshl_b32 s{T[0]}, s{S_GI}, 2")
    e(f"s_add_u32 s{T[0]}, s{T[0]}, s{S_WAVE}")
    e(f"s_mul_i32 s{T[1]}, s{T[0]}, 43")
    e(f"s_mul_i32 s{T[2]}, s{S_GJ}, 3")
    e(f"s_add_u32 s{T[1]}, s{T[1]}, s{T[2]}")
    e(f"s_lshl_b32 s{S_HOFF}, s{T[1]}, 11")
    e(f"s_lshr_b32 s{T[1]}, s{T[0]}, 1")
    e(f"s_lshl_b32 s{T[1]}, s{T[1]}, 9")
    e(f"s_and_b32 s{T[0]}, s{T[0]}, 1")
    e(f"s_lshl_b32 s{T[2]}, s{S_GJ}, 1")
    e(f"s_add_u32 s{T[0]}, s{T[0]}, s{T[2]}")
    e(f"s_lshl_b32 s{T[0]}, s{T[0]}, 2")
    e(f"s_add_u32 s{T[0]}, s{T[0]}, s{T[1]}")
    e(f"s_add_u32 s{S_FHOFF}, s{T[0]}, {FL_H:#x}")
    wd_addr(e, 0)
    out_addr(e)


def conv_addr(e):
    a, b, c = TMP[0], TMP[1], TMP[2]
    e(f"s_lshr_b32 s{T[0]}, s{S_WAVE}, 1")
    e(f"s_and_b32 s{T[1]}, s{S_WAVE}, 1")
    e(f"v_and_b32 v{a}, 15, v{V_LANE}")
    e(f"v_lshrrev_b32 v{b}, 4, v{V_LANE}")
    e(f"v_lshlrev_b32 v{c}, 2, v{b}")
    e(f"v_sub_u32 v{c}, v{c}, v{a}")
    e(f"v_add_u32 v{c}, 63, v{c}")
    e(f"v_mul_u32_u24 v{c}, 80, v{c}")
    e(f"s_mul_i32 s{T[2]}, s{T[0]}, 6400")
    e(f"s_mul_i32 s{T[3]}, s{T[1]}, 160")
    e(f"s_add_u32 s{T[2]}, s{T[2]}, s{T[3]}")
    e(f"s_add_u32 s{T[2]}, s{T[2]}, {L_UR - 3840}")
    e(f"v_add_u32 v{V_F}, s{T[2]}, v{c}")
    e(f"v_add_u32 v{a}, 1, v{a}")
    e(f"v_and_b32 v{V_SHF}, 1, v{a}")
    e(f"v_lshlrev_b32 v{V_SHF}, 4, v{V_SHF}")
    e(f"v_bfe_u32 v{c}, v{a}, 1, 1")
    e(f"v_mul_u32_u24 v{c}, 6208, v{c}")
    e(f"v_and_b32 v{a}, 28, v{a}")
    e(f"v_lshl_add_u32 v{c}, v{a}, 1, v{c}")
    e(f"v_mul_u32_u24 v{b}, 384, v{b}")
    e(f"v_add_u32 v{c}, v{c}, v{b}")
    e(f"s_mul_i32 s{T[2]}, s{T[0]}, 12416")
    e(f"s_lshl_b32 s{T[3]}, s{T[1]}, 7")
    e(f"s_add_u32 s{T[2]}, s{T[2]}, s{T[3]}")
    e(f"s_add_u32 s{T[2]}, s{T[2]}, {L_HC}")
    e(f"v_add_u32 v{V_H}, s{T[2]}, v{c}")


def wd_addr(e, role):
    a, b, c = TMP[0], TMP[1], TMP[2]
    e(f"v_lshrrev_b32 v{a}, 3, v{V_LANE}")
    e(f"v_bfe_u32 v{b}, v{V_LANE}, 4, 1")
    e(f"v_lshlrev_b32 v{b}, 2, v{b}")
    e(f"v_and_b32 v{c}, 7, v{V_LANE}")
    e(f"v_xor_b32 v{c}, v{c}, v{b}")
    e(f"v_lshlrev_b32 v{c}, 4, v{c}")
    e(f"v_lshl_add_u32 v{c}, v{a}, 10, v{c}")
    e(f"s_lshl_b32 s{T[0]}, s{S_N2}, 7")
    e(f"v_add_u32 v{V_WDDMA}, s{T[0]}, v{c}")
    for m in range(1, 4):
        e(f"v_add_u32 v{V_WDDMA + m}, {m * (8192 - 1024)}, v{V_WDDMA}")
    e(f"s_lshl_b32 s{S_WDBASE}, s{S_WAVE}, 12")
    e(f"s_mov_b32 s{T[1]}, s{S_WDBASE}")
    e(f"v_lshrrev_b32 v{a}, 5, v{V_LANE}")
    e(f"v_lshlrev_b32 v{a}, 9, v{a}")
    e(f"v_bfe_u32 v{b}, v{V_LANE}, 2, 2")
    e(f"v_lshl_add_u32 v{a}, v{b}, 7, v{a}")
    e(f"v_bfe_u32 v{b}, v{V_LANE}, 4, 1")
    e(f"v_lshl_add_u32 v{a}, v{b}, 5, v{a}")
    e(f"v_and_b32 v{b}, 3, v{V_LANE}")
    e(f"v_lshl_add_u32 v{a}, v{b}, 3, v{a}")
    e(f"v_bfe_u32 v{b}, v{V_LANE}, 3, 1")
    e(f"v_lshl_add_u32 v{a}, v{b}, 6, v{a}")
    e(f"v_add_u32 v{V_WDTR}, s{T[1]}, v{a}")
    e(f"v_xor_b32 v{b}, 64, v{a}")
    e(f"v_add_u32 v{V_WDTR + 1}, s{T[1]}, v{b}")
    e(f"s_mul_i32 s{T[0]}, s{S_WAVE}, {3 * 2048}")
    for m in range(11):
        if m <= 2:
            e(f"s_add_u32 s{S_FT + m}, s{T[0]}, {12 * m * 2048}")
        elif m == 3:
            e(f"s_add_u32 s{S_FT + m}, s{T[0]}, {36 * 2048}")
            e(f"s_cmp_eq_u32 s{S_WAVE}, 3")
            e(f"s_cselect_b32 s{S_FT + m}, {1 * 2048}, s{S_FT + m}")
        elif m <= 6:
            e(f"s_add_u32 s{S_FT + m}, s{T[0]}, {(3 * (4 * m - 15) + 1) * 2048}")
        elif m == 7:
            e(f"s_add_u32 s{S_FT + m}, s{T[0]}, {(-1 * 2048) & 0xffffffff:#x}")
            e(f"s_cmp_eq_u32 s{S_WAVE}, 0")
            e(f"s_cselect_b32 s{S_FT + m}, {40 * 2048}, s{S_FT + m}")
        else:
            e(f"s_add_u32 s{S_FT + m}, s{T[0]}, {(3 * (4 * m - 29) + 2) * 2048}")
    e(f"s_mul_i32 s{S_XM0 if role == 0 else S_HOFF}, s{S_I2}, {86 * 2048}")


def w_tr(e, T_, idx):
    ft, mat = idx >> 1, idx & 1
    n, ts = T_ // 4, T_ % 4
    base = mat * 12288 + ts * 3072 + ft * 64
    vb = V_WTR + n % 3
    d = A_WF + 24 * (T_ % 2) + 4 * idx
    return [e.lg(f"ds_read_b64_tr_b16 {ar(d, 2)}, v{vb} offset:{base}"),
            e.lg(f"ds_read_b64_tr_b16 {ar(d + 2, 2)}, v{vb} offset:{base + 768}")]


def x_fr(e, T_):
    n, ts = T_ // 4, T_ % 4
    return e.lg(f"ds_read_b128 {ar(A_XF + 4 * (T_ % 2))}, v{V_XRD + n % 3} offset:{ts * 32}")


def g1_epilogue(e, ftl, mids=()):
    A = ACC_OF[ftl]
    e(f"s_mul_i32 s{T[6]}, s{S_GJ}, 3")
    e(f"s_cmp_lt_u32 s{T[6]}, {43 - ftl}")
    e(f"s_cselect_b32 s{S_HST + 2}, {WS_SIZE:#x}, 0")
    e(f"s_add_u32 s{T[7]}, s{S_HOFF}, {ftl * 2048}")
    toks = []
    for half in range(2):
        O = V_ET + 8 + 4 * half
        for pr in range(4):
            r = 8 * half + 2 * pr
            B = V_ET + 4 * (pr & 1)
            g0, g1, u0, u1 = A + r, A + r + 1, A + 16 + r, A + 16 + r + 1
            t0, t1, tp, tq = B, B + 1, B + 2, B + 3
            if CFG["EMU_G1"]:
                round2(e, g0, g1, tp)
            e(f"v_mul_f32 v{t0}, v{g0}, v{g0}")
            e(f"v_mul_f32 v{t1}, v{g1}, v{g1}")
            e(f"v_fma_f32 v{t0}, v{t0}, s{S_C1}, v{V_C0}")
            e(f"v_fma_f32 v{t1}, v{t1}, s{S_C1}, v{V_C0}")
            e(f"v_mul_f32 v{t0}, v{t0}, v{g0}")
            e(f"v_mul_f32 v{t1}, v{t1}, v{g1}")
            e(f"v_exp_f32 v{t0}, v{t0}")
            e(f"v_exp_f32 v{t1}, v{t1}")
            if CFG["EMU_G1"]:
                e(f"v_cvt_pk_bf16_f32 v{tq}, v{u0}, v{u1}")
            else:
                e(f"v_mul_f32 v{u0}, v{u0}, v{g0}")
            e(f"v_add_f32 v{t0}, 1.0, v{t0}")
            e(f"v_add_f32 v{t1}, 1.0, v{t1}")
            e(f"v_rcp_f32 v{t0}, v{t0}")
            e(f"v_rcp_f32 v{t1}, v{t1}")
            if CFG["EMU_G1"]:
                e(f"v_lshlrev_b32 v{u0}, 16, v{tq}")
                e(f"v_mul_f32 v{t0}, v{t0}, v{g0}")
                e(f"v_mul_f32 v{t1}, v{t1}, v{g1}")
                e(f"v_and_b32 v{u1}, s{S_MASKHI}, v{tq}")
                round2(e, t0, t1, tp)
            else:
                e(f"v_mul_f32 v{u1}, v{u1}, v{g1}")
            e(f"v_mul_f32 v{t0}, v{t0}, v{u0}")
            e(f"v_mul_f32 v{t1}, v{t1}, v{u1}")
            e(f"v_cvt_pk_bf16_f32 v{O + pr}, v{t0}, v{t1}")
        toks.append(e.vm(
            f"buffer_store_dwordx4 {vr(O)}, v{V_L16}, {srd(S_HST)}, s{T[7]} offen offset:{half * 1024} sc1"))
        if half < len(mids) and mids[half] is not None:
            mids[half](e)
    return toks


def h_flag(e, ftl, toks):
    e.wait(vm=toks)
    e(f"s_add_u32 s{T[0]}, s{S_FHOFF}, {ftl * 128}")
    return flag_store(e, T[0])


def g_path(e):
    GWR, GWU, G, TB = 128, 132, 140, 144
    gw = e.vm(f"buffer_load_dwordx4 {vr(GWR)}, v{V_L16}, {srd(S_GW)}, 0 offen")
    e(f"v_mov_b32 v{G}, 0")
    X0 = 32
    for half in range(2):
        xt = []
        for r in range(16):
            e(f"s_add_u32 s{T[1]}, s{S_XSOFF}, {(16 * half + r) * 1024}")
            xt.append(e.vm(f"buffer_load_dwordx4 {vr(X0 + 4 * r)}, v{V_L16}, {srd(S_X)}, s{T[1]} offen"))
        if half == 0:
            e.wait(vm=gw)
            for q in range(8):
                unpack(e, GWU + q, GWR + (q >> 1), q & 1)
        for r4 in range(0, 16, 4):
            e.wait(vm=xt[r4 + 3])
            accs = []
            for r in range(r4, r4 + 4):
                X = X0 + 4 * r
                tb = TB + 4 * (r - r4)
                acc = tb + 3
                for q in range(4):
                    e(f"v_lshlrev_b32 v{tb}, 16, v{X + q}")
                    e(f"v_and_b32 v{tb + 1}, s{S_MASKHI}, v{X + q}")
                    e(f"v_mul_f32 v{tb}, v{tb}, v{GWU + 2 * q}")
                    e(f"v_mul_f32 v{tb + 1}, v{tb + 1}, v{GWU + 1 + 2 * q}")
                    e(f"v_cvt_pk_bf16_f32 v{tb + 2}, v{tb}, v{tb + 1}")
                    e(f"v_lshlrev_b32 v{tb}, 16, v{tb + 2}")
                    e(f"v_and_b32 v{tb + 1}, s{S_MASKHI}, v{tb + 2}")
                    if q == 0:
                        e(f"v_add_f32 v{acc}, v{tb}, v{tb + 1}")
                    else:
                        e(f"v_add_f32 v{tb}, v{tb}, v{tb + 1}")
                        e(f"v_add_f32 v{acc}, v{acc}, v{tb}")
                accs.append(acc)
            for mod in ("row_shr:1 row_mask:0xf bank_mask:0xf bound_ctrl:0",
                        "row_shr:2 row_mask:0xf bank_mask:0xf bound_ctrl:0",
                        "row_shr:4 row_mask:0xf bank_mask:0xf bound_ctrl:0",
                        "row_shr:8 row_mask:0xf bank_mask:0xf bound_ctrl:0",
                        "row_bcast:15 row_mask:0xa bank_mask:0xf",
                        "row_bcast:31 row_mask:0xc bank_mask:0xf"):
                for acc in accs:
                    e(f"v_add_f32_dpp v{acc}, v{acc}, v{acc} {mod}")
            for i, acc in enumerate(accs):
                e(f"v_readlane_b32 s{T[2 + i]}, v{acc}, 63")
            for i, acc in enumerate(accs):
                e(f"v_writelane_b32 v{G}, s{T[2 + i]}, {16 * half + r4 + i}")
    a, b, c = TB, TB + 1, TB + 2
    e(f"v_cvt_pk_bf16_f32 v{a}, v{G}, v{G}")
    e(f"v_lshlrev_b32 v{a}, 16, v{a}")
    e(f"v_mul_f32 v{a}, {f32hex(-math.log2(math.e))}, v{a}")
    e(f"v_exp_f32 v{a}, v{a}")
    e(f"v_add_f32 v{a}, 1.0, v{a}")
    e(f"v_rcp_f32 v{a}, v{a}")
    e(f"v_cvt_pk_bf16_f32 v{a}, v{a}, v{a}")
    e(f"v_lshlrev_b32 v{a}, 16, v{a}")
    e(f"v_sub_f32 v{b}, 1.0, v{a}")
    e(f"v_cvt_pk_bf16_f32 v{a}, v{a}, v{b}")
    e(f"v_lshlrev_b32 v{c}, 2, v{V_LANE}")
    e(f"s_lshl_b32 s{T[0]}, s{S_GI}, 9")
    e(f"s_lshl_b32 s{T[1]}, s{S_WAVE}, 7")
    e(f"s_add_u32 s{T[0]}, s{T[0]}, s{T[1]}")
    e(f"s_add_u32 s{T[0]}, s{T[0]}, {WS_G:#x}")
    e("s_mov_b64 exec, 0xffffffff")
    st = e.vm(f"buffer_store_dword v{a}, v{c}, {srd(S_WS)}, s{T[0]} offen sc1")
    e("s_mov_b64 exec, -1")
    return st


def conv_hraw(e, p, nn):
    d = C_H + 20 * p + 4 * (nn % 5)
    off = p * 1536 + 16 * nn
    return [e.lg(f"ds_read_b64 {vr(d, 2)}, v{V_H} offset:{off}"),
            e.lg(f"ds_read_b64 {vr(d + 2, 2)}, v{V_H} offset:{off + 8}")]


def conv_align(e, p, nn):
    d = C_H + 20 * p + 4 * (nn % 5)
    nx = C_H + 20 * p + 4 * ((nn + 1) % 5)
    for k in range(3):
        e(f"v_alignbit_b32 v{d + k}, v{d + k + 1}, v{d + k}, v{V_SHF}")
    e(f"v_alignbit_b32 v{d + 3}, v{nx}, v{d + 3}, v{V_SHF}")


def conv_f(e, tt, delta):
    d = A_F + 16 * (tt % 2) + 4 * delta
    off = 1280 * (3 - delta) + 80 * (tt >> 2) + 16 * (tt & 3)
    return e.lg(f"ds_read_b128 {ar(d)}, v{V_F} offset:{off}")


def conv_epilogue(e):
    a, b, c, u = TMP[0], TMP[1], TMP[2], TMP[3]
    OA, OB, OC, OU = V_ET, V_ET + 1, V_ET + 2, V_ET + 3
    e(f"s_xor_b32 s{T[2]}, s{S_WAVE}, 1")
    e(f"s_lshl_b32 s{T[8]}, s{S_WAVE}, 12")
    e(f"s_add_u32 s{T[8]}, s{T[8]}, {L_EX}")
    e(f"s_lshl_b32 s{T[1]}, s{T[2]}, 12")
    e(f"s_add_u32 s{T[1]}, s{T[1]}, {L_EX}")
    e(f"v_add_u32 v{OA}, s{T[8]}, v{V_L16}")
    e(f"v_add_u32 v{OB}, s{T[1]}, v{V_L16}")
    e(f"s_and_b32 s{T[3]}, s{S_WAVE}, 1")
    A0, A1 = C_ACC, C_ACC + 16
    e(f"v_and_b32 v{OC}, 15, v{V_LANE}")
    e(f"v_sub_u32 v{OU}, 47, v{OC}")
    e(f"v_mul_u32_u24 v{OU}, 80, v{OU}")
    e(f"v_lshrrev_b32 v{TMP[4]}, 4, v{V_LANE}")
    e(f"v_lshlrev_b32 v{TMP[5]}, 3, v{TMP[4]}")
    e(f"v_sub_u32 v{OU}, v{OU}, v{TMP[5]}")
    e(f"s_lshr_b32 s{T[4]}, s{S_WAVE}, 1")
    e(f"s_mul_i32 s{T[4]}, s{T[4]}, 6400")
    e(f"s_mul_i32 s{T[5]}, s{T[3]}, 2560")
    e(f"s_sub_u32 s{T[4]}, s{T[4]}, s{T[5]}")
    e(f"s_add_u32 s{T[4]}, s{T[4]}, {L_UR + 24}")
    e(f"v_add_u32 v{OU}, s{T[4]}, v{OU}")
    e(f"v_lshlrev_b32 v{OC}, 6, v{OC}")
    e(f"v_add_u32 v{OC}, v{OC}, v{TMP[5]}")
    e(f"v_add_u32 v{OC}, s{T[8]}, v{OC}")
    e(f"s_lshl_b32 s{T[4]}, s{S_CH}, 12")
    e(f"s_lshl_b32 s{T[5]}, s{T[3]}, 11")
    e(f"s_add_u32 s{T[4]}, s{T[4]}, s{T[5]}")
    e(f"s_add_u32 s{T[4]}, s{T[4]}, {WS_Y2:#x}")
    e(f"s_cmp_eq_u32 s{T[3]}, 0")
    e("s_cbranch_scc1 L_cv_noswap")
    for q in range(16):
        e(f"v_swap_b32 v{A0 + q}, v{A1 + q}")
    e.label("L_cv_noswap")
    e("s_nop 7")
    wr = [e.lg(f"ds_write_b128 v{OB}, {vr(A1 + 4 * q)} offset:{q * 1024}") for q in range(4)]
    RX, UU, t = C_H, C_H + 16, C_H + 24
    ur = {}
    for jj in range(2):
        for bb in range(2):
            ur[(jj, bb)] = e.lg(
                f"ds_read_b64 {vr(UU + 4 * jj + 2 * bb, 2)}, v{OU} offset:{(1 - jj) * 1280 + (1 - bb) * 32}")
    e.wait(lg=wr)
    e(f"s_add_u32 s{T[9]}, s{T[2]}, 4")
    lds_set(e, f"s{T[9]}")
    e(f"s_add_u32 s{T[9]}, s{S_WAVE}, 4")
    lds_wait1(e, T[9])
    rd = [e.lg(f"ds_read_b128 {vr(RX + 4 * q)}, v{OA} offset:{q * 1024}") for q in range(4)]
    outs = []
    for q in range(4):
        jj, bb = q >> 1, q & 1
        e.wait(lg=[rd[q], ur[(jj, bb)]])
        A = A0 + 4 * q
        U = UU + 4 * jj + 2 * bb
        for r in range(4):
            e(f"v_add_f32 v{A + r}, v{A + r}, v{RX + 4 * q + r}")
        round2(e, A, A + 1, t + 4)
        round2(e, A + 2, A + 3, t + 5)
        unpack(e, t, U + 1, 1)
        unpack(e, t + 1, U + 1, 0)
        unpack(e, t + 2, U, 1)
        unpack(e, t + 3, U, 0)
        for r in range(4):
            e(f"v_mul_f32 v{t + r}, s{S_DF}, v{t + r}")
        round2(e, t, t + 1, t + 4)
        round2(e, t + 2, t + 3, t + 5)
        for r in range(4):
            e(f"v_add_f32 v{A + r}, v{A + r}, v{t + r}")
        O = A1 + 2 * q
        e(f"v_cvt_pk_bf16_f32 v{O}, v{A}, v{A + 1}")
        e(f"v_cvt_pk_bf16_f32 v{O + 1}, v{A + 2}, v{A + 3}")
        outs.append(O)
    e.wait(lg=rd)
    for q in range(4):
        e.lg(f"ds_write_b64 v{OC}, {vr(outs[q], 2)} offset:{(q >> 1) * 1024 + (q & 1) * 32}")
    r0 = e.lg(f"ds_read_b128 {vr(RX)}, v{OA}")
    r1 = e.lg(f"ds_read_b128 {vr(RX + 4)}, v{OA} offset:1024")
    e.wait(lg=[r0, r1])
    return [e.vm(f"buffer_store_dwordx4 {vr(RX)}, v{V_L16}, {srd(S_WS)}, s{T[4]} offen sc1"),
            e.vm(f"buffer_store_dwordx4 {vr(RX + 4)}, v{V_L16}, {srd(S_WS)}, s{T[4]} offen offset:1024 sc1")]


def y_flag(e, toks):
    e.wait(vm=toks)
    e(f"s_lshl_b32 s{T[0]}, s{S_U}, 4")
    e(f"s_lshl_b32 s{T[1]}, s{S_WAVE}, 2")
    e(f"s_add_u32 s{T[0]}, s{T[0]}, s{T[1]}")
    e(f"s_add_u32 s{T[0]}, s{T[0]}, {FL_Y:#x}")
    return flag_store(e, T[0])


def y_stage(e):
    a, b, c, d = TMP[0], TMP[1], TMP[2], TMP[3]
    YD, YA = 96, 104
    e(f"s_lshl_b32 s{T[13]}, s{S_N2}, 9")
    e(f"s_add_u32 s{T[13]}, s{T[13]}, {FL_Y:#x}")
    e(f"v_add_u32 v{V_PA}, s{T[13]}, v{V_L16}")
    e(f"s_lshr_b32 s{T[13]}, s{S_I2}, 1")
    e(f"s_lshl_b32 s{T[13]}, s{T[13]}, 4")
    e(f"s_add_u32 s{T[13]}, s{T[13]}, {FL_G:#x}")
    e(f"v_mov_b32 v{a}, s{T[13]}")
    e(f"v_cmp_gt_u32 vcc, 32, v{V_LANE}")
    e(f"s_mov_b32 s{T[13]}, 0")
    e(f"v_cndmask_b32 v{V_PA}, v{a}, v{V_PA}, vcc")
    e(f"v_lshrrev_b32 v{b}, 3, v0")
    e(f"v_and_b32 v{d}, 7, v0")
    e(f"v_lshlrev_b32 v{a}, 4, v{d}")
    e(f"v_lshl_add_u32 v{YA}, v{b}, 12, v{a}")
    e(f"v_lshrrev_b32 v{c}, 6, v0")
    e(f"v_xor_b32 v{c}, v{c}, v{d}")
    e(f"v_lshlrev_b32 v{c}, 4, v{c}")
    e(f"v_lshl_add_u32 v{c}, v{b}, 7, v{c}")
    e(f"v_xor_b32 v{YA + 2}, 64, v{c}")
    e(f"v_add_u32 v{YA + 1}, {L_YT}, v{c}")
    e(f"v_add_u32 v{YA + 2}, {L_YT}, v{YA + 2}")
    e(f"s_lshl_b32 s{T[2]}, s{S_N2}, 18")
    e(f"s_lshl_b32 s{T[3]}, s{S_I2}, 7")
    e(f"s_add_u32 s{T[2]}, s{T[2]}, s{T[3]}")
    e(f"s_add_u32 s{T[2]}, s{T[2]}, {WS_Y2:#x}")
    e(f"s_add_u32 s{T[3]}, s{T[2]}, {32 * 4096:#x}")
    poll_one(e, V_PA, T[13], 15, 4)
    y0 = e.vm(f"buffer_load_dwordx4 {vr(YD)}, v{YA}, {srd(S_WS)}, s{T[2]} offen sc1")
    y1 = e.vm(f"buffer_load_dwordx4 {vr(YD + 4)}, v{YA}, {srd(S_WS)}, s{T[3]} offen sc1")
    e(f"v_lshlrev_b32 v{a}, 2, v{V_LANE}")
    e(f"s_lshl_b32 s{T[2]}, s{S_I2}, 8")
    e(f"s_add_u32 s{T[2]}, s{T[2]}, {WS_G:#x}")
    g0 = e.vm(f"buffer_load_dword v{YA + 3}, v{a}, {srd(S_WS)}, s{T[2]} offen sc1")
    e(f"v_add_u32 v{a}, {L_GT}, v{a}")
    e.wait(vm=[y0, y1, g0])
    e.lg(f"ds_write_b32 v{a}, v{YA + 3}")
    e.lg(f"ds_write_b128 v{YA + 1}, {vr(YD)}")
    e.lg(f"ds_write_b128 v{YA + 2}, {vr(YD + 4)} offset:4096")


B_Q, B_G = 140, 144 + 8


def qg_loads(e):
    a = TMP[0]
    e(f"v_lshrrev_b32 v{a}, 3, v0")
    e(f"v_lshlrev_b32 v{a}, 2, v{a}")
    e(f"s_lshl_b32 s{T[0]}, s{S_I2}, 8")
    e(f"s_add_u32 s{T[0]}, s{T[0]}, {WS_G:#x}")
    return [e.vm(f"buffer_load_dwordx4 {vr(BQ)}, v{V_OUTO}, {srd(S_X)}, 0 offen")]


BQ, BG = 28, 12


def blend(e, qgt):
    a, b, c, d = TMP[0], TMP[1], TMP[2], TMP[3]
    P, Y = 32, 96
    e(f"v_lshrrev_b32 v{b}, 3, v0")
    e(f"v_and_b32 v{d}, 7, v0")
    e(f"v_mul_u32_u24 v{a}, 272, v{b}")
    e(f"v_lshl_add_u32 v{a}, v{d}, 5, v{a}")
    e(f"v_add_u32 v{TMP[4]}, {L_P2L}, v{a}")
    e(f"v_lshrrev_b32 v{c}, 6, v0")
    e(f"v_xor_b32 v{c}, v{c}, v{d}")
    e(f"v_lshlrev_b32 v{c}, 4, v{c}")
    e(f"v_lshl_add_u32 v{c}, v{d}, 10, v{c}")
    e(f"v_lshlrev_b32 v{TMP[5]}, 2, v{b}")
    e(f"v_add_u32 v{TMP[5]}, {L_GT}, v{TMP[5]}")
    e(f"v_and_b32 v{b}, 7, v{b}")
    e(f"v_lshl_add_u32 v{c}, v{b}, 1, v{c}")
    e(f"v_add_u32 v{c}, {L_YT}, v{c}")
    e.wait_all(vm=False, lg=True)
    for q in range(8):
        e(f"v_mov_b32 v{Y + q}, 0")
    e("s_barrier")
    gr = e.lg(f"ds_read_b32 v{BG}, v{TMP[5]}")
    rd = []
    for wv in range(4):
        for h in range(2):
            rd.append(e.lg(f"ds_read_b128 {vr(P + 8 * wv + 4 * h)}, v{a} offset:{wv * 17408 + h * 16}"))
    for wv in range(4):
        for h in range(2):
            rd.append(e.lg(f"ds_read_b128 {vr(P + 32 + 8 * wv + 4 * h)}, v{TMP[4]} offset:{wv * 17408 + h * 16}"))
    yr = [e.lg(f"ds_read_u16_d16_hi v{Y + cc}, v{c} offset:{cc * 128}") for cc in range(8)]
    e.wait(vm=qgt, lg=gr)
    e(f"v_lshlrev_b32 v104, 16, v{BG}")
    e(f"v_and_b32 v105, s{S_MASKHI}, v{BG}")
    for pr in range(4):
        unpack(e, 112 + 2 * pr, BQ + pr, 0)
        unpack(e, 113 + 2 * pr, BQ + pr, 1)
    for k in range(4):
        e.wait(lg=rd[4 * k:4 * k + 4])
        for r in range(8):
            e(f"v_add_f32 v{P + 16 * k + r}, v{P + 16 * k + r}, v{P + 16 * k + 8 + r}")
    for r in range(8):
        e(f"v_add_f32 v{P + r}, v{P + r}, v{P + 16 + r}")
        e(f"v_add_f32 v{P + 32 + r}, v{P + 32 + r}, v{P + 48 + r}")
    for r in range(8):
        e(f"v_add_f32 v{P + r}, v{P + r}, v{P + 32 + r}")
    e.wait(lg=yr)
    for pr in range(4):
        b0, b1 = P + 2 * pr, P + 2 * pr + 1
        q0, q1, tp, tq = 112 + 2 * pr, 113 + 2 * pr, 106 + 2 * (pr & 1), 107 + 2 * (pr & 1)
        round2(e, b0, b1, tp)
        e(f"v_mul_f32 v{q0}, v{q0}, v{Y + 2 * pr}")
        e(f"v_mul_f32 v{q1}, v{q1}, v{Y + 2 * pr + 1}")
        e(f"v_mul_f32 v{b0}, v{b0}, v105")
        e(f"v_mul_f32 v{b1}, v{b1}, v105")
        round2(e, q0, q1, tq)
        e(f"v_mul_f32 v{q0}, v{q0}, v104")
        e(f"v_mul_f32 v{q1}, v{q1}, v104")
        round2(e, b0, b1, tp)
        round2(e, q0, q1, tq)
        e(f"v_add_f32 v{b0}, v{b0}, v{q0}")
        e(f"v_add_f32 v{b1}, v{b1}, v{q1}")
        e(f"v_cvt_pk_bf16_f32 v{P + 16 + pr}, v{b0}, v{b1}")
    e.vm(f"buffer_store_dwordx4 {vr(P + 16)}, v{V_OUTO}, {srd(S_OUT)}, 0 offen")


def c_body():
    e = Em()
    if CFG["CPRIO"]:
        e(f"s_setprio {CFG['CPRIO']}")
    ptoks, mt = prep_a(e)
    stamp(e, 1)
    e(f"s_cmp_eq_u32 s{S_GJ}, 15")
    e("s_cbranch_scc1 L_c_g")
    if CFG["PINLINE"]:
        pc, pwr = prep_compute(ptoks)
        e.extend(pc)
        misc_use(e, mt, False)
        prep_rb_addr(e)
        e.wait(lg=pwr)
    e("s_barrier")
    if CFG["GPRIO"]:
        e(f"s_setprio {CFG['GPRIO']}")
    NK = 32
    gaps = [Em() for _ in range(6 * NK)]
    trtok, xf = {}, {}
    xf[0] = x_fr(e, 0)
    for idx in range(6):
        trtok[(0, idx)] = w_tr(e, 0, idx)
    stamp(e, 2)
    if CFG["PINLINE"]:
        PB = -1
        prd = prep_readback(gaps[0])
        pst = prep_store(gaps[4], prd)
        prep_flag(gaps[6 * 8 + 2], pst)
    else:
        pc, pwr = prep_compute(ptoks)
        PB = CFG["PB"]
        spread(gaps, pc.L, 6 * CFG["PC0"], 6 * PB - 2)
        prep_rb_addr(gaps[6 * PB])
        prd = prep_readback(gaps[6 * PB + 1])
        misc_use(gaps[6 * PB + 3], mt, False)
        pst = prep_store(gaps[6 * PB + 5], prd)
        prep_flag(gaps[6 * (PB + 7) + 2], pst)
    for T_ in range(1, NK):
        xf[T_] = x_fr(gaps[6 * (T_ - 1)], T_)
        for idx in range(6):
            trtok[(T_, idx)] = w_tr(gaps[6 * (T_ - 1) + idx], T_, idx)
    for T_ in range(NK):
        if T_ in (8, 16, 24):
            stamp(e, 2 + T_ // 8)
        last = (T_ % 4 == 3) and T_ < NK - 5
        if T_ == 27 and CFG["S7F"]:
            lds_wait4(e, 32)
        if last:
            e.wait(lg=[t for idx in range(6) for t in trtok[(T_, idx)]] + [xf[T_]] + (pwr if T_ == PB else []))
            e("s_barrier")
        else:
            e.wait(lg=trtok[(T_, 0)] + trtok[(T_, 1)] + [xf[T_]])
        for idx in range(6):
            ft, mat = idx >> 1, idx & 1
            A = ACC_OF[ft] + 16 * mat
            if idx in (2, 4):
                e.wait(lg=trtok[(T_, idx)] + trtok[(T_, idx + 1)])
            c = "0" if T_ == 0 else vr(A, 16)
            e(f"v_mfma_f32_32x32x16_bf16 {vr(A, 16)}, {ar(A_WF + 24 * (T_ % 2) + 4 * idx)}, "
              f"{ar(A_XF + 4 * (T_ % 2))}, {c}")
            e.extend(gaps[6 * T_ + idx])
    e("s_branch L_c_join")
    e.label("L_c_g")
    ge = Em()
    ge.wait_all()
    gpc, gwr = prep_compute([])
    ge.extend(gpc)
    misc_use(ge, [], False)
    prep_rb_addr(ge)
    ge.wait_all()
    ge("s_barrier")
    gps = prep_store(ge, prep_readback(ge))
    ge(f"s_add_u32 s{T[9]}, s{S_WAVE}, 8")
    lds_set(ge, f"s{T[9]}")
    prep_flag(ge, gps)
    for ftl in range(3):
        h_flag(ge, ftl, [])
    g_path(ge)
    ge.wait_all()
    ge(f"s_lshl_b32 s{T[0]}, s{S_GI}, 4")
    ge(f"s_lshl_b32 s{T[1]}, s{S_WAVE}, 2")
    ge(f"s_add_u32 s{T[0]}, s{T[0]}, s{T[1]}")
    ge(f"s_add_u32 s{T[0]}, s{T[0]}, {FL_G:#x}")
    flag_store(ge, T[0])
    ge.wait_all()
    ge("s_branch L_c_join2")
    e.L.append(("SUB", ge))
    e.label("L_c_join")
    stamp(e, 6)
    e(f"s_add_u32 s{T[9]}, s{S_WAVE}, 8")
    lds_set(e, f"s{T[9]}")
    ht, wtr, wdt, hl = {}, {}, {}, {}
    if CFG["EPRIO"]:
        e(f"s_setprio {CFG['EPRIO']}")
    ht[0] = g1_epilogue(e, 0)
    f0 = lambda em: h_flag(em, 0, ht[0])
    f1 = lambda em: h_flag(em, 1, ht[1])
    ht[1] = g1_epilogue(e, 1, mids=(None, f0) if CFG["FLATE"] else (f0,))
    stamp(e, 7)
    ht[2] = g1_epilogue(e, 2, mids=(None, f1) if CFG["FLATE"] else (f1,))
    if CFG["EPRIO"]:
        e("s_setprio 0")
    e.label("L_c_join2")
    stamp(e, 8)
    e(f"s_add_u32 s{T[9]}, s{S_WAVE}, 24")
    lds_wait1(e, T[9])
    for m in range(5):
        wtr[m] = wd_tr(e, m, CW_SET[m])
    h_flag(e, 2, ht[2])
    h_poll(e, 0)
    stamp(e, 9)
    for m in range(3):
        hl[m] = h_loads(e, m, CH_SET[m], S_XM0)
    for n in (5, 6):
        wdt[n] = wd_dma(e, n, n - 5)
    stamp(e, 10)
    h_poll(e, 1)
    for m in range(3, 5):
        hl[m] = h_loads(e, m, CH_SET[m], S_XM0)
    stamp(e, 11)
    for m in range(7):
        g2_slot(e, m == 0, CW_SET[m % 5], CH_SET[m % 5], hl[m], wtr[m], "a", 0)
        n = m + 5
        if n < 7:
            hl[n] = h_loads(e, n, CH_SET[n % 5], S_XM0)
            e.wait(vm=wdt[n])
            wtr[n] = wd_tr(e, n % 5, CW_SET[n % 5])
        if m == 2:
            e.wait(lg=wtr[6])
            e(f"s_add_u32 s{T[9]}, s{S_WAVE}, 20")
            lds_set(e, f"s{T[9]}")
    stamp(e, 12)
    qgt = qg_loads(e)
    lds_wait4(e, 20)
    e(f"s_mul_i32 s{T[9]}, s{S_WAVE}, 17408")
    partials(e, f"s{T[9]}", "a", 0)
    lds_wait4(e, 28)
    stamp(e, 13)
    y_stage(e)
    stamp(e, 14)
    blend(e, qgt)
    stamp(e, 15)
    e("s_branch L_fin")
    return e


def l_addr(e):
    a, b, c = TMP[0], TMP[1], TMP[2]
    e(f"s_mov_b32 s{T[0]}, 0x5556")
    for i in range(3):
        e(f"v_add_u32 v{a}, {64 * i}, v{V_LANE}")
        e(f"v_mul_u32_u24 v{b}, s{T[0]}, v{a}")
        e(f"v_lshrrev_b32 v{b}, 18, v{b}")
        e(f"v_mul_u32_u24 v{c}, 12, v{b}")
        e(f"v_sub_u32 v{a}, v{a}, v{c}")
        e(f"v_lshlrev_b32 v{a}, 4, v{a}")
        e(f"v_mul_u32_u24 v{b}, 2752, v{b}")
        e(f"v_add_u32 v{V_WDMA + i}, v{a}, v{b}")
        if i:
            e(f"v_subrev_u32 v{V_WDMA + i}, {1024 * i}, v{V_WDMA + i}")
    e(f"s_mul_i32 s{S_WSOFF}, s{S_GJ}, 192")
    e(f"s_mul_i32 s{T[0]}, s{S_WAVE}, {16 * 2752}")
    e(f"s_add_u32 s{S_WSOFF}, s{S_WSOFF}, s{T[0]}")
    e(f"v_lshrrev_b32 v{a}, 3, v{V_LANE}")
    e(f"v_lshlrev_b32 v{a}, 10, v{a}")
    e(f"v_and_b32 v{b}, 7, v{V_LANE}")
    e(f"v_lshl_add_u32 v{V_XDMA}, v{b}, 4, v{a}")
    for m in range(1, 4):
        e(f"v_add_u32 v{V_XDMA + m}, {m * (8192 - 1040)}, v{V_XDMA}")
    e(f"s_lshl_b32 s{S_RHO}, s{S_GJ}, 1")
    e(f"s_add_u32 s{S_RHO}, s{S_RHO}, s{S_GI}")
    e(f"s_and_b32 s{S_RHO}, s{S_RHO}, {CFG['ROT']}")
    e(f"s_mul_i32 s{S_WRB}, s{S_WAVE}, 3072")
    e(f"s_mul_i32 s{S_XM0}, s{S_WAVE}, 4160")


def l_addr2(e):
    a, b, c = TMP[0], TMP[1], TMP[2]
    e(f"v_and_b32 v{V_T}, 255, v0")
    e(f"s_and_b32 s{T[1]}, s{S_WAVE}, 1")
    e(f"s_lshl_b32 s{T[2]}, s{S_CH}, 12")
    e(f"s_lshl_b32 s{T[3]}, s{T[1]}, 2")
    e(f"s_add_u32 s{T[2]}, s{T[2]}, s{T[3]}")
    e(f"s_sub_u32 s{T[2]}, s{T[2]}, 64")
    e(f"s_mov_b32 s{T[1]}, 0xaaab")
    for phi in range(3):
        e(f"v_add_u32 v{a}, {phi * 64}, v{V_LANE}")
        e(f"v_mul_u32_u24 v{b}, s{T[1]}, v{a}")
        e(f"v_lshrrev_b32 v{b}, 20, v{b}")
        e(f"v_mul_u32_u24 v{c}, 24, v{b}")
        e(f"v_sub_u32 v{c}, v{a}, v{c}")
        e(f"v_lshlrev_b32 v{c}, 4, v{c}")
        e(f"v_lshl_add_u32 v{c}, v{b}, 8, v{c}")
        e(f"v_add_u32 v{V_HC + phi}, s{T[2]}, v{c}")
        e(f"v_add_u32 v{V_HC + 3 + phi}, 2048, v{V_HC + phi}")
    wd_addr(e, 1)
    out_addr(e)


def stage_dma(e, n):
    toks = []
    base = PHYS[n % 3]
    e(f"s_add_u32 s{T[4]}, s{S_RHO}, {n}")
    e(f"s_and_b32 s{T[4]}, s{T[4]}, 7")
    e(f"s_lshl_b32 s{T[5]}, s{T[4]}, 7")
    e(f"s_add_u32 s{T[5]}, s{T[5]}, s{S_XSOFF}")
    e(f"s_mul_i32 s{T[4]}, s{T[4]}, {64 * 2752}")
    e(f"s_add_u32 s{T[4]}, s{T[4]}, s{S_WSOFF}")
    e(f"s_add_u32 m0, s{S_XM0}, {base + 24576}")
    e("s_nop 0")
    for m in range(4):
        toks.append(e.vm(f"buffer_load_dwordx4 v{V_XDMA + m}, {srd(S_X)}, s{T[5]} offen offset:{m * 1040} lds"))
    for mat, sr in ((0, S_WG), (1, S_WU)):
        e(f"s_add_u32 m0, s{S_WRB}, {base + mat * 12288}")
        e("s_nop 0")
        for i in range(3):
            toks.append(e.vm(f"buffer_load_dwordx4 v{V_WDMA + i}, {srd(sr)}, s{T[4]} offen offset:{1024 * i} lds"))
    return toks


def hc_dma(e):
    toks = []
    e(f"s_mul_i32 s{T[8]}, s{S_WAVE}, 6208")
    for q in range(6):
        e(f"s_add_u32 m0, s{T[8]}, {L_HC + q * 1024}")
        e("s_nop 0")
        toks.append(e.vm(f"buffer_load_dwordx4 v{V_HC + q}, {srd(S_SSM)}, 0 offen lds"))
    e(f"s_lshl_b32 s{T[8]}, s{S_CH}, 12")
    e(f"v_mov_b32 v{TMP[4]}, 0")
    toks.append(e.vm(f"buffer_load_dword v{V_H01}, v{TMP[4]}, {srd(S_SSM)}, s{T[8]} offen"))
    return toks


def hc_fix(e, toks):
    a, b = TMP[4], TMP[5]
    e.wait(vm=toks)
    e(f"s_and_b32 s{T[8]}, s{S_WAVE}, 1")
    e(f"s_cmp_eq_u32 s{T[8]}, 1")
    e(f"s_cselect_b32 s{T[9]}, 15, 99")
    e(f"v_cmp_eq_u32 vcc, s{T[9]}, v{V_LANE}")
    e(f"s_mul_i32 s{T[8]}, s{S_WAVE}, 6208")
    e(f"s_add_u32 s{T[8]}, s{T[8]}, {L_HC}")
    e(f"v_cndmask_b32 v{a}, 0, v{V_H01}, vcc")
    e(f"v_lshlrev_b32 v{b}, 2, v{V_LANE}")
    e(f"v_add_u32 v{b}, s{T[8]}, v{b}")
    e("s_mov_b64 exec, 0xffff")
    t = e.lg(f"ds_write_b32 v{b}, v{a}")
    e("s_mov_b64 exec, -1")
    return t


K_D, K_A, K_Z = 144, 152, 156


def ur_zero(e):
    a = TMP[4]
    for q in range(4):
        e(f"v_mov_b32 v{K_Z + q}, 0")
    e(f"v_lshlrev_b32 v{a}, 4, v{V_T}")
    e(f"v_add_u32 v{a}, {L_UR}, v{a}")
    e(f"v_cmp_gt_u32 vcc, 80, v{V_T}")
    e(f"s_and_saveexec_b64 s[{S_EXSAVE}:{S_EXSAVE + 1}], vcc")
    e.lg(f"ds_write_b128 v{a}, {vr(K_Z)} offset:5120")
    e.lg(f"ds_write_b128 v{a}, {vr(K_Z)} offset:{6400 + 5120}")
    e("s_mov_b64 exec, -1")


def kv_poll_issue(e):
    e(f"v_and_b32 v{V_PA}, 31, v{V_LANE}")
    e(f"v_lshlrev_b32 v{V_PA}, 4, v{V_PA}")
    e(f"s_lshr_b32 s{T[10]}, s{S_U}, 5")
    e(f"s_lshl_b32 s{T[10]}, s{T[10]}, 9")
    e(f"s_add_u32 s{T[10]}, s{T[10]}, {FL_P:#x}")
    return None


def kv_load(e, tok, slp=None):
    poll_one(e, V_PA, T[10], 14, slp)
    e(f"v_lshlrev_b32 v{K_A}, 4, v{V_T}")
    e(f"s_lshl_b32 s{T[11]}, s{S_U}, 13")
    e(f"s_add_u32 s{T[11]}, s{T[11]}, {WS_KV:#x}")
    e(f"s_add_u32 s{T[12]}, s{T[11]}, 4096")
    return [e.vm(f"buffer_load_dwordx4 {vr(K_D)}, v{K_A}, {srd(S_WS)}, s{T[11]} offen sc1"),
            e.vm(f"buffer_load_dwordx4 {vr(K_D + 4)}, v{K_A}, {srd(S_WS)}, s{T[12]} offen sc1")]


def kv_write(e, toks):
    e(f"v_lshrrev_b32 v{K_A}, 2, v{V_T}")
    e(f"v_mul_u32_u24 v{K_A}, 80, v{K_A}")
    e(f"v_and_b32 v{K_A + 1}, 3, v{V_T}")
    e(f"v_lshl_add_u32 v{K_A}, v{K_A + 1}, 4, v{K_A}")
    e(f"v_add_u32 v{K_A}, {L_UR}, v{K_A}")
    e.wait(vm=toks)
    return [e.lg(f"ds_write_b128 v{K_A}, {vr(K_D)}"),
            e.lg(f"ds_write_b128 v{K_A}, {vr(K_D + 4)} offset:6400")]


def touch_loads(e):
    b = TMP[1]
    e(f"s_and_b32 s{T[0]}, s{S_I2}, 7")
    e(f"s_lshl_b32 s{T[0]}, s{T[0]}, 2")
    e(f"s_add_u32 s{T[0]}, s{T[0]}, s{S_WAVE}")
    e(f"s_lshl_b32 s{T[0]}, s{T[0]}, 16")
    e(f"s_lshl_b32 s{T[1]}, s{S_N2}, 7")
    e(f"s_add_u32 s{T[0]}, s{T[0]}, s{T[1]}")
    e(f"v_lshlrev_b32 v{b}, 10, v{V_LANE}")
    e.vm(f"buffer_load_dword v12, v{b}, {srd(S_WD)}, s{T[0]} offen")


def wd_dma(e, m, buf):
    toks = []
    e(f"s_add_u32 m0, s{S_WDBASE}, {buf * 16384}")
    e(f"s_lshl_b32 s{T[8]}, s{S_FT + m}, 4")
    for q in range(4):
        toks.append(e.vm(f"buffer_load_dwordx4 v{V_WDDMA + q}, {srd(S_WD)}, s{T[8]} offen offset:{q * 1024} lds"))
    return toks


def wd_tr(e, buf, kr):
    toks = []
    k, r0 = kr
    base, vb = buf * 16384, (V_WDTR, V_WDTR + 1)
    if buf == 4:
        e(f"v_add_u32 v{TMP[2]}, 0x10000, v{V_WDTR}")
        e(f"v_add_u32 v{TMP[3]}, 0x10000, v{V_WDTR + 1}")
        base, vb = 0, (TMP[2], TMP[3])
    for half in range(2):
        for dt in range(2):
            r = r0 + 4 * (half * 2 + dt)
            for q in range(2):
                toks.append(e.lg(
                    f"ds_read_b64_tr_b16 {rr(k, r + 2 * q, 2)}, v{vb[dt]} offset:{base + (16 * half + 8 * q) * 128}"))
    return toks


def h_poll(e, level):
    e(f"v_and_b32 v{V_PA}, 7, v{V_LANE}")
    e(f"v_lshlrev_b32 v{V_PA}, 4, v{V_PA}")
    e(f"s_lshl_b32 s{T[13]}, s{S_I2}, 9")
    e(f"s_add_u32 s{T[13]}, s{T[13]}, {FL_H + 128 * level:#x}")
    poll_one(e, V_PA, T[13], (12, 16, 13)[level], 4)


def h_loads(e, m, kr, sbase):
    toks = {}
    k, r0 = kr
    for st in range(2):
        e(f"s_add_u32 s{T[9]}, s{sbase}, s{S_FT + m}")
        if st:
            e(f"s_add_u32 s{T[9]}, s{T[9]}, {43 * 2048}")
        if m == 10:
            e(f"s_cmp_eq_u32 s{S_WAVE}, 3")
            e(f"s_cselect_b32 s{T[9]}, {WS_SIZE:#x}, s{T[9]}")
        for half in range(2):
            r = r0 + 4 * (st * 2 + half)
            toks[(st, half)] = e.vm(
                f"buffer_load_dwordx4 {rr(k, r, 4)}, v{V_L16}, {srd(S_WS)}, s{T[9]} offen offset:{half * 1024} sc1")
    return toks


def g2_slot(e, first, wk, hk, ht, wtr, acck, acc0):
    ka, ra0 = wk
    kb, rb0 = hk
    for half in range(2):
        for stt in range(2):
            e.wait(vm=ht[(stt, half)], lg=wtr if (half == 0 and stt == 0) else None)
            for dt in range(2):
                acc = rr(acck, acc0 + 32 * dt + 16 * stt, 16)
                c = "0" if (first and half == 0) else acc
                e(f"v_mfma_f32_32x32x16_bf16 {acc}, {rr(ka, ra0 + 4 * (half * 2 + dt), 4)}, "
                  f"{rr(kb, rb0 + 4 * (stt * 2 + half), 4)}, {c}")


def partials(e, sbase_expr, acck, acc0):
    a, b = TMP[0], TMP[1]
    e(f"v_and_b32 v{a}, 31, v{V_LANE}")
    e(f"v_mul_u32_u24 v{a}, 272, v{a}")
    e(f"v_lshrrev_b32 v{b}, 5, v{V_LANE}")
    e(f"v_lshl_add_u32 v{a}, v{b}, 4, v{a}")
    e(f"v_add_u32 v{a}, {sbase_expr}, v{a}")
    e("s_nop 7")
    for dt in range(2):
        for stt in range(2):
            for q in range(4):
                e.lg(f"ds_write_b128 v{a}, {rr(acck, acc0 + 32 * dt + 16 * stt + 4 * q, 4)} "
                     f"offset:{stt * 32 * 272 + dt * 128 + q * 32}")


def epoch_cond(e, lbl):
    e(f"s_lshl_b32 s{T[0]}, s{S_GI}, 2")
    e(f"s_add_u32 s{T[0]}, s{T[0]}, s{S_WAVE}")
    e(f"s_lshl_b32 s{T[0]}, s{T[0]}, 4")
    e(f"s_add_u32 s{T[0]}, s{T[0]}, s{S_GJ}")
    e(f"s_cmp_lg_u32 s{T[0]}, 15")
    e(f"s_cbranch_scc1 {lbl}")


def epoch_finish(e):
    epoch_cond(e, "L_noep2")
    for q in range(4):
        e(f"s_mov_b32 s{T[1]}, {FL_P + q * 1024:#x}")
        e(f"buffer_load_dwordx4 {vr(96 + 4 * q)}, v{V_L16}, {srd(S_WS)}, s{T[1]} offen sc1")
    e("s_waitcnt vmcnt(0)")
    for q in range(4):
        e(f"s_mov_b32 s{T[10]}, {FL_P + q * 1024:#x}")
        poll_check(e, None, V_L16, T[10], 96 + 4 * q, 20)
    e(f"s_sub_u32 s{T[0]}, s{S_TAG}, {TAGK - 1:#x}")
    e(f"v_mov_b32 v{TMP[0]}, s{T[0]}")
    e(f"v_mov_b32 v{TMP[1]}, 0")
    e(f"s_mov_b32 s{T[1]}, {FL_EPOCH:#x}")
    e("s_mov_b64 exec, 1")
    e(f"buffer_store_dword v{TMP[0]}, v{TMP[1]}, {srd(S_WS)}, s{T[1]} offen sc1")
    e("s_mov_b64 exec, -1")
    e.label("L_noep2")


def conv_staging(e, hct, slp=None):
    pt = kv_poll_issue(e)
    ur_zero(e)
    kt = kv_load(e, pt, slp)
    hc_fix(e, hct)
    return kt


def l_body():
    e = Em()
    e.label("L_loader")
    l_addr(e)
    e(f"v_lshlrev_b32 v{TMP[0]}, 2, v{V_LANE}")
    e(f"v_add_u32 v{TMP[0]}, {L_FL}, v{TMP[0]}")
    e(f"v_mov_b32 v{TMP[1]}, 0")
    e.wait_all(vm=False, lg=True)
    e.lg(f"ds_write_b32 v{TMP[0]}, v{TMP[1]}")
    stamp(e, 0)
    e(f"s_cmp_eq_u32 s{S_GJ}, 15")
    e("s_cbranch_scc1 L_l_g")
    st = {}
    for n in range(CFG["PRE"]):
        st[n] = stage_dma(e, n)
    stamp(e, 1)
    for n in range(7):
        e.wait(vm=st[n] if (n < 6 or CFG['S7F']) else st[7])
        e.wait_all(vm=False, lg=True)
        e("s_barrier")
        if n in (0, 4):
            stamp(e, 2 + n // 4)
        for k in range(n + 1, min(n + 3, 8)):
            if k not in st:
                st[k] = stage_dma(e, k)
        if n == 0:
            mt = misc_loads(e, True)
            l_addr2(e)
        if n == 2:
            misc_use(e, mt, True)
        if n == 3 and CFG["TOUCH"]:
            touch_loads(e)
        if n == 5:
            hct = hc_dma(e)
            conv_addr(e)
            kv_poll_issue(e)
            ur_zero(e)
    if CFG["S7F"]:
        e.wait(vm=st[7])
        e(f"s_add_u32 s{T[9]}, s{S_WAVE}, 32")
        lds_set(e, f"s{T[9]}")
    e("s_branch L_l_join")
    e.label("L_l_g")
    ge = Em()
    misc_loads(ge, True)
    l_addr2(ge)
    ge.wait_all()
    ge("s_barrier")
    misc_use(ge, [], True)
    hc_dma(ge)
    conv_addr(ge)
    lds_wait4(ge, 8)
    ge("s_sleep 100")
    kv_poll_issue(ge)
    ur_zero(ge)
    ge.wait_all()
    e.L.append(("SUB", ge))
    e.label("L_l_join")
    stamp(e, 4)
    kt = kv_load(e, None)
    lwt = {}
    lw = {0: wd_dma(e, 7, 0), 1: wd_dma(e, 8, 1)}
    hc_fix(e, hct)
    kv_write(e, kt)
    e.wait_all(vm=False, lg=True)
    lds_set(e, f"s{S_WAVE}")
    if CFG["LPRIO"] and CFG["PRIO_AT"] == 0:
        e(f"s_setprio {CFG['LPRIO']}")
    lds_wait4(e, 0)
    stamp(e, 5)
    hr, ft = {}, {}
    for nn in range(4):
        for p in range(4):
            hr[(p, nn)] = conv_hraw(e, p, nn)
    for dl in range(4):
        ft[(0, dl)] = conv_f(e, 0, dl)
    for nn in range(3):
        for p in range(4):
            e.wait(lg=hr[(p, nn)] + hr[(p, nn + 1)][:1])
            conv_align(e, p, nn)
    stamp(e, 6)
    cg = [Em() for _ in range(160)]
    for tt in range(8):
        g0 = 20 * tt
        if tt + 4 <= 10:
            for p in range(4):
                hr[(p, tt + 4)] = conv_hraw(cg[g0 + p], p, tt + 4)
        if tt + 1 < 8:
            for dl in range(4):
                ft[(tt + 1, dl)] = conv_f(cg[g0 + 4 + dl], tt + 1, dl)
            g = cg[g0 + 11]
            g.wait(lg=[t for p in range(4) for t in hr[(p, tt + 3)] + hr[(p, tt + 4)][:1]])
            for p in range(4):
                conv_align(cg[g0 + 11 + 2 * p], p, tt + 3)
    G0, G1, G2, G3, G4 = CFG["LG"]
    g = cg[G0]
    for i in range(2):
        g.wait(vm=lw[i])
        lwt[i] = wd_tr(g, i, LW_SET[i])
    g = cg[G1]
    g.wait(lg=lwt[1])
    cw = wd_dma(g, 0, 0) + wd_dma(cg[G1 + 3], 1, 1)
    g = cg[G2]
    lds_wait4(g, 8)
    lw[2] = wd_dma(g, 9, 2)
    lw[3] = wd_dma(cg[G2 + 3], 10, 3)
    cw += wd_dma(cg[G2 + 6], 4, 4)
    g = cg[G3]
    for i in range(2, 4):
        g.wait(vm=lw[i])
        lwt[i] = wd_tr(g, i, LW_SET[i])
    g = cg[G3 + 6]
    g.wait(lg=lwt[3])
    cw += wd_dma(g, 2, 2) + wd_dma(cg[G3 + 9], 3, 3)
    g = cg[G4]
    g.wait(vm=cw)
    g(f"s_add_u32 s{T[9]}, s{S_WAVE}, 24")
    lds_set(g, f"s{T[9]}")
    for tt in range(8):
        idx = 0
        if tt == 4:
            stamp(e, 7)
        if CFG["LPRIO"] and CFG["PRIO_AT"] and tt == CFG["PRIO_AT"]:
            e(f"s_setprio {CFG['LPRIO']}")
        for dl in range(4):
            e.wait(lg=ft[(tt, dl)])
            for p in range(4 - dl):
                j = p + dl
                for bb in range(2):
                    acc = C_ACC + 8 * j + 4 * bb
                    h = C_H + 20 * p + 4 * ((tt + 2 * bb) % 5)
                    f = A_F + 16 * (tt % 2) + 4 * dl
                    c = "0" if (tt == 0 and dl == 0) else vr(acc)
                    e(f"v_mfma_f32_16x16x32_bf16 {vr(acc)}, {vr(h)}, {ar(f)}, {c}")
                    e.extend(cg[20 * tt + idx])
                    idx += 1
    stamp(e, 8)
    lds_wait4(e, 8)
    yst = conv_epilogue(e)
    e.wait_all(vm=False, lg=True)
    e(f"s_add_u32 s{T[9]}, s{S_WAVE}, 28")
    lds_set(e, f"s{T[9]}")
    y_flag(e, yst)
    if CFG["LPRIO"]:
        e("s_setprio 0")
    stamp(e, 9)
    lds_wait1i(e, 12)
    lds_wait1i(e, 16)
    h_poll(e, 2)
    hl = {}
    for i in range(4):
        hl[i] = h_loads(e, 7 + i, LH_SET[i], S_HOFF)
    qgt = qg_loads(e)
    stamp(e, 10)
    for i in range(4):
        g2_slot(e, i == 0, LW_SET[i], LH_SET[i], hl[i], lwt[i], "v", 32)
    stamp(e, 11)
    lds_wait4(e, 28)
    e(f"s_mul_i32 s{T[9]}, s{S_WAVE}, 17408")
    e(f"s_add_u32 s{T[9]}, s{T[9]}, {L_P2L}")
    partials(e, f"s{T[9]}", "v", 32)
    stamp(e, 12)
    blend(e, qgt)
    stamp(e, 15)
    epoch_finish(e)
    return e


def resolve_sub(ge):
    own = {id(i) for i in ge.L}
    L = []
    for i in ge.L:
        if i.kind == "wait":
            L.append(Ins("", "wait", [t for t in i.vm if id(t) in own], [t for t in i.lg if id(t) in own]))
        else:
            L.append(i)
    return resolve_waits(L)


def flatten(e):
    subs, L = {}, []
    for i in e.L:
        if isinstance(i, tuple):
            key = f";;SUB{len(subs)}"
            subs[key] = i[1]
            L.append(Ins(key))
        else:
            L.append(i)
    out = []
    for ln in resolve_waits(L):
        if ln in subs:
            out.extend(resolve_sub(subs[ln]))
        else:
            out.append(ln)
    return out


def emit(path):
    _lbl[0] = 0
    e0 = Em()
    setup(e0)
    lines = flatten(e0) + flatten(c_body()) + flatten(l_body())
    lines, npad = pad_hazards(lines)
    hdr = open("gated_mix__ssm_conv_h3__geglu_ffn__prompt.s.ref").read().split("; @launch")[0]
    txt = hdr
    txt += f"; @launch grid=(256,1,1) block=(512,1,1) lds={LDS_SIZE}\n"
    txt += '.amdgcn_target "amdgcn-amd-amdhsa--gfx950"\n.text\n'
    txt += f".globl {KNAME}\n.p2align 8\n.type {KNAME},@function\n{KNAME}:\n"
    for ln in lines:
        txt += ("" if ln.endswith(":") else "    ") + ln + "\n"
    txt += "L_fin:\nL_end:\n    s_endpgm\n"
    txt += f""".section .rodata,"a"
.p2align 6
.amdhsa_kernel {KNAME}
  .amdhsa_next_free_vgpr 256
  .amdhsa_next_free_sgpr 102
  .amdhsa_accum_offset 160
  .amdhsa_group_segment_fixed_size 0
  .amdhsa_kernarg_size 112
  .amdhsa_user_sgpr_count 2
  .amdhsa_user_sgpr_kernarg_segment_ptr 1
  .amdhsa_system_sgpr_workgroup_id_x 1
.end_amdhsa_kernel
"""
    open(path, "w").write(txt)
    return len(lines), npad


if __name__ == "__main__":
    out = sys.argv[1] if len(sys.argv) > 1 else "k6.s"
    for a in sys.argv[2:]:
        k, v = a.split("=")
        CFG[k] = eval(v)
    print(emit(out))
```

```python
import sys, struct, math
sys.path.insert(0, "work")
from asmlib import Em, Ins, resolve_waits, pad_hazards

KNAME = "gated_mix__ssm_conv_h3__geglu_ffn__prompt_kernel"

CFG = dict(EMU_PREP=True, EMU_G1=True, STAMPS=False, POLL_MAX=200000, ROT=7, SLEEP=8, TOUCH=True,
           KV_AFTER=5, CPRIO=0, PRE=2, LPRE=True, LPRIO=2, PDELAY=0, SHAREB=True, LFIRST=True, EPRIO=0, GPRIO=0, DBGW=0, S7F=True, LG=(9, 18, 29, 69, 118), FLATE=False, PINLINE=True, CWF=29, TOUCH2=False, TDELAY=0, PC0=4, PB=15, PRIO_AT=0)

WS_KV = 0x600000
WS_Y2 = 0x800000
WS_G = 0xA00000
WS_FLG = 0xB00000
FL_EPOCH = WS_FLG
FL_P = WS_FLG + 0x1000
FL_H = WS_FLG + 0x2000
FL_Y = WS_FLG + 0x8000
FL_G = WS_FLG + 0xA000
WS_STAMP = 0xC00000
WS_SIZE = 0x10000000
TAGK = 0x9E3779B9

SLOT = 41216
PHYS = {2: 0, 0: SLOT, 1: 2 * SLOT}
L_WDB = 0
WDB_STRIDE = 20608
L_LWD = 2 * SLOT
L_EX = 2 * SLOT + 16384
L_P2L = 2 * SLOT
L_YT = 2 * SLOT + 4 * 17408
L_HC = 123648
L_UR = 148480
L_PT = 148480
L_SH = 161280
L_FL = 162304
L_GT = 162816
LDS_SIZE = 163840

S_X, S_K, S_V, S_SH, S_SSM, S_WG, S_WU, S_WD, S_GW, S_OUT, S_WS, S_HST, S_DD = [4 + 4 * i for i in range(13)]
S_WAVE, S_GI, S_GJ, S_I2, S_N2, S_TAG = 56, 57, 58, 59, 60, 61
T = list(range(62, 76))
S_C1, S_MASKHI = 76, 77
S_EXSAVE = 78
S_WSOFF, S_XSOFF, S_XM0, S_HOFF, S_FHOFF, S_CH, S_POLL, S_U, S_DF = 80, 81, 82, 83, 84, 85, 86, 87, 88
S_WDBASE = 89
S_RHO, S_WRB = 3, 2
S_FT = 90
S_STI = 101


def srd(b): return f"s[{b}:{b + 3}]"
def vr(b, n=4): return f"v[{b}:{b + n - 1}]"
def ar(b, n=4): return f"a[{b}:{b + n - 1}]"
def rr(k, b, n): return f"{k}[{b}:{b + n - 1}]"
def f32hex(x): return "0x%08x" % struct.unpack("<I", struct.pack("<f", x))[0]


V_LANE, V_L16 = 1, 2
TMP = [13, 14, 15, 16, 17, 18]
V_PA = 19
V_PD = 20
V_EPO, V_H01, V_OUTO, V_T = 24, 25, 26, 27
V_WTR = 3
V_XRD = 6
V_C0 = 9
ACC_OF = {0: 96, 1: 64, 2: 32}
V_ET = 144
A_WF = 0
A_XF = 48
P_K, P_V, P_SH, P_AD, P_T = 32, 52, 60, 76, 84
V_WDMA = 3
V_XDMA = 6
V_F, V_H, V_SHF = 3, 4, 5
V_HC = 32
C_ACC, C_H = 32, 64
A_F = 0
V_WDDMA = 28
V_WDTR = 10
CW_SET = [("v", 96), ("v", 112), ("v", 64), ("v", 80), ("v", 32)]
CH_SET = [("a", 64), ("a", 80), ("v", 128), ("v", 48), ("v", 144)]
LW_SET = [("a", 32), ("a", 48), ("a", 64), ("a", 80)]
LH_SET = [("v", 96), ("v", 112), ("v", 128), ("v", 144)]


_lbl = [0]


def stamp(e, idx):
    if not CFG["STAMPS"] or (CFG["STAMPS"] == 2 and idx not in (0, 15)):
        return
    if CFG["STAMPS"] == 3:
        n = _lbl[0]
        _lbl[0] += 1
        e.wait_all(vm=False, lg=True)
        e(f"s_cmp_lg_u32 s{S_STI}, {CFG['DBGW']}")
        e(f"s_cbranch_scc1 L_st{n}")
        e(f"s_load_dwordx2 s[{S_EXSAVE}:{S_EXSAVE + 1}], s[0:1], 96")
        e("s_memrealtime vcc")
        e("s_waitcnt lgkmcnt(0)")
        e(f"v_mov_b32 v{TMP[0]}, vcc_lo")
        e(f"v_mov_b32 v{TMP[1]}, 0")
        e("s_mov_b64 exec, 1")
        e(f"global_store_dword v{TMP[1]}, v{TMP[0]}, s[{S_EXSAVE}:{S_EXSAVE + 1}] offset:{idx * 4}")
        e("s_mov_b64 exec, -1")
        e.label(f"L_st{n}")
        return
    e.wait_all(vm=False, lg=True)
    e("s_memrealtime s[0:1]")
    e(f"s_memtime s[{S_EXSAVE}:{S_EXSAVE + 1}]")
    e.wait_all(vm=False, lg=True)
    e(f"v_mov_b32 v{TMP[0]}, s0")
    e(f"v_mov_b32 v{TMP[1]}, s{S_STI}")
    e(f"v_mov_b32 v{TMP[2]}, s{S_EXSAVE}")
    e("s_mov_b64 exec, 1")
    e.vm(f"buffer_store_dword v{TMP[0]}, v{TMP[1]}, {srd(S_WS)}, 0 offen offset:{idx * 4}")
    e.vm(f"buffer_store_dword v{TMP[2]}, v{TMP[1]}, {srd(S_WS)}, 0 offen offset:{128 + idx * 4}")
    if idx == 0:
        e(f"v_mov_b32 v{TMP[0]}, vcc_lo")
        e.vm(f"buffer_store_dword v{TMP[0]}, v{TMP[1]}, {srd(S_WS)}, 0 offen offset:{31 * 4}")
    e("s_mov_b64 exec, -1")


def flag_store(e, s_addr):
    e(f"v_mov_b32 v{TMP[0]}, s{S_TAG}")
    e(f"v_mov_b32 v{TMP[1]}, 0")
    e("s_mov_b64 exec, 1")
    t = e.vm(f"buffer_store_dword v{TMP[0]}, v{TMP[1]}, {srd(S_WS)}, s{s_addr} offen sc1")
    e("s_mov_b64 exec, -1")
    return t


def poll_issue(e, vaddr, s_addr, vdst):
    return e.vm(f"buffer_load_dwordx4 {vr(vdst)}, v{vaddr}, {srd(S_WS)}, s{s_addr} offen sc1")


def poll_check(e, tok, vaddr, s_addr, vdst, slp=None):
    n = _lbl[0]
    _lbl[0] += 1
    e.wait(vm=tok)
    e(f"s_mov_b32 s{S_POLL}, 0")
    e.label(f"L_pc{n}")
    for q in range(4):
        e(f"v_xor_b32 v{vdst + q}, s{S_TAG}, v{vdst + q}")
    e(f"v_or3_b32 v{vdst}, v{vdst}, v{vdst + 1}, v{vdst + 2}")
    e(f"v_or_b32 v{vdst}, v{vdst}, v{vdst + 3}")
    e(f"v_cmp_eq_u32 vcc, 0, v{vdst}")
    e("s_nop 1")
    e("s_cmp_eq_u64 vcc, -1")
    e(f"s_cbranch_scc1 L_pd{n}")
    e(f"s_add_u32 s{S_POLL}, s{S_POLL}, 1")
    e(f"s_cmp_ge_u32 s{S_POLL}, {CFG['POLL_MAX']}")
    e(f"s_cbranch_scc1 L_pd{n}")
    e(f"s_sleep {slp if slp is not None else CFG['SLEEP']}")
    e(f"buffer_load_dwordx4 {vr(vdst)}, v{vaddr}, {srd(S_WS)}, s{s_addr} offen sc1")
    e("s_waitcnt vmcnt(0)")
    e(f"s_branch L_pc{n}")
    e.label(f"L_pd{n}")


def lds_set(e, word_sgpr_or_int, val=1):
    if isinstance(word_sgpr_or_int, int):
        e(f"v_mov_b32 v{TMP[0]}, {L_FL + 4 * word_sgpr_or_int}")
    else:
        e(f"s_lshl_b32 s{T[0]}, {word_sgpr_or_int}, 2")
        e(f"s_add_u32 s{T[0]}, s{T[0]}, {L_FL}")
        e(f"v_mov_b32 v{TMP[0]}, s{T[0]}")
    e(f"v_mov_b32 v{TMP[1]}, {val}")
    e("s_mov_b64 exec, 1")
    t = e.lg(f"ds_write_b32 v{TMP[0]}, v{TMP[1]}")
    e("s_mov_b64 exec, -1")
    return t


def lds_wait4(e, word0):
    n = _lbl[0]
    _lbl[0] += 1
    e(f"v_mov_b32 v{TMP[0]}, {L_FL + 4 * word0}")
    e(f"s_mov_b32 s{S_POLL}, 0")
    e.label(f"L_lw{n}")
    e(f"ds_read_b128 {vr(V_PD)}, v{TMP[0]}")
    e("s_waitcnt lgkmcnt(0)")
    e(f"v_and_b32 v{V_PD}, v{V_PD}, v{V_PD + 1}")
    e(f"v_and_b32 v{V_PD + 2}, v{V_PD + 2}, v{V_PD + 3}")
    e(f"v_and_b32 v{V_PD}, v{V_PD}, v{V_PD + 2}")
    e(f"v_cmp_eq_u32 vcc, 1, v{V_PD}")
    e("s_nop 1")
    e("s_cmp_eq_u64 vcc, -1")
    e(f"s_cbranch_scc1 L_ld{n}")
    e(f"s_add_u32 s{S_POLL}, s{S_POLL}, 1")
    e(f"s_cmp_ge_u32 s{S_POLL}, {CFG['POLL_MAX'] * 8}")
    e(f"s_cbranch_scc1 L_ld{n}")
    e("s_sleep 1")
    e(f"s_branch L_lw{n}")
    e.label(f"L_ld{n}")
    e.wait_all(vm=False, lg=True)


def lds_wait1(e, s_word):
    n = _lbl[0]
    _lbl[0] += 1
    e(f"s_lshl_b32 s{T[0]}, s{s_word}, 2")
    e(f"s_add_u32 s{T[0]}, s{T[0]}, {L_FL}")
    e(f"v_mov_b32 v{TMP[4]}, s{T[0]}")
    e(f"s_mov_b32 s{S_POLL}, 0")
    e.label(f"L_lw{n}")
    e(f"ds_read_b32 v{V_PD}, v{TMP[4]}")
    e("s_waitcnt lgkmcnt(0)")
    e(f"v_cmp_eq_u32 vcc, 1, v{V_PD}")
    e("s_nop 1")
    e("s_cmp_eq_u64 vcc, -1")
    e(f"s_cbranch_scc1 L_ld{n}")
    e(f"s_add_u32 s{S_POLL}, s{S_POLL}, 1")
    e(f"s_cmp_ge_u32 s{S_POLL}, {CFG['POLL_MAX'] * 8}")
    e(f"s_cbranch_scc1 L_ld{n}")
    e(f"s_branch L_lw{n}")
    e.label(f"L_ld{n}")
    e.wait_all(vm=False, lg=True)


def lds_wait1i(e, word, slp=1):
    n = _lbl[0]
    _lbl[0] += 1
    e(f"v_mov_b32 v{TMP[4]}, {L_FL + 4 * word}")
    e(f"s_mov_b32 s{S_POLL}, 0")
    e.label(f"L_lw{n}")
    e(f"ds_read_b32 v{V_PD}, v{TMP[4]}")
    e("s_waitcnt lgkmcnt(0)")
    e(f"v_cmp_eq_u32 vcc, 1, v{V_PD}")
    e("s_nop 1")
    e("s_cmp_eq_u64 vcc, -1")
    e(f"s_cbranch_scc1 L_ld{n}")
    e(f"s_add_u32 s{S_POLL}, s{S_POLL}, 1")
    e(f"s_cmp_ge_u32 s{S_POLL}, {CFG['POLL_MAX'] * 8}")
    e(f"s_cbranch_scc1 L_ld{n}")
    e(f"s_sleep {slp}")
    e(f"s_branch L_lw{n}")
    e.label(f"L_ld{n}")
    e.wait_all(vm=False, lg=True)


def poll_one(e, vaddr, s_addr, word, slp=None):
    n = _lbl[0]
    _lbl[0] += 1
    e(f"s_cmp_lg_u32 s{S_WAVE}, 0")
    e(f"s_cbranch_scc1 L_po{n}")
    e(f"buffer_load_dwordx4 {vr(V_PD)}, v{vaddr}, {srd(S_WS)}, s{s_addr} offen sc1")
    e("s_waitcnt vmcnt(0)")
    poll_check(e, None, vaddr, s_addr, V_PD, slp)
    e(f"v_mov_b32 v{TMP[0]}, {L_FL + 4 * word}")
    e(f"v_mov_b32 v{TMP[1]}, 1")
    e(f"ds_write_b32 v{TMP[0]}, v{TMP[1]}")
    e(f"s_branch L_pe{n}")
    e.label(f"L_po{n}")
    lds_wait1i(e, word)
    e.label(f"L_pe{n}")
    e.wait_all(vm=False, lg=True)


def unpack(e, dst, src, hi):
    if hi:
        e(f"v_and_b32 v{dst}, s{S_MASKHI}, v{src}")
    else:
        e(f"v_lshlrev_b32 v{dst}, 16, v{src}")


def round2(e, a, b, tmp):
    e(f"v_cvt_pk_bf16_f32 v{tmp}, v{a}, v{b}")
    e(f"v_lshlrev_b32 v{a}, 16, v{tmp}")
    e(f"v_and_b32 v{b}, s{S_MASKHI}, v{tmp}")


def spread(gaps, L, lo, hi):
    n = len(L)
    for idx, ins in enumerate(L):
        gaps[lo + idx * (hi - lo) // n].L.append(ins)


def setup(e):
    if CFG["STAMPS"] in (True, 2):
        e("s_memrealtime vcc")
    e("s_cmp_ge_u32 s2, 256")
    e("s_cbranch_scc1 L_end")
    ptrs = [(S_WG, 56), (S_WU, 64), (S_X, 0), (S_K, 8), (S_V, 16), (S_SH, 24), (S_WS, 104), (S_SSM, 32), (S_DD, 40),
            (S_WD, 72), (S_GW, 80), (S_OUT, 88), (S_HST, 104)]
    for r, off in ptrs:
        e(f"s_load_dwordx2 s[{r}:{r + 1}], s[0:1], {off}")
    sizes = {S_X: 0x200000, S_K: 0x200000, S_V: 0x200000, S_SH: 4096, S_SSM: 0x200000, S_WG: 512 * 2752,
             S_WU: 512 * 2752, S_WD: 1376 * 1024, S_GW: 1024, S_OUT: 0x200000, S_WS: WS_SIZE, S_HST: WS_SIZE,
             S_DD: 1024}
    for r, sz in sizes.items():
        e(f"s_mov_b32 s{r + 2}, {sz:#x}")
        e(f"s_mov_b32 s{r + 3}, 0x00020000")
    e(f"v_lshrrev_b32 v{TMP[0]}, 6, v0")
    e(f"v_and_b32 v{V_LANE}, 63, v0")
    e(f"v_readfirstlane_b32 s{T[13]}, v{TMP[0]}")
    e(f"s_mov_b32 s{S_U}, s2")
    e(f"s_and_b32 s{T[0]}, s2, 7")
    e(f"s_lshr_b32 s{T[1]}, s2, 3")
    e(f"s_and_b32 s{T[2]}, s{T[1]}, 7")
    e(f"s_lshr_b32 s{T[3]}, s{T[1]}, 3")
    e(f"s_and_b32 s{T[4]}, s{T[0]}, 1")
    e(f"s_lshr_b32 s{T[5]}, s{T[0]}, 1")
    e(f"s_lshl_b32 s{S_GI}, s{T[4]}, 3")
    e(f"s_add_u32 s{S_GI}, s{S_GI}, s{T[2]}")
    e(f"s_lshl_b32 s{S_GJ}, s{T[5]}, 2")
    e(f"s_add_u32 s{S_GJ}, s{S_GJ}, s{T[3]}")
    e(f"s_lshl_b32 s{S_I2}, s{T[5]}, 3")
    e(f"s_add_u32 s{S_I2}, s{S_I2}, s{T[2]}")
    e(f"s_lshl_b32 s{S_N2}, s{T[4]}, 2")
    e(f"s_add_u32 s{S_N2}, s{S_N2}, s{T[3]}")
    e(f"s_and_b32 s{S_WAVE}, s{T[13]}, 3")
    e(f"s_mov_b32 s{S_MASKHI}, 0xffff0000")
    e(f"v_lshlrev_b32 v{V_L16}, 4, v{V_LANE}")
    if CFG["STAMPS"]:
        e(f"s_lshl_b32 s{S_STI}, s2, 3")
        e(f"s_add_u32 s{S_STI}, s{S_STI}, s{T[13]}")
        if CFG["STAMPS"] != 3:
            e(f"s_lshl_b32 s{S_STI}, s{S_STI}, 8")
            e(f"s_add_u32 s{S_STI}, s{S_STI}, {WS_STAMP:#x}")
    e(f"s_lshl_b32 s{S_XSOFF}, s{S_GI}, 17")
    e(f"s_lshl_b32 s{T[0]}, s{S_WAVE}, 15")
    e(f"s_add_u32 s{S_XSOFF}, s{S_XSOFF}, s{T[0]}")
    e(f"s_lshr_b32 s{T[0]}, s{S_WAVE}, 1")
    e(f"s_lshl_b32 s{S_CH}, s{S_U}, 1")
    e(f"s_add_u32 s{S_CH}, s{S_CH}, s{T[0]}")
    e(f"s_cmp_ge_u32 s{T[13]}, 4")
    e("s_cbranch_scc1 L_loader")


def misc_loads(e, need_d):
    e(f"v_mov_b32 v{TMP[0]}, 0")
    e(f"s_mov_b32 s{T[0]}, {FL_EPOCH:#x}")
    toks = [e.vm(f"buffer_load_dword v{V_EPO}, v{TMP[0]}, {srd(S_WS)}, s{T[0]} offen sc1")]
    if need_d:
        e(f"s_lshl_b32 s{T[1]}, s{S_U}, 2")
        toks.append(e.vm(f"buffer_load_dword v{V_H01}, v{TMP[0]}, {srd(S_DD)}, s{T[1]} offen"))
    return toks


def misc_use(e, toks, need_d):
    e.wait(vm=toks)
    e(f"v_readfirstlane_b32 s{S_TAG}, v{V_EPO}")
    if need_d:
        e(f"v_readfirstlane_b32 s{T[0]}, v{V_H01}")
    e("s_nop 3")
    e(f"s_add_u32 s{S_TAG}, s{S_TAG}, {TAGK:#x}")
    if need_d:
        e(f"s_lshl_b32 s{T[2]}, s{T[0]}, 16")
        e(f"s_and_b32 s{T[3]}, s{T[0]}, 0xffff0000")
        e(f"s_cmp_lt_u32 s{S_WAVE}, 2")
        e(f"s_cselect_b32 s{S_DF}, s{T[2]}, s{T[3]}")


def out_addr(e):
    a, b = TMP[0], TMP[1]
    e(f"v_lshrrev_b32 v{a}, 3, v0")
    e(f"v_and_b32 v{b}, 7, v0")
    e(f"v_lshlrev_b32 v{b}, 4, v{b}")
    e(f"v_lshl_add_u32 v{a}, v{a}, 10, v{b}")
    e(f"s_lshl_b32 s{T[0]}, s{S_I2}, 16")
    e(f"s_lshl_b32 s{T[1]}, s{S_N2}, 7")
    e(f"s_add_u32 s{T[0]}, s{T[0]}, s{T[1]}")
    e(f"v_add_u32 v{V_OUTO}, s{T[0]}, v{a}")


A_PK, A_PV = 56, 76
Q_RAW, Q_SH, Q_KC, Q_VV, Q_S4, Q_P, Q_W, Q_SA = 128, 136, 140, 145, 147, 151, 156, 157


def prep_a(e):
    a, b = TMP[0], TMP[1]
    AD = 128
    e(f"v_and_b32 v{a}, 7, v0")
    e(f"v_lshrrev_b32 v{b}, 3, v0")
    e(f"v_lshlrev_b32 v{a}, 4, v{a}")
    e(f"v_lshl_add_u32 v{a}, v{b}, 11, v{a}")
    e(f"s_lshl_b32 s{T[0]}, s{S_I2}, 16")
    e(f"s_lshl_b32 s{T[1]}, s{S_N2}, 7")
    e(f"s_add_u32 s{T[0]}, s{T[0]}, s{T[1]}")
    e(f"s_sub_u32 s{T[0]}, s{T[0]}, 3072")
    e(f"v_add_u32 v{AD}, s{T[0]}, v{a}")
    for m in range(1, 5):
        e(f"v_add_u32 v{AD + m}, {1024 * m}, v{AD}")
    e.wait_all(vm=False, lg=True)
    stamp(e, 0)
    if CFG["TOUCH2"]:
        e(f"v_lshrrev_b32 v{a}, 3, v{V_LANE}")
        e(f"v_lshlrev_b32 v{a}, 10, v{a}")
        e(f"v_and_b32 v{b}, 7, v{V_LANE}")
        e(f"v_lshl_add_u32 v{a}, v{b}, 7, v{a}")
        e(f"s_and_b32 s{T[0]}, s{S_GJ}, 3")
        e(f"s_lshl_b32 s{T[0]}, s{T[0]}, 15")
        e(f"s_lshl_b32 s{T[1]}, s{S_WAVE}, 13")
        e(f"s_add_u32 s{T[0]}, s{T[0]}, s{T[1]}")
        e(f"s_lshl_b32 s{T[1]}, s{S_GI}, 17")
        e(f"s_add_u32 s{T[0]}, s{T[0]}, s{T[1]}")
        e(f"v_mul_u32_u24 v{b}, 2752, v{V_LANE}")
        e(f"s_and_b32 s{T[2]}, s{S_GI}, 7")
        e(f"s_mul_i32 s{T[2]}, s{T[2]}, {64 * 2752}")
        e(f"s_mul_i32 s{T[3]}, s{S_GJ}, 192")
        e(f"s_add_u32 s{T[2]}, s{T[2]}, s{T[3]}")
        e(f"s_lshr_b32 s{T[3]}, s{S_WAVE}, 1")
        e(f"s_mul_i32 s{T[3]}, s{T[3]}, 188")
        e(f"s_add_u32 s{T[2]}, s{T[2]}, s{T[3]}")
        if CFG["TDELAY"]:
            e(f"s_sleep {CFG['TDELAY']}")
        e.vm(f"buffer_load_dword v{V_PD}, v{a}, {srd(S_X)}, s{T[0]} offen")
        e(f"s_bitcmp1_b32 s{S_WAVE}, 0")
        e("s_cbranch_scc1 L_t2u")
        e(f"buffer_load_dword v{V_PD + 1}, v{b}, {srd(S_WG)}, s{T[2]} offen")
        e("s_branch L_t2j")
        e.label("L_t2u")
        e(f"buffer_load_dword v{V_PD + 1}, v{b}, {srd(S_WU)}, s{T[2]} offen")
        e.label("L_t2j")
        e.vm("s_nop 0")
    if CFG["PDELAY"]:
        e(f"s_sleep {CFG['PDELAY']}")
    toks = []
    for m in range(5):
        toks.append(e.vm(f"buffer_load_dwordx4 {ar(A_PK + 4 * m)}, v{AD + m}, {srd(S_K)}, 0 offen"))
    for m in range(2):
        toks.append(e.vm(f"buffer_load_dwordx4 {ar(A_PV + 4 * m)}, v{AD + 3 + m}, {srd(S_V)}, 0 offen"))
    e(f"s_mov_b32 m0, {L_SH}")
    e(f"s_lshl_b32 s{T[1]}, s{S_N2}, 9")
    toks.append(e.vm(f"buffer_load_dwordx4 v{V_L16}, {srd(S_SH)}, s{T[1]} offen lds"))
    mt = misc_loads(e, False)
    e(";;SPLIT")
    c_addr(e)
    w = Q_W
    e(f"v_lshrrev_b32 v{b}, 3, v0")
    e(f"v_sub_u32 v{b}, 31, v{b}")
    e(f"v_lshrrev_b32 v{w}, 2, v{b}")
    e(f"v_and_b32 v{TMP[3]}, 7, v0")
    e(f"v_xor_b32 v{w}, v{w}, v{TMP[3]}")
    e(f"v_lshlrev_b32 v{w}, 4, v{w}")
    e(f"v_and_b32 v{b}, 3, v{b}")
    e(f"v_lshl_add_u32 v{w}, v{b}, 2, v{w}")
    e(f"v_lshl_add_u32 v{w}, v{TMP[3]}, 10, v{w}")
    e(f"v_add_u32 v{w}, {L_PT}, v{w}")
    e(f"v_lshlrev_b32 v{Q_SA}, 6, v{TMP[3]}")
    e(f"v_add_u32 v{Q_SA}, {L_SH}, v{Q_SA}")
    return toks, mt


def prep_compute(toks):
    e = Em()
    e.wait(vm=toks)
    wr = []
    for q in range(4):
        sh = e.lg(f"ds_read_b128 {vr(Q_SH)}, v{Q_SA} offset:{16 * q}")
        for m in range(5):
            e(f"v_accvgpr_read_b32 v{Q_RAW + m}, a{A_PK + 4 * m + q}")
        for m in range(2):
            e(f"v_accvgpr_read_b32 v{Q_RAW + 5 + m}, a{A_PV + 4 * m + q}")
        e.wait(lg=sh)
        for hi in range(2):
            c = 2 * q + hi
            kc = [Q_KC + m for m in range(5)]
            vv = [Q_VV, Q_VV + 1]
            s4 = [Q_S4 + j for j in range(4)]
            p0, p1, a0, a1, tp = Q_P, Q_P + 1, Q_P + 2, Q_P + 3, Q_P + 4
            for m in range(5):
                unpack(e, kc[m], Q_RAW + m, hi)
            for m in range(2):
                unpack(e, vv[m], Q_RAW + 5 + m, hi)
            for j in range(4):
                unpack(e, s4[j], Q_SH + 2 * hi + (j >> 1), j & 1)
            e(f"v_mul_f32 v{a0}, v{kc[0]}, v{s4[3]}")
            e(f"v_mul_f32 v{a1}, v{kc[1]}, v{s4[3]}")
            if CFG["EMU_PREP"]:
                round2(e, a0, a1, tp)
                for tt in range(1, 4):
                    e(f"v_mul_f32 v{p0}, v{kc[tt]}, v{s4[3 - tt]}")
                    e(f"v_mul_f32 v{p1}, v{kc[tt + 1]}, v{s4[3 - tt]}")
                    round2(e, p0, p1, tp)
                    e(f"v_add_f32 v{a0}, v{a0}, v{p0}")
                    e(f"v_add_f32 v{a1}, v{a1}, v{p1}")
                    round2(e, a0, a1, tp)
            else:
                for tt in range(1, 4):
                    e(f"v_fmac_f32 v{a0}, v{kc[tt]}, v{s4[3 - tt]}")
                    e(f"v_fmac_f32 v{a1}, v{kc[tt + 1]}, v{s4[3 - tt]}")
            e(f"v_mul_f32 v{a0}, v{a0}, v{vv[0]}")
            e(f"v_mul_f32 v{a1}, v{a1}, v{vv[1]}")
            e(f"v_cvt_pk_bf16_f32 v{p0}, v{a1}, v{a0}")
            wr.append(e.lg(f"ds_write_b32 v{Q_W}, v{p0} offset:{c * 128}"))
    return e, wr


def prep_rb_addr(e):
    a, b = TMP[0], TMP[1]
    RA, RB, RG = V_ET + 8, V_ET + 9, V_ET + 10
    e(f"v_lshrrev_b32 v{b}, 3, v0")
    e(f"v_lshrrev_b32 v{a}, 6, v0")
    e(f"v_and_b32 v{RG}, 7, v0")
    e(f"v_xor_b32 v{a}, v{a}, v{RG}")
    e(f"v_lshlrev_b32 v{a}, 4, v{a}")
    e(f"v_lshl_add_u32 v{a}, v{b}, 7, v{a}")
    e(f"v_xor_b32 v{RB}, 64, v{a}")
    e(f"v_add_u32 v{RA}, {L_PT}, v{a}")
    e(f"v_add_u32 v{RB}, {L_PT}, v{RB}")
    e(f"v_lshlrev_b32 v{RG}, 4, v{RG}")
    e(f"v_lshl_add_u32 v{RG}, v{b}, 12, v{RG}")


def prep_readback(e):
    RA, RB = V_ET + 8, V_ET + 9
    return [e.lg(f"ds_read_b128 {vr(V_ET)}, v{RA}"),
            e.lg(f"ds_read_b128 {vr(V_ET + 4)}, v{RB} offset:4096")]


def prep_store(e, rd):
    RG = V_ET + 10
    e(f"s_lshl_b32 s{T[0]}, s{S_N2}, 18")
    e(f"s_lshl_b32 s{T[1]}, s{S_I2}, 7")
    e(f"s_sub_u32 s{T[0]}, s{T[0]}, s{T[1]}")
    e(f"s_add_u32 s{T[0]}, s{T[0]}, {WS_KV + 3968:#x}")
    e(f"s_add_u32 s{T[1]}, s{T[0]}, {32 * 4096:#x}")
    e.wait(lg=rd)
    return [e.vm(f"buffer_store_dwordx4 {vr(V_ET)}, v{RG}, {srd(S_WS)}, s{T[0]} offen sc1"),
            e.vm(f"buffer_store_dwordx4 {vr(V_ET + 4)}, v{RG}, {srd(S_WS)}, s{T[1]} offen sc1")]


def prep_flag(e, toks):
    e.wait(vm=toks)
    e(f"s_lshl_b32 s{T[0]}, s{S_N2}, 9")
    e(f"s_lshl_b32 s{T[1]}, s{S_I2}, 4")
    e(f"s_add_u32 s{T[0]}, s{T[0]}, s{T[1]}")
    e(f"s_lshl_b32 s{T[1]}, s{S_WAVE}, 2")
    e(f"s_add_u32 s{T[0]}, s{T[0]}, s{T[1]}")
    e(f"s_add_u32 s{T[0]}, s{T[0]}, {FL_P:#x}")
    return flag_store(e, T[0])


def c_addr(e):
    a, b, c = TMP[0], TMP[1], TMP[2]
    e(f"v_lshrrev_b32 v{a}, 5, v{V_LANE}")
    e(f"v_lshlrev_b32 v{a}, 3, v{a}")
    e(f"v_bfe_u32 v{b}, v{V_LANE}, 2, 2")
    e(f"v_add_u32 v{a}, v{a}, v{b}")
    e(f"v_mul_u32_u24 v{a}, 192, v{a}")
    e(f"v_bfe_u32 v{b}, v{V_LANE}, 4, 1")
    e(f"v_lshl_add_u32 v{a}, v{b}, 5, v{a}")
    e(f"v_and_b32 v{b}, 3, v{V_LANE}")
    e(f"v_lshl_add_u32 v{a}, v{b}, 3, v{a}")
    for s in range(3):
        e(f"v_add_u32 v{V_WTR + s}, {PHYS[s]}, v{a}")
    e(f"v_bfe_u32 v{a}, v{V_LANE}, 3, 2")
    e(f"v_mul_u32_u24 v{a}, 1040, v{a}")
    e(f"v_and_b32 v{b}, 7, v{V_LANE}")
    e(f"v_lshl_add_u32 v{a}, v{b}, 7, v{a}")
    e(f"v_lshrrev_b32 v{b}, 5, v{V_LANE}")
    e(f"v_lshl_add_u32 v{a}, v{b}, 4, v{a}")
    e(f"s_mul_i32 s{T[0]}, s{S_WAVE}, 4160")
    e(f"v_add_u32 v{a}, s{T[0]}, v{a}")
    for s in range(3):
        e(f"v_add_u32 v{V_XRD + s}, {PHYS[s] + 24576}, v{a}")
    c0 = -2.0 * math.sqrt(2.0 / math.pi) * math.log2(math.e)
    e(f"v_mov_b32 v{V_C0}, {f32hex(c0)}")
    e(f"s_mov_b32 s{S_C1}, {f32hex(c0 * 0.044715)}")
    e(f"s_lshl_b32 s{T[0]}, s{S_GI}, 2")
    e(f"s_add_u32 s{T[0]}, s{T[0]}, s{S_WAVE}")
    e(f"s_mul_i32 s{T[1]}, s{T[0]}, 43")
    e(f"s_mul_i32 s{T[2]}, s{S_GJ}, 3")
    e(f"s_add_u32 s{T[1]}, s{T[1]}, s{T[2]}")
    e(f"s_lshl_b32 s{S_HOFF}, s{T[1]}, 11")
    e(f"s_lshr_b32 s{T[1]}, s{T[0]}, 1")
    e(f"s_lshl_b32 s{T[1]}, s{T[1]}, 9")
    e(f"s_and_b32 s{T[0]}, s{T[0]}, 1")
    e(f"s_lshl_b32 s{T[2]}, s{S_GJ}, 1")
    e(f"s_add_u32 s{T[0]}, s{T[0]}, s{T[2]}")
    e(f"s_lshl_b32 s{T[0]}, s{T[0]}, 2")
    e(f"s_add_u32 s{T[0]}, s{T[0]}, s{T[1]}")
    e(f"s_add_u32 s{S_FHOFF}, s{T[0]}, {FL_H:#x}")
    wd_addr(e, 0)
    out_addr(e)


def conv_addr(e):
    a, b, c = TMP[0], TMP[1], TMP[2]
    e(f"s_lshr_b32 s{T[0]}, s{S_WAVE}, 1")
    e(f"s_and_b32 s{T[1]}, s{S_WAVE}, 1")
    e(f"v_and_b32 v{a}, 15, v{V_LANE}")
    e(f"v_lshrrev_b32 v{b}, 4, v{V_LANE}")
    e(f"v_lshlrev_b32 v{c}, 2, v{b}")
    e(f"v_sub_u32 v{c}, v{c}, v{a}")
    e(f"v_add_u32 v{c}, 63, v{c}")
    e(f"v_mul_u32_u24 v{c}, 80, v{c}")
    e(f"s_mul_i32 s{T[2]}, s{T[0]}, 6400")
    e(f"s_mul_i32 s{T[3]}, s{T[1]}, 160")
    e(f"s_add_u32 s{T[2]}, s{T[2]}, s{T[3]}")
    e(f"s_add_u32 s{T[2]}, s{T[2]}, {L_UR - 3840}")
    e(f"v_add_u32 v{V_F}, s{T[2]}, v{c}")
    e(f"v_add_u32 v{a}, 1, v{a}")
    e(f"v_and_b32 v{V_SHF}, 1, v{a}")
    e(f"v_lshlrev_b32 v{V_SHF}, 4, v{V_SHF}")
    e(f"v_bfe_u32 v{c}, v{a}, 1, 1")
    e(f"v_mul_u32_u24 v{c}, 6208, v{c}")
    e(f"v_and_b32 v{a}, 28, v{a}")
    e(f"v_lshl_add_u32 v{c}, v{a}, 1, v{c}")
    e(f"v_mul_u32_u24 v{b}, 384, v{b}")
    e(f"v_add_u32 v{c}, v{c}, v{b}")
    e(f"s_mul_i32 s{T[2]}, s{T[0]}, 12416")
    e(f"s_lshl_b32 s{T[3]}, s{T[1]}, 7")
    e(f"s_add_u32 s{T[2]}, s{T[2]}, s{T[3]}")
    e(f"s_add_u32 s{T[2]}, s{T[2]}, {L_HC}")
    e(f"v_add_u32 v{V_H}, s{T[2]}, v{c}")


def wd_addr(e, role):
    a, b, c = TMP[0], TMP[1], TMP[2]
    e(f"v_lshrrev_b32 v{a}, 3, v{V_LANE}")
    e(f"v_bfe_u32 v{b}, v{V_LANE}, 4, 1")
    e(f"v_lshlrev_b32 v{b}, 2, v{b}")
    e(f"v_and_b32 v{c}, 7, v{V_LANE}")
    e(f"v_xor_b32 v{c}, v{c}, v{b}")
    e(f"v_lshlrev_b32 v{c}, 4, v{c}")
    e(f"v_lshl_add_u32 v{c}, v{a}, 10, v{c}")
    e(f"s_lshl_b32 s{T[0]}, s{S_N2}, 7")
    e(f"v_add_u32 v{V_WDDMA}, s{T[0]}, v{c}")
    for m in range(1, 4):
        e(f"v_add_u32 v{V_WDDMA + m}, {m * (8192 - 1024)}, v{V_WDDMA}")
    e(f"s_lshl_b32 s{S_WDBASE}, s{S_WAVE}, 12")
    e(f"s_mov_b32 s{T[1]}, s{S_WDBASE}")
    e(f"v_lshrrev_b32 v{a}, 5, v{V_LANE}")
    e(f"v_lshlrev_b32 v{a}, 9, v{a}")
    e(f"v_bfe_u32 v{b}, v{V_LANE}, 2, 2")
    e(f"v_lshl_add_u32 v{a}, v{b}, 7, v{a}")
    e(f"v_bfe_u32 v{b}, v{V_LANE}, 4, 1")
    e(f"v_lshl_add_u32 v{a}, v{b}, 5, v{a}")
    e(f"v_and_b32 v{b}, 3, v{V_LANE}")
    e(f"v_lshl_add_u32 v{a}, v{b}, 3, v{a}")
    e(f"v_bfe_u32 v{b}, v{V_LANE}, 3, 1")
    e(f"v_lshl_add_u32 v{a}, v{b}, 6, v{a}")
    e(f"v_add_u32 v{V_WDTR}, s{T[1]}, v{a}")
    e(f"v_xor_b32 v{b}, 64, v{a}")
    e(f"v_add_u32 v{V_WDTR + 1}, s{T[1]}, v{b}")
    e(f"s_mul_i32 s{T[0]}, s{S_WAVE}, {3 * 2048}")
    for m in range(11):
        if m <= 2:
            e(f"s_add_u32 s{S_FT + m}, s{T[0]}, {12 * m * 2048}")
        elif m == 3:
            e(f"s_add_u32 s{S_FT + m}, s{T[0]}, {36 * 2048}")
            e(f"s_cmp_eq_u32 s{S_WAVE}, 3")
            e(f"s_cselect_b32 s{S_FT + m}, {1 * 2048}, s{S_FT + m}")
        elif m <= 6:
            e(f"s_add_u32 s{S_FT + m}, s{T[0]}, {(3 * (4 * m - 15) + 1) * 2048}")
        elif m == 7:
            e(f"s_add_u32 s{S_FT + m}, s{T[0]}, {(-1 * 2048) & 0xffffffff:#x}")
            e(f"s_cmp_eq_u32 s{S_WAVE}, 0")
            e(f"s_cselect_b32 s{S_FT + m}, {40 * 2048}, s{S_FT + m}")
        else:
            e(f"s_add_u32 s{S_FT + m}, s{T[0]}, {(3 * (4 * m - 29) + 2) * 2048}")
    e(f"s_mul_i32 s{S_XM0 if role == 0 else S_HOFF}, s{S_I2}, {86 * 2048}")


def w_tr(e, T_, idx):
    ft, mat = idx >> 1, idx & 1
    n, ts = T_ // 4, T_ % 4
    base = mat * 12288 + ts * 3072 + ft * 64
    vb = V_WTR + n % 3
    d = A_WF + 24 * (T_ % 2) + 4 * idx
    return [e.lg(f"ds_read_b64_tr_b16 {ar(d, 2)}, v{vb} offset:{base}"),
            e.lg(f"ds_read_b64_tr_b16 {ar(d + 2, 2)}, v{vb} offset:{base + 768}")]


def x_fr(e, T_):
    n, ts = T_ // 4, T_ % 4
    return e.lg(f"ds_read_b128 {ar(A_XF + 4 * (T_ % 2))}, v{V_XRD + n % 3} offset:{ts * 32}")


def g1_epilogue(e, ftl, mids=()):
    A = ACC_OF[ftl]
    e(f"s_mul_i32 s{T[6]}, s{S_GJ}, 3")
    e(f"s_cmp_lt_u32 s{T[6]}, {43 - ftl}")
    e(f"s_cselect_b32 s{S_HST + 2}, {WS_SIZE:#x}, 0")
    e(f"s_add_u32 s{T[7]}, s{S_HOFF}, {ftl * 2048}")
    toks = []
    for half in range(2):
        O = V_ET + 8 + 4 * half
        for pr in range(4):
            r = 8 * half + 2 * pr
            B = V_ET + 4 * (pr & 1)
            g0, g1, u0, u1 = A + r, A + r + 1, A + 16 + r, A + 16 + r + 1
            t0, t1, tp, tq = B, B + 1, B + 2, B + 3
            if CFG["EMU_G1"]:
                round2(e, g0, g1, tp)
            e(f"v_mul_f32 v{t0}, v{g0}, v{g0}")
            e(f"v_mul_f32 v{t1}, v{g1}, v{g1}")
            e(f"v_fma_f32 v{t0}, v{t0}, s{S_C1}, v{V_C0}")
            e(f"v_fma_f32 v{t1}, v{t1}, s{S_C1}, v{V_C0}")
            e(f"v_mul_f32 v{t0}, v{t0}, v{g0}")
            e(f"v_mul_f32 v{t1}, v{t1}, v{g1}")
            e(f"v_exp_f32 v{t0}, v{t0}")
            e(f"v_exp_f32 v{t1}, v{t1}")
            if CFG["EMU_G1"]:
                e(f"v_cvt_pk_bf16_f32 v{tq}, v{u0}, v{u1}")
            else:
                e(f"v_mul_f32 v{u0}, v{u0}, v{g0}")
            e(f"v_add_f32 v{t0}, 1.0, v{t0}")
            e(f"v_add_f32 v{t1}, 1.0, v{t1}")
            e(f"v_rcp_f32 v{t0}, v{t0}")
            e(f"v_rcp_f32 v{t1}, v{t1}")
            if CFG["EMU_G1"]:
                e(f"v_lshlrev_b32 v{u0}, 16, v{tq}")
                e(f"v_mul_f32 v{t0}, v{t0}, v{g0}")
                e(f"v_mul_f32 v{t1}, v{t1}, v{g1}")
                e(f"v_and_b32 v{u1}, s{S_MASKHI}, v{tq}")
                round2(e, t0, t1, tp)
            else:
                e(f"v_mul_f32 v{u1}, v{u1}, v{g1}")
            e(f"v_mul_f32 v{t0}, v{t0}, v{u0}")
            e(f"v_mul_f32 v{t1}, v{t1}, v{u1}")
            e(f"v_cvt_pk_bf16_f32 v{O + pr}, v{t0}, v{t1}")
        toks.append(e.vm(
            f"buffer_store_dwordx4 {vr(O)}, v{V_L16}, {srd(S_HST)}, s{T[7]} offen offset:{half * 1024} sc1"))
        if half < len(mids) and mids[half] is not None:
            mids[half](e)
    return toks


def h_flag(e, ftl, toks):
    e.wait(vm=toks)
    e(f"s_add_u32 s{T[0]}, s{S_FHOFF}, {ftl * 128}")
    return flag_store(e, T[0])


def g_path(e):
    GWR, GWU, G, TB = 128, 132, 140, 144
    gw = e.vm(f"buffer_load_dwordx4 {vr(GWR)}, v{V_L16}, {srd(S_GW)}, 0 offen")
    e(f"v_mov_b32 v{G}, 0")
    X0 = 32
    for half in range(2):
        xt = []
        for r in range(16):
            e(f"s_add_u32 s{T[1]}, s{S_XSOFF}, {(16 * half + r) * 1024}")
            xt.append(e.vm(f"buffer_load_dwordx4 {vr(X0 + 4 * r)}, v{V_L16}, {srd(S_X)}, s{T[1]} offen"))
        if half == 0:
            e.wait(vm=gw)
            for q in range(8):
                unpack(e, GWU + q, GWR + (q >> 1), q & 1)
        for r4 in range(0, 16, 4):
            e.wait(vm=xt[r4 + 3])
            accs = []
            for r in range(r4, r4 + 4):
                X = X0 + 4 * r
                tb = TB + 4 * (r - r4)
                acc = tb + 3
                for q in range(4):
                    e(f"v_lshlrev_b32 v{tb}, 16, v{X + q}")
                    e(f"v_and_b32 v{tb + 1}, s{S_MASKHI}, v{X + q}")
                    e(f"v_mul_f32 v{tb}, v{tb}, v{GWU + 2 * q}")
                    e(f"v_mul_f32 v{tb + 1}, v{tb + 1}, v{GWU + 1 + 2 * q}")
                    e(f"v_cvt_pk_bf16_f32 v{tb + 2}, v{tb}, v{tb + 1}")
                    e(f"v_lshlrev_b32 v{tb}, 16, v{tb + 2}")
                    e(f"v_and_b32 v{tb + 1}, s{S_MASKHI}, v{tb + 2}")
                    if q == 0:
                        e(f"v_add_f32 v{acc}, v{tb}, v{tb + 1}")
                    else:
                        e(f"v_add_f32 v{tb}, v{tb}, v{tb + 1}")
                        e(f"v_add_f32 v{acc}, v{acc}, v{tb}")
                accs.append(acc)
            for mod in ("row_shr:1 row_mask:0xf bank_mask:0xf bound_ctrl:0",
                        "row_shr:2 row_mask:0xf bank_mask:0xf bound_ctrl:0",
                        "row_shr:4 row_mask:0xf bank_mask:0xf bound_ctrl:0",
                        "row_shr:8 row_mask:0xf bank_mask:0xf bound_ctrl:0",
                        "row_bcast:15 row_mask:0xa bank_mask:0xf",
                        "row_bcast:31 row_mask:0xc bank_mask:0xf"):
                for acc in accs:
                    e(f"v_add_f32_dpp v{acc}, v{acc}, v{acc} {mod}")
            for i, acc in enumerate(accs):
                e(f"v_readlane_b32 s{T[2 + i]}, v{acc}, 63")
            for i, acc in enumerate(accs):
                e(f"v_writelane_b32 v{G}, s{T[2 + i]}, {16 * half + r4 + i}")
    a, b, c = TB, TB + 1, TB + 2
    e(f"v_cvt_pk_bf16_f32 v{a}, v{G}, v{G}")
    e(f"v_lshlrev_b32 v{a}, 16, v{a}")
    e(f"v_mul_f32 v{a}, {f32hex(-math.log2(math.e))}, v{a}")
    e(f"v_exp_f32 v{a}, v{a}")
    e(f"v_add_f32 v{a}, 1.0, v{a}")
    e(f"v_rcp_f32 v{a}, v{a}")
    e(f"v_cvt_pk_bf16_f32 v{a}, v{a}, v{a}")
    e(f"v_lshlrev_b32 v{a}, 16, v{a}")
    e(f"v_sub_f32 v{b}, 1.0, v{a}")
    e(f"v_cvt_pk_bf16_f32 v{a}, v{a}, v{b}")
    e(f"v_lshlrev_b32 v{c}, 2, v{V_LANE}")
    e(f"s_lshl_b32 s{T[0]}, s{S_GI}, 9")
    e(f"s_lshl_b32 s{T[1]}, s{S_WAVE}, 7")
    e(f"s_add_u32 s{T[0]}, s{T[0]}, s{T[1]}")
    e(f"s_add_u32 s{T[0]}, s{T[0]}, {WS_G:#x}")
    e("s_mov_b64 exec, 0xffffffff")
    st = e.vm(f"buffer_store_dword v{a}, v{c}, {srd(S_WS)}, s{T[0]} offen sc1")
    e("s_mov_b64 exec, -1")
    return st


def conv_hraw(e, p, nn):
    d = C_H + 20 * p + 4 * (nn % 5)
    off = p * 1536 + 16 * nn
    return [e.lg(f"ds_read_b64 {vr(d, 2)}, v{V_H} offset:{off}"),
            e.lg(f"ds_read_b64 {vr(d + 2, 2)}, v{V_H} offset:{off + 8}")]


def conv_align(e, p, nn):
    d = C_H + 20 * p + 4 * (nn % 5)
    nx = C_H + 20 * p + 4 * ((nn + 1) % 5)
    for k in range(3):
        e(f"v_alignbit_b32 v{d + k}, v{d + k + 1}, v{d + k}, v{V_SHF}")
    e(f"v_alignbit_b32 v{d + 3}, v{nx}, v{d + 3}, v{V_SHF}")


def conv_f(e, tt, delta):
    d = A_F + 16 * (tt % 2) + 4 * delta
    off = 1280 * (3 - delta) + 80 * (tt >> 2) + 16 * (tt & 3)
    return e.lg(f"ds_read_b128 {ar(d)}, v{V_F} offset:{off}")


def conv_epilogue(e):
    a, b, c, u = TMP[0], TMP[1], TMP[2], TMP[3]
    OA, OB, OC, OU = V_ET, V_ET + 1, V_ET + 2, V_ET + 3
    e(f"s_xor_b32 s{T[2]}, s{S_WAVE}, 1")
    e(f"s_lshl_b32 s{T[8]}, s{S_WAVE}, 12")
    e(f"s_add_u32 s{T[8]}, s{T[8]}, {L_EX}")
    e(f"s_lshl_b32 s{T[1]}, s{T[2]}, 12")
    e(f"s_add_u32 s{T[1]}, s{T[1]}, {L_EX}")
    e(f"v_add_u32 v{OA}, s{T[8]}, v{V_L16}")
    e(f"v_add_u32 v{OB}, s{T[1]}, v{V_L16}")
    e(f"s_and_b32 s{T[3]}, s{S_WAVE}, 1")
    A0, A1 = C_ACC, C_ACC + 16
    e(f"v_and_b32 v{OC}, 15, v{V_LANE}")
    e(f"v_sub_u32 v{OU}, 47, v{OC}")
    e(f"v_mul_u32_u24 v{OU}, 80, v{OU}")
    e(f"v_lshrrev_b32 v{TMP[4]}, 4, v{V_LANE}")
    e(f"v_lshlrev_b32 v{TMP[5]}, 3, v{TMP[4]}")
    e(f"v_sub_u32 v{OU}, v{OU}, v{TMP[5]}")
    e(f"s_lshr_b32 s{T[4]}, s{S_WAVE}, 1")
    e(f"s_mul_i32 s{T[4]}, s{T[4]}, 6400")
    e(f"s_mul_i32 s{T[5]}, s{T[3]}, 2560")
    e(f"s_sub_u32 s{T[4]}, s{T[4]}, s{T[5]}")
    e(f"s_add_u32 s{T[4]}, s{T[4]}, {L_UR + 24}")
    e(f"v_add_u32 v{OU}, s{T[4]}, v{OU}")
    e(f"v_lshlrev_b32 v{OC}, 6, v{OC}")
    e(f"v_add_u32 v{OC}, v{OC}, v{TMP[5]}")
    e(f"v_add_u32 v{OC}, s{T[8]}, v{OC}")
    e(f"s_lshl_b32 s{T[4]}, s{S_CH}, 12")
    e(f"s_lshl_b32 s{T[5]}, s{T[3]}, 11")
    e(f"s_add_u32 s{T[4]}, s{T[4]}, s{T[5]}")
    e(f"s_add_u32 s{T[4]}, s{T[4]}, {WS_Y2:#x}")
    e(f"s_cmp_eq_u32 s{T[3]}, 0")
    e("s_cbranch_scc1 L_cv_noswap")
    for q in range(16):
        e(f"v_swap_b32 v{A0 + q}, v{A1 + q}")
    e.label("L_cv_noswap")
    e("s_nop 7")
    wr = [e.lg(f"ds_write_b128 v{OB}, {vr(A1 + 4 * q)} offset:{q * 1024}") for q in range(4)]
    RX, UU, t = C_H, C_H + 16, C_H + 24
    ur = {}
    for jj in range(2):
        for bb in range(2):
            ur[(jj, bb)] = e.lg(
                f"ds_read_b64 {vr(UU + 4 * jj + 2 * bb, 2)}, v{OU} offset:{(1 - jj) * 1280 + (1 - bb) * 32}")
    e.wait(lg=wr)
    e(f"s_add_u32 s{T[9]}, s{T[2]}, 4")
    lds_set(e, f"s{T[9]}")
    e(f"s_add_u32 s{T[9]}, s{S_WAVE}, 4")
    lds_wait1(e, T[9])
    rd = [e.lg(f"ds_read_b128 {vr(RX + 4 * q)}, v{OA} offset:{q * 1024}") for q in range(4)]
    outs = []
    for q in range(4):
        jj, bb = q >> 1, q & 1
        e.wait(lg=[rd[q], ur[(jj, bb)]])
        A = A0 + 4 * q
        U = UU + 4 * jj + 2 * bb
        for r in range(4):
            e(f"v_add_f32 v{A + r}, v{A + r}, v{RX + 4 * q + r}")
        round2(e, A, A + 1, t + 4)
        round2(e, A + 2, A + 3, t + 5)
        unpack(e, t, U + 1, 1)
        unpack(e, t + 1, U + 1, 0)
        unpack(e, t + 2, U, 1)
        unpack(e, t + 3, U, 0)
        for r in range(4):
            e(f"v_mul_f32 v{t + r}, s{S_DF}, v{t + r}")
        round2(e, t, t + 1, t + 4)
        round2(e, t + 2, t + 3, t + 5)
        for r in range(4):
            e(f"v_add_f32 v{A + r}, v{A + r}, v{t + r}")
        O = A1 + 2 * q
        e(f"v_cvt_pk_bf16_f32 v{O}, v{A}, v{A + 1}")
        e(f"v_cvt_pk_bf16_f32 v{O + 1}, v{A + 2}, v{A + 3}")
        outs.append(O)
    e.wait(lg=rd)
    for q in range(4):
        e.lg(f"ds_write_b64 v{OC}, {vr(outs[q], 2)} offset:{(q >> 1) * 1024 + (q & 1) * 32}")
    r0 = e.lg(f"ds_read_b128 {vr(RX)}, v{OA}")
    r1 = e.lg(f"ds_read_b128 {vr(RX + 4)}, v{OA} offset:1024")
    e.wait(lg=[r0, r1])
    return [e.vm(f"buffer_store_dwordx4 {vr(RX)}, v{V_L16}, {srd(S_WS)}, s{T[4]} offen sc1"),
            e.vm(f"buffer_store_dwordx4 {vr(RX + 4)}, v{V_L16}, {srd(S_WS)}, s{T[4]} offen offset:1024 sc1")]


def y_flag(e, toks):
    e.wait(vm=toks)
    e(f"s_lshl_b32 s{T[0]}, s{S_U}, 4")
    e(f"s_lshl_b32 s{T[1]}, s{S_WAVE}, 2")
    e(f"s_add_u32 s{T[0]}, s{T[0]}, s{T[1]}")
    e(f"s_add_u32 s{T[0]}, s{T[0]}, {FL_Y:#x}")
    return flag_store(e, T[0])


def y_stage(e):
    a, b, c, d = TMP[0], TMP[1], TMP[2], TMP[3]
    YD, YA = 96, 104
    e(f"s_lshl_b32 s{T[13]}, s{S_N2}, 9")
    e(f"s_add_u32 s{T[13]}, s{T[13]}, {FL_Y:#x}")
    e(f"v_add_u32 v{V_PA}, s{T[13]}, v{V_L16}")
    e(f"s_lshr_b32 s{T[13]}, s{S_I2}, 1")
    e(f"s_lshl_b32 s{T[13]}, s{T[13]}, 4")
    e(f"s_add_u32 s{T[13]}, s{T[13]}, {FL_G:#x}")
    e(f"v_mov_b32 v{a}, s{T[13]}")
    e(f"v_cmp_gt_u32 vcc, 32, v{V_LANE}")
    e(f"s_mov_b32 s{T[13]}, 0")
    e(f"v_cndmask_b32 v{V_PA}, v{a}, v{V_PA}, vcc")
    e(f"v_lshrrev_b32 v{b}, 3, v0")
    e(f"v_and_b32 v{d}, 7, v0")
    e(f"v_lshlrev_b32 v{a}, 4, v{d}")
    e(f"v_lshl_add_u32 v{YA}, v{b}, 12, v{a}")
    e(f"v_lshrrev_b32 v{c}, 6, v0")
    e(f"v_xor_b32 v{c}, v{c}, v{d}")
    e(f"v_lshlrev_b32 v{c}, 4, v{c}")
    e(f"v_lshl_add_u32 v{c}, v{b}, 7, v{c}")
    e(f"v_xor_b32 v{YA + 2}, 64, v{c}")
    e(f"v_add_u32 v{YA + 1}, {L_YT}, v{c}")
    e(f"v_add_u32 v{YA + 2}, {L_YT}, v{YA + 2}")
    e(f"s_lshl_b32 s{T[2]}, s{S_N2}, 18")
    e(f"s_lshl_b32 s{T[3]}, s{S_I2}, 7")
    e(f"s_add_u32 s{T[2]}, s{T[2]}, s{T[3]}")
    e(f"s_add_u32 s{T[2]}, s{T[2]}, {WS_Y2:#x}")
    e(f"s_add_u32 s{T[3]}, s{T[2]}, {32 * 4096:#x}")
    poll_one(e, V_PA, T[13], 15, 4)
    y0 = e.vm(f"buffer_load_dwordx4 {vr(YD)}, v{YA}, {srd(S_WS)}, s{T[2]} offen sc1")
    y1 = e.vm(f"buffer_load_dwordx4 {vr(YD + 4)}, v{YA}, {srd(S_WS)}, s{T[3]} offen sc1")
    e(f"v_lshlrev_b32 v{a}, 2, v{V_LANE}")
    e(f"s_lshl_b32 s{T[2]}, s{S_I2}, 8")
    e(f"s_add_u32 s{T[2]}, s{T[2]}, {WS_G:#x}")
    g0 = e.vm(f"buffer_load_dword v{YA + 3}, v{a}, {srd(S_WS)}, s{T[2]} offen sc1")
    e(f"v_add_u32 v{a}, {L_GT}, v{a}")
    e.wait(vm=[y0, y1, g0])
    e.lg(f"ds_write_b32 v{a}, v{YA + 3}")
    e.lg(f"ds_write_b128 v{YA + 1}, {vr(YD)}")
    e.lg(f"ds_write_b128 v{YA + 2}, {vr(YD + 4)} offset:4096")


B_Q, B_G = 140, 144 + 8


def qg_loads(e):
    a = TMP[0]
    e(f"v_lshrrev_b32 v{a}, 3, v0")
    e(f"v_lshlrev_b32 v{a}, 2, v{a}")
    e(f"s_lshl_b32 s{T[0]}, s{S_I2}, 8")
    e(f"s_add_u32 s{T[0]}, s{T[0]}, {WS_G:#x}")
    return [e.vm(f"buffer_load_dwordx4 {vr(BQ)}, v{V_OUTO}, {srd(S_X)}, 0 offen")]


BQ, BG = 28, 12


def blend(e, qgt):
    a, b, c, d = TMP[0], TMP[1], TMP[2], TMP[3]
    P, Y = 32, 96
    e(f"v_lshrrev_b32 v{b}, 3, v0")
    e(f"v_and_b32 v{d}, 7, v0")
    e(f"v_mul_u32_u24 v{a}, 272, v{b}")
    e(f"v_lshl_add_u32 v{a}, v{d}, 5, v{a}")
    e(f"v_add_u32 v{TMP[4]}, {L_P2L}, v{a}")
    e(f"v_lshrrev_b32 v{c}, 6, v0")
    e(f"v_xor_b32 v{c}, v{c}, v{d}")
    e(f"v_lshlrev_b32 v{c}, 4, v{c}")
    e(f"v_lshl_add_u32 v{c}, v{d}, 10, v{c}")
    e(f"v_lshlrev_b32 v{TMP[5]}, 2, v{b}")
    e(f"v_add_u32 v{TMP[5]}, {L_GT}, v{TMP[5]}")
    e(f"v_and_b32 v{b}, 7, v{b}")
    e(f"v_lshl_add_u32 v{c}, v{b}, 1, v{c}")
    e(f"v_add_u32 v{c}, {L_YT}, v{c}")
    e.wait_all(vm=False, lg=True)
    for q in range(8):
        e(f"v_mov_b32 v{Y + q}, 0")
    e("s_barrier")
    gr = e.lg(f"ds_read_b32 v{BG}, v{TMP[5]}")
    rd = []
    for wv in range(4):
        for h in range(2):
            rd.append(e.lg(f"ds_read_b128 {vr(P + 8 * wv + 4 * h)}, v{a} offset:{wv * 17408 + h * 16}"))
    for wv in range(4):
        for h in range(2):
            rd.append(e.lg(f"ds_read_b128 {vr(P + 32 + 8 * wv + 4 * h)}, v{TMP[4]} offset:{wv * 17408 + h * 16}"))
    yr = [e.lg(f"ds_read_u16_d16_hi v{Y + cc}, v{c} offset:{cc * 128}") for cc in range(8)]
    e.wait(vm=qgt, lg=gr)
    e(f"v_lshlrev_b32 v104, 16, v{BG}")
    e(f"v_and_b32 v105, s{S_MASKHI}, v{BG}")
    for pr in range(4):
        unpack(e, 112 + 2 * pr, BQ + pr, 0)
        unpack(e, 113 + 2 * pr, BQ + pr, 1)
    for k in range(4):
        e.wait(lg=rd[4 * k:4 * k + 4])
        for r in range(8):
            e(f"v_add_f32 v{P + 16 * k + r}, v{P + 16 * k + r}, v{P + 16 * k + 8 + r}")
    for r in range(8):
        e(f"v_add_f32 v{P + r}, v{P + r}, v{P + 16 + r}")
        e(f"v_add_f32 v{P + 32 + r}, v{P + 32 + r}, v{P + 48 + r}")
    for r in range(8):
        e(f"v_add_f32 v{P + r}, v{P + r}, v{P + 32 + r}")
    e.wait(lg=yr)
    for pr in range(4):
        b0, b1 = P + 2 * pr, P + 2 * pr + 1
        q0, q1, tp, tq = 112 + 2 * pr, 113 + 2 * pr, 106 + 2 * (pr & 1), 107 + 2 * (pr & 1)
        round2(e, b0, b1, tp)
        e(f"v_mul_f32 v{q0}, v{q0}, v{Y + 2 * pr}")
        e(f"v_mul_f32 v{q1}, v{q1}, v{Y + 2 * pr + 1}")
        e(f"v_mul_f32 v{b0}, v{b0}, v105")
        e(f"v_mul_f32 v{b1}, v{b1}, v105")
        round2(e, q0, q1, tq)
        e(f"v_mul_f32 v{q0}, v{q0}, v104")
        e(f"v_mul_f32 v{q1}, v{q1}, v104")
        round2(e, b0, b1, tp)
        round2(e, q0, q1, tq)
        e(f"v_add_f32 v{b0}, v{b0}, v{q0}")
        e(f"v_add_f32 v{b1}, v{b1}, v{q1}")
        e(f"v_cvt_pk_bf16_f32 v{P + 16 + pr}, v{b0}, v{b1}")
    e.vm(f"buffer_store_dwordx4 {vr(P + 16)}, v{V_OUTO}, {srd(S_OUT)}, 0 offen")


def c_body():
    e = Em()
    if CFG["CPRIO"]:
        e(f"s_setprio {CFG['CPRIO']}")
    ptoks, mt = prep_a(e)
    stamp(e, 1)
    e(f"s_cmp_eq_u32 s{S_GJ}, 15")
    e("s_cbranch_scc1 L_c_g")
    if CFG["PINLINE"]:
        pc, pwr = prep_compute(ptoks)
        e.extend(pc)
        misc_use(e, mt, False)
        prep_rb_addr(e)
        e.wait(lg=pwr)
    e("s_barrier")
    if CFG["GPRIO"]:
        e(f"s_setprio {CFG['GPRIO']}")
    NK = 32
    gaps = [Em() for _ in range(6 * NK)]
    trtok, xf = {}, {}
    xf[0] = x_fr(e, 0)
    for idx in range(6):
        trtok[(0, idx)] = w_tr(e, 0, idx)
    stamp(e, 2)
    if CFG["PINLINE"]:
        PB = -1
        prd = prep_readback(gaps[0])
        pst = prep_store(gaps[4], prd)
        prep_flag(gaps[6 * 8 + 2], pst)
    else:
        pc, pwr = prep_compute(ptoks)
        PB = CFG["PB"]
        spread(gaps, pc.L, 6 * CFG["PC0"], 6 * PB - 2)
        prep_rb_addr(gaps[6 * PB])
        prd = prep_readback(gaps[6 * PB + 1])
        misc_use(gaps[6 * PB + 3], mt, False)
        pst = prep_store(gaps[6 * PB + 5], prd)
        prep_flag(gaps[6 * (PB + 7) + 2], pst)
    for T_ in range(1, NK):
        xf[T_] = x_fr(gaps[6 * (T_ - 1)], T_)
        for idx in range(6):
            trtok[(T_, idx)] = w_tr(gaps[6 * (T_ - 1) + idx], T_, idx)
    for T_ in range(NK):
        if T_ in (8, 16, 24):
            stamp(e, 2 + T_ // 8)
        last = (T_ % 4 == 3) and T_ < NK - 5
        if T_ == 27 and CFG["S7F"]:
            lds_wait4(e, 32)
        if last:
            e.wait(lg=[t for idx in range(6) for t in trtok[(T_, idx)]] + [xf[T_]] + (pwr if T_ == PB else []))
            e("s_barrier")
        else:
            e.wait(lg=trtok[(T_, 0)] + trtok[(T_, 1)] + [xf[T_]])
        for idx in range(6):
            ft, mat = idx >> 1, idx & 1
            A = ACC_OF[ft] + 16 * mat
            if idx in (2, 4):
                e.wait(lg=trtok[(T_, idx)] + trtok[(T_, idx + 1)])
            c = "0" if T_ == 0 else vr(A, 16)
            e(f"v_mfma_f32_32x32x16_bf16 {vr(A, 16)}, {ar(A_WF + 24 * (T_ % 2) + 4 * idx)}, "
              f"{ar(A_XF + 4 * (T_ % 2))}, {c}")
            e.extend(gaps[6 * T_ + idx])
    ge = Em()
    ge.label("L_c_g")
    ge.wait_all()
    gpc, gwr = prep_compute([])
    ge.extend(gpc)
    misc_use(ge, [], False)
    prep_rb_addr(ge)
    ge.wait_all()
    ge("s_barrier")
    gps = prep_store(ge, prep_readback(ge))
    ge(f"s_add_u32 s{T[9]}, s{S_WAVE}, 8")
    lds_set(ge, f"s{T[9]}")
    prep_flag(ge, gps)
    for ftl in range(3):
        h_flag(ge, ftl, [])
    g_path(ge)
    ge.wait_all()
    ge(f"s_lshl_b32 s{T[0]}, s{S_GI}, 4")
    ge(f"s_lshl_b32 s{T[1]}, s{S_WAVE}, 2")
    ge(f"s_add_u32 s{T[0]}, s{T[0]}, s{T[1]}")
    ge(f"s_add_u32 s{T[0]}, s{T[0]}, {FL_G:#x}")
    flag_store(ge, T[0])
    ge.wait_all()
    ge("s_branch L_c_join2")
    e.L.append(("SUB", ge))
    e.label("L_c_join")
    stamp(e, 6)
    e(f"s_add_u32 s{T[9]}, s{S_WAVE}, 8")
    lds_set(e, f"s{T[9]}")
    ht, wtr, wdt, hl = {}, {}, {}, {}
    if CFG["EPRIO"]:
        e(f"s_setprio {CFG['EPRIO']}")
    ht[0] = g1_epilogue(e, 0)
    f0 = lambda em: h_flag(em, 0, ht[0])
    f1 = lambda em: h_flag(em, 1, ht[1])
    ht[1] = g1_epilogue(e, 1, mids=(None, f0) if CFG["FLATE"] else (f0,))
    stamp(e, 7)
    ht[2] = g1_epilogue(e, 2, mids=(None, f1) if CFG["FLATE"] else (f1,))
    if CFG["EPRIO"]:
        e("s_setprio 0")
    e.label("L_c_join2")
    stamp(e, 8)
    e(f"s_add_u32 s{T[9]}, s{S_WAVE}, 24")
    lds_wait1(e, T[9])
    for m in range(5):
        wtr[m] = wd_tr(e, m, CW_SET[m])
    h_flag(e, 2, ht[2])
    h_poll(e, 0)
    stamp(e, 9)
    for m in range(3):
        hl[m] = h_loads(e, m, CH_SET[m], S_XM0)
    for n in (5, 6):
        wdt[n] = wd_dma(e, n, n - 5)
    stamp(e, 10)
    h_poll(e, 1)
    for m in range(3, 5):
        hl[m] = h_loads(e, m, CH_SET[m], S_XM0)
    stamp(e, 11)
    for m in range(7):
        g2_slot(e, m == 0, CW_SET[m % 5], CH_SET[m % 5], hl[m], wtr[m], "a", 0)
        n = m + 5
        if n < 7:
            hl[n] = h_loads(e, n, CH_SET[n % 5], S_XM0)
            e.wait(vm=wdt[n])
            wtr[n] = wd_tr(e, n % 5, CW_SET[n % 5])
        if m == 2:
            e.wait(lg=wtr[6])
            e(f"s_add_u32 s{T[9]}, s{S_WAVE}, 20")
            lds_set(e, f"s{T[9]}")
    stamp(e, 12)
    qgt = qg_loads(e)
    lds_wait4(e, 20)
    e(f"s_mul_i32 s{T[9]}, s{S_WAVE}, 17408")
    partials(e, f"s{T[9]}", "a", 0)
    lds_wait4(e, 28)
    stamp(e, 13)
    y_stage(e)
    stamp(e, 14)
    if CFG["SHAREB"]:
        e(f"s_mov_b32 s{S_GJ}, 0")
        e("s_branch L_blend")
        return e
    blend(e, qgt)
    stamp(e, 15)
    e("s_branch L_fin")
    return e


def l_addr(e):
    a, b, c = TMP[0], TMP[1], TMP[2]
    e(f"s_mov_b32 s{T[0]}, 0x5556")
    for i in range(3):
        e(f"v_add_u32 v{a}, {64 * i}, v{V_LANE}")
        e(f"v_mul_u32_u24 v{b}, s{T[0]}, v{a}")
        e(f"v_lshrrev_b32 v{b}, 18, v{b}")
        e(f"v_mul_u32_u24 v{c}, 12, v{b}")
        e(f"v_sub_u32 v{a}, v{a}, v{c}")
        e(f"v_lshlrev_b32 v{a}, 4, v{a}")
        e(f"v_mul_u32_u24 v{b}, 2752, v{b}")
        e(f"v_add_u32 v{V_WDMA + i}, v{a}, v{b}")
        if i:
            e(f"v_subrev_u32 v{V_WDMA + i}, {1024 * i}, v{V_WDMA + i}")
    e(f"s_mul_i32 s{S_WSOFF}, s{S_GJ}, 192")
    e(f"s_mul_i32 s{T[0]}, s{S_WAVE}, {16 * 2752}")
    e(f"s_add_u32 s{S_WSOFF}, s{S_WSOFF}, s{T[0]}")
    e(f"v_lshrrev_b32 v{a}, 3, v{V_LANE}")
    e(f"v_lshlrev_b32 v{a}, 10, v{a}")
    e(f"v_and_b32 v{b}, 7, v{V_LANE}")
    e(f"v_lshl_add_u32 v{V_XDMA}, v{b}, 4, v{a}")
    for m in range(1, 4):
        e(f"v_add_u32 v{V_XDMA + m}, {m * (8192 - 1040)}, v{V_XDMA}")
    e(f"s_lshl_b32 s{S_RHO}, s{S_GJ}, 1")
    e(f"s_add_u32 s{S_RHO}, s{S_RHO}, s{S_GI}")
    e(f"s_and_b32 s{S_RHO}, s{S_RHO}, {CFG['ROT']}")
    e(f"s_mul_i32 s{S_WRB}, s{S_WAVE}, 3072")
    e(f"s_mul_i32 s{S_XM0}, s{S_WAVE}, 4160")


def l_addr2(e):
    a, b, c = TMP[0], TMP[1], TMP[2]
    e(f"v_and_b32 v{V_T}, 255, v0")
    e(f"s_and_b32 s{T[1]}, s{S_WAVE}, 1")
    e(f"s_lshl_b32 s{T[2]}, s{S_CH}, 12")
    e(f"s_lshl_b32 s{T[3]}, s{T[1]}, 2")
    e(f"s_add_u32 s{T[2]}, s{T[2]}, s{T[3]}")
    e(f"s_sub_u32 s{T[2]}, s{T[2]}, 64")
    e(f"s_mov_b32 s{T[1]}, 0xaaab")
    for phi in range(3):
        e(f"v_add_u32 v{a}, {phi * 64}, v{V_LANE}")
        e(f"v_mul_u32_u24 v{b}, s{T[1]}, v{a}")
        e(f"v_lshrrev_b32 v{b}, 20, v{b}")
        e(f"v_mul_u32_u24 v{c}, 24, v{b}")
        e(f"v_sub_u32 v{c}, v{a}, v{c}")
        e(f"v_lshlrev_b32 v{c}, 4, v{c}")
        e(f"v_lshl_add_u32 v{c}, v{b}, 8, v{c}")
        e(f"v_add_u32 v{V_HC + phi}, s{T[2]}, v{c}")
        e(f"v_add_u32 v{V_HC + 3 + phi}, 2048, v{V_HC + phi}")
    wd_addr(e, 1)
    out_addr(e)


def stage_dma(e, n):
    toks = []
    base = PHYS[n % 3]
    e(f"s_add_u32 s{T[4]}, s{S_RHO}, {n}")
    e(f"s_and_b32 s{T[4]}, s{T[4]}, 7")
    e(f"s_lshl_b32 s{T[5]}, s{T[4]}, 7")
    e(f"s_add_u32 s{T[5]}, s{T[5]}, s{S_XSOFF}")
    e(f"s_mul_i32 s{T[4]}, s{T[4]}, {64 * 2752}")
    e(f"s_add_u32 s{T[4]}, s{T[4]}, s{S_WSOFF}")
    e(f"s_add_u32 m0, s{S_XM0}, {base + 24576}")
    e("s_nop 0")
    for m in range(4):
        toks.append(e.vm(f"buffer_load_dwordx4 v{V_XDMA + m}, {srd(S_X)}, s{T[5]} offen offset:{m * 1040} lds"))
    for mat, sr in ((0, S_WG), (1, S_WU)):
        e(f"s_add_u32 m0, s{S_WRB}, {base + mat * 12288}")
        e("s_nop 0")
        for i in range(3):
            toks.append(e.vm(f"buffer_load_dwordx4 v{V_WDMA + i}, {srd(sr)}, s{T[4]} offen offset:{1024 * i} lds"))
    return toks


def hc_dma(e):
    toks = []
    e(f"s_mul_i32 s{T[8]}, s{S_WAVE}, 6208")
    for q in range(6):
        e(f"s_add_u32 m0, s{T[8]}, {L_HC + q * 1024}")
        e("s_nop 0")
        toks.append(e.vm(f"buffer_load_dwordx4 v{V_HC + q}, {srd(S_SSM)}, 0 offen lds"))
    e(f"s_lshl_b32 s{T[8]}, s{S_CH}, 12")
    e(f"v_mov_b32 v{TMP[4]}, 0")
    toks.append(e.vm(f"buffer_load_dword v{V_H01}, v{TMP[4]}, {srd(S_SSM)}, s{T[8]} offen"))
    return toks


def hc_fix(e, toks):
    a, b = TMP[4], TMP[5]
    e.wait(vm=toks)
    e(f"s_and_b32 s{T[8]}, s{S_WAVE}, 1")
    e(f"s_cmp_eq_u32 s{T[8]}, 1")
    e(f"s_cselect_b32 s{T[9]}, 15, 99")
    e(f"v_cmp_eq_u32 vcc, s{T[9]}, v{V_LANE}")
    e(f"s_mul_i32 s{T[8]}, s{S_WAVE}, 6208")
    e(f"s_add_u32 s{T[8]}, s{T[8]}, {L_HC}")
    e(f"v_cndmask_b32 v{a}, 0, v{V_H01}, vcc")
    e(f"v_lshlrev_b32 v{b}, 2, v{V_LANE}")
    e(f"v_add_u32 v{b}, s{T[8]}, v{b}")
    e("s_mov_b64 exec, 0xffff")
    t = e.lg(f"ds_write_b32 v{b}, v{a}")
    e("s_mov_b64 exec, -1")
    return t


K_D, K_A, K_Z = 144, 152, 156


def ur_zero(e):
    a = TMP[4]
    for q in range(4):
        e(f"v_mov_b32 v{K_Z + q}, 0")
    e(f"v_lshlrev_b32 v{a}, 4, v{V_T}")
    e(f"v_add_u32 v{a}, {L_UR}, v{a}")
    e(f"v_cmp_gt_u32 vcc, 80, v{V_T}")
    e(f"s_and_saveexec_b64 s[{S_EXSAVE}:{S_EXSAVE + 1}], vcc")
    e.lg(f"ds_write_b128 v{a}, {vr(K_Z)} offset:5120")
    e.lg(f"ds_write_b128 v{a}, {vr(K_Z)} offset:{6400 + 5120}")
    e("s_mov_b64 exec, -1")


def kv_poll_issue(e):
    e(f"v_and_b32 v{V_PA}, 31, v{V_LANE}")
    e(f"v_lshlrev_b32 v{V_PA}, 4, v{V_PA}")
    e(f"s_lshr_b32 s{T[10]}, s{S_U}, 5")
    e(f"s_lshl_b32 s{T[10]}, s{T[10]}, 9")
    e(f"s_add_u32 s{T[10]}, s{T[10]}, {FL_P:#x}")
    return None


def kv_load(e, tok, slp=None):
    poll_one(e, V_PA, T[10], 14, slp)
    e(f"v_lshlrev_b32 v{K_A}, 4, v{V_T}")
    e(f"s_lshl_b32 s{T[11]}, s{S_U}, 13")
    e(f"s_add_u32 s{T[11]}, s{T[11]}, {WS_KV:#x}")
    e(f"s_add_u32 s{T[12]}, s{T[11]}, 4096")
    return [e.vm(f"buffer_load_dwordx4 {vr(K_D)}, v{K_A}, {srd(S_WS)}, s{T[11]} offen sc1"),
            e.vm(f"buffer_load_dwordx4 {vr(K_D + 4)}, v{K_A}, {srd(S_WS)}, s{T[12]} offen sc1")]


def kv_write(e, toks):
    e(f"v_lshrrev_b32 v{K_A}, 2, v{V_T}")
    e(f"v_mul_u32_u24 v{K_A}, 80, v{K_A}")
    e(f"v_and_b32 v{K_A + 1}, 3, v{V_T}")
    e(f"v_lshl_add_u32 v{K_A}, v{K_A + 1}, 4, v{K_A}")
    e(f"v_add_u32 v{K_A}, {L_UR}, v{K_A}")
    e.wait(vm=toks)
    return [e.lg(f"ds_write_b128 v{K_A}, {vr(K_D)}"),
            e.lg(f"ds_write_b128 v{K_A}, {vr(K_D + 4)} offset:6400")]


def touch_loads(e):
    b = TMP[1]
    e(f"s_and_b32 s{T[0]}, s{S_I2}, 7")
    e(f"s_lshl_b32 s{T[0]}, s{T[0]}, 2")
    e(f"s_add_u32 s{T[0]}, s{T[0]}, s{S_WAVE}")
    e(f"s_lshl_b32 s{T[0]}, s{T[0]}, 16")
    e(f"s_lshl_b32 s{T[1]}, s{S_N2}, 7")
    e(f"s_add_u32 s{T[0]}, s{T[0]}, s{T[1]}")
    e(f"v_lshlrev_b32 v{b}, 10, v{V_LANE}")
    e.vm(f"buffer_load_dword v12, v{b}, {srd(S_WD)}, s{T[0]} offen")


def wd_dma(e, m, buf):
    toks = []
    e(f"s_add_u32 m0, s{S_WDBASE}, {buf * 16384}")
    e(f"s_lshl_b32 s{T[8]}, s{S_FT + m}, 4")
    for q in range(4):
        toks.append(e.vm(f"buffer_load_dwordx4 v{V_WDDMA + q}, {srd(S_WD)}, s{T[8]} offen offset:{q * 1024} lds"))
    return toks


def wd_tr(e, buf, kr):
    toks = []
    k, r0 = kr
    base, vb = buf * 16384, (V_WDTR, V_WDTR + 1)
    if buf == 4:
        e(f"v_add_u32 v{TMP[2]}, 0x10000, v{V_WDTR}")
        e(f"v_add_u32 v{TMP[3]}, 0x10000, v{V_WDTR + 1}")
        base, vb = 0, (TMP[2], TMP[3])
    for half in range(2):
        for dt in range(2):
            r = r0 + 4 * (half * 2 + dt)
            for q in range(2):
                toks.append(e.lg(
                    f"ds_read_b64_tr_b16 {rr(k, r + 2 * q, 2)}, v{vb[dt]} offset:{base + (16 * half + 8 * q) * 128}"))
    return toks


def h_poll(e, level):
    e(f"v_and_b32 v{V_PA}, 7, v{V_LANE}")
    e(f"v_lshlrev_b32 v{V_PA}, 4, v{V_PA}")
    e(f"s_lshl_b32 s{T[13]}, s{S_I2}, 9")
    e(f"s_add_u32 s{T[13]}, s{T[13]}, {FL_H + 128 * level:#x}")
    poll_one(e, V_PA, T[13], (12, 16, 13)[level], 4)


def h_loads(e, m, kr, sbase):
    toks = {}
    k, r0 = kr
    for st in range(2):
        e(f"s_add_u32 s{T[9]}, s{sbase}, s{S_FT + m}")
        if st:
            e(f"s_add_u32 s{T[9]}, s{T[9]}, {43 * 2048}")
        if m == 10:
            e(f"s_cmp_eq_u32 s{S_WAVE}, 3")
            e(f"s_cselect_b32 s{T[9]}, {WS_SIZE:#x}, s{T[9]}")
        for half in range(2):
            r = r0 + 4 * (st * 2 + half)
            toks[(st, half)] = e.vm(
                f"buffer_load_dwordx4 {rr(k, r, 4)}, v{V_L16}, {srd(S_WS)}, s{T[9]} offen offset:{half * 1024} sc1")
    return toks


def g2_slot(e, first, wk, hk, ht, wtr, acck, acc0):
    ka, ra0 = wk
    kb, rb0 = hk
    for half in range(2):
        for stt in range(2):
            e.wait(vm=ht[(stt, half)], lg=wtr if (half == 0 and stt == 0) else None)
            for dt in range(2):
                acc = rr(acck, acc0 + 32 * dt + 16 * stt, 16)
                c = "0" if (first and half == 0) else acc
                e(f"v_mfma_f32_32x32x16_bf16 {acc}, {rr(ka, ra0 + 4 * (half * 2 + dt), 4)}, "
                  f"{rr(kb, rb0 + 4 * (stt * 2 + half), 4)}, {c}")


def partials(e, sbase_expr, acck, acc0):
    a, b = TMP[0], TMP[1]
    e(f"v_and_b32 v{a}, 31, v{V_LANE}")
    e(f"v_mul_u32_u24 v{a}, 272, v{a}")
    e(f"v_lshrrev_b32 v{b}, 5, v{V_LANE}")
    e(f"v_lshl_add_u32 v{a}, v{b}, 4, v{a}")
    e(f"v_add_u32 v{a}, {sbase_expr}, v{a}")
    e("s_nop 7")
    for dt in range(2):
        for stt in range(2):
            for q in range(4):
                e.lg(f"ds_write_b128 v{a}, {rr(acck, acc0 + 32 * dt + 16 * stt + 4 * q, 4)} "
                     f"offset:{stt * 32 * 272 + dt * 128 + q * 32}")


def epoch_cond(e, lbl):
    e(f"s_lshl_b32 s{T[0]}, s{S_GI}, 2")
    e(f"s_add_u32 s{T[0]}, s{T[0]}, s{S_WAVE}")
    e(f"s_lshl_b32 s{T[0]}, s{T[0]}, 4")
    e(f"s_add_u32 s{T[0]}, s{T[0]}, s{S_GJ}")
    e(f"s_cmp_lg_u32 s{T[0]}, 15")
    e(f"s_cbranch_scc1 {lbl}")


def epoch_finish(e):
    epoch_cond(e, "L_noep2")
    for q in range(4):
        e(f"s_mov_b32 s{T[1]}, {FL_P + q * 1024:#x}")
        e(f"buffer_load_dwordx4 {vr(96 + 4 * q)}, v{V_L16}, {srd(S_WS)}, s{T[1]} offen sc1")
    e("s_waitcnt vmcnt(0)")
    for q in range(4):
        e(f"s_mov_b32 s{T[10]}, {FL_P + q * 1024:#x}")
        poll_check(e, None, V_L16, T[10], 96 + 4 * q, 20)
    e(f"s_sub_u32 s{T[0]}, s{S_TAG}, {TAGK - 1:#x}")
    e(f"v_mov_b32 v{TMP[0]}, s{T[0]}")
    e(f"v_mov_b32 v{TMP[1]}, 0")
    e(f"s_mov_b32 s{T[1]}, {FL_EPOCH:#x}")
    e("s_mov_b64 exec, 1")
    e(f"buffer_store_dword v{TMP[0]}, v{TMP[1]}, {srd(S_WS)}, s{T[1]} offen sc1")
    e("s_mov_b64 exec, -1")
    e.label("L_noep2")


def conv_staging(e, hct, slp=None):
    pt = kv_poll_issue(e)
    ur_zero(e)
    kt = kv_load(e, pt, slp)
    hc_fix(e, hct)
    return kt


def l_body():
    e = Em()
    e.label("L_loader")
    l_addr(e)
    e(f"v_lshlrev_b32 v{TMP[0]}, 2, v{V_LANE}")
    e(f"v_add_u32 v{TMP[0]}, {L_FL}, v{TMP[0]}")
    e(f"v_mov_b32 v{TMP[1]}, 0")
    e.wait_all(vm=False, lg=True)
    e.lg(f"ds_write_b32 v{TMP[0]}, v{TMP[1]}")
    stamp(e, 0)
    e(f"s_cmp_eq_u32 s{S_GJ}, 15")
    e("s_cbranch_scc1 L_l_g")
    st = {}
    for n in range(CFG["PRE"]):
        st[n] = stage_dma(e, n)
    stamp(e, 1)
    for n in range(7):
        e.wait(vm=st[n] if (n < 6 or CFG['S7F']) else st[7])
        e.wait_all(vm=False, lg=True)
        e("s_barrier")
        if n in (0, 4):
            stamp(e, 2 + n // 4)
        for k in range(n + 1, min(n + 3, 8)):
            if k not in st:
                st[k] = stage_dma(e, k)
        if n == 0:
            mt = misc_loads(e, True)
            l_addr2(e)
        if n == 2:
            misc_use(e, mt, True)
        if n == 3 and CFG["TOUCH"]:
            touch_loads(e)
        if n == 5:
            hct = hc_dma(e)
            conv_addr(e)
            kv_poll_issue(e)
            ur_zero(e)
    if CFG["S7F"]:
        e.wait(vm=st[7])
        e(f"s_add_u32 s{T[9]}, s{S_WAVE}, 32")
        lds_set(e, f"s{T[9]}")
    ge = Em()
    ge.label("L_l_g")
    misc_loads(ge, True)
    l_addr2(ge)
    ge.wait_all()
    ge("s_barrier")
    misc_use(ge, [], True)
    hc_dma(ge)
    conv_addr(ge)
    lds_wait4(ge, 8)
    kv_poll_issue(ge)
    ur_zero(ge)
    ge.wait_all()
    ge("s_branch L_l_join")
    e.L.append(("SUB", ge))
    e.label("L_l_join")
    stamp(e, 4)
    kt = kv_load(e, None)
    lwt = {}
    lw = {0: wd_dma(e, 7, 0), 1: wd_dma(e, 8, 1)}
    hc_fix(e, hct)
    kv_write(e, kt)
    e.wait_all(vm=False, lg=True)
    lds_set(e, f"s{S_WAVE}")
    if CFG["LPRIO"] and CFG["PRIO_AT"] == 0:
        e(f"s_setprio {CFG['LPRIO']}")
    lds_wait4(e, 0)
    stamp(e, 5)
    hr, ft = {}, {}
    for nn in range(4):
        for p in range(4):
            hr[(p, nn)] = conv_hraw(e, p, nn)
    for dl in range(4):
        ft[(0, dl)] = conv_f(e, 0, dl)
    for nn in range(3):
        for p in range(4):
            e.wait(lg=hr[(p, nn)] + hr[(p, nn + 1)][:1])
            conv_align(e, p, nn)
    stamp(e, 6)
    cg = [Em() for _ in range(160)]
    for tt in range(8):
        g0 = 20 * tt
        if tt + 4 <= 10:
            for p in range(4):
                hr[(p, tt + 4)] = conv_hraw(cg[g0 + p], p, tt + 4)
        if tt + 1 < 8:
            for dl in range(4):
                ft[(tt + 1, dl)] = conv_f(cg[g0 + 4 + dl], tt + 1, dl)
            g = cg[g0 + 11]
            g.wait(lg=[t for p in range(4) for t in hr[(p, tt + 3)] + hr[(p, tt + 4)][:1]])
            for p in range(4):
                conv_align(cg[g0 + 11 + 2 * p], p, tt + 3)
    G0, G1, G2, G3, G4 = CFG["LG"]
    g = cg[G0]
    for i in range(2):
        g.wait(vm=lw[i])
        lwt[i] = wd_tr(g, i, LW_SET[i])
    g = cg[G1]
    g.wait(lg=lwt[1])
    cw = wd_dma(g, 0, 0) + wd_dma(cg[G1 + 3], 1, 1)
    g = cg[G2]
    lds_wait4(g, 8)
    lw[2] = wd_dma(g, 9, 2)
    lw[3] = wd_dma(cg[G2 + 3], 10, 3)
    cw += wd_dma(cg[G2 + 6], 4, 4)
    g = cg[G3]
    for i in range(2, 4):
        g.wait(vm=lw[i])
        lwt[i] = wd_tr(g, i, LW_SET[i])
    g = cg[G3 + 6]
    g.wait(lg=lwt[3])
    cw += wd_dma(g, 2, 2) + wd_dma(cg[G3 + 9], 3, 3)
    g = cg[G4]
    g.wait(vm=cw)
    g(f"s_add_u32 s{T[9]}, s{S_WAVE}, 24")
    lds_set(g, f"s{T[9]}")
    for tt in range(8):
        idx = 0
        if tt == 4:
            stamp(e, 7)
        if CFG["LPRIO"] and CFG["PRIO_AT"] and tt == CFG["PRIO_AT"]:
            e(f"s_setprio {CFG['LPRIO']}")
        for dl in range(4):
            e.wait(lg=ft[(tt, dl)])
            for p in range(4 - dl):
                j = p + dl
                for bb in range(2):
                    acc = C_ACC + 8 * j + 4 * bb
                    h = C_H + 20 * p + 4 * ((tt + 2 * bb) % 5)
                    f = A_F + 16 * (tt % 2) + 4 * dl
                    c = "0" if (tt == 0 and dl == 0) else vr(acc)
                    e(f"v_mfma_f32_16x16x32_bf16 {vr(acc)}, {vr(h)}, {ar(f)}, {c}")
                    e.extend(cg[20 * tt + idx])
                    idx += 1
    stamp(e, 8)
    lds_wait4(e, 8)
    yst = conv_epilogue(e)
    e.wait_all(vm=False, lg=True)
    e(f"s_add_u32 s{T[9]}, s{S_WAVE}, 28")
    lds_set(e, f"s{T[9]}")
    y_flag(e, yst)
    if CFG["LPRIO"]:
        e("s_setprio 0")
    stamp(e, 9)
    lds_wait1i(e, 12)
    lds_wait1i(e, 16)
    h_poll(e, 2)
    hl = {}
    for i in range(4):
        hl[i] = h_loads(e, 7 + i, LH_SET[i], S_HOFF)
    qgt = qg_loads(e)
    stamp(e, 10)
    for i in range(4):
        g2_slot(e, i == 0, LW_SET[i], LH_SET[i], hl[i], lwt[i], "v", 32)
    stamp(e, 11)
    lds_wait4(e, 28)
    e(f"s_mul_i32 s{T[9]}, s{S_WAVE}, 17408")
    e(f"s_add_u32 s{T[9]}, s{T[9]}, {L_P2L}")
    partials(e, f"s{T[9]}", "v", 32)
    stamp(e, 12)
    if CFG["SHAREB"]:
        e.label("L_blend")
        e.wait_all()
    blend(e, qgt)
    stamp(e, 15)
    epoch_finish(e)
    return e


def resolve_sub(ge):
    own = {id(i) for i in ge.L}
    L = []
    for i in ge.L:
        if i.kind == "wait":
            L.append(Ins("", "wait", [t for t in i.vm if id(t) in own], [t for t in i.lg if id(t) in own]))
        else:
            L.append(i)
    return resolve_waits(L)


TAIL = []


def flatten(e):
    subs, L = {}, []
    for i in e.L:
        if isinstance(i, tuple):
            key = f";;SUB{len(subs)}"
            subs[key] = i[1]
            L.append(Ins(key))
        else:
            L.append(i)
    out = []
    for ln in resolve_waits(L):
        if ln in subs:
            TAIL.extend(resolve_sub(subs[ln]))
        else:
            out.append(ln)
    return out


def emit(path):
    _lbl[0] = 0
    TAIL.clear()
    e0 = Em()
    setup(e0)
    cb, lb = flatten(c_body()), flatten(l_body())
    k = cb.index(";;SPLIT")
    if CFG["LFIRST"]:
        lines = flatten(e0) + cb[:k] + ["s_branch L_compute"] + lb + ["s_branch L_fin", "L_compute:"] + cb[k + 1:]
    else:
        lines = flatten(e0) + cb[:k] + cb[k + 1:] + lb
    lines = lines + TAIL
    lines, npad = pad_hazards(lines)
    hdr = open("gated_mix__ssm_conv_h3__geglu_ffn__prompt.s.ref").read().split("; @launch")[0]
    txt = hdr
    txt += f"; @launch grid=(256,1,1) block=(512,1,1) lds={LDS_SIZE}\n"
    txt += '.amdgcn_target "amdgcn-amd-amdhsa--gfx950"\n.text\n'
    txt += f".globl {KNAME}\n.p2align 8\n.type {KNAME},@function\n{KNAME}:\n"
    for ln in lines:
        txt += ("" if ln.endswith(":") else "    ") + ln + "\n"
    txt += "L_fin:\nL_end:\n    s_endpgm\n"
    txt += f""".section .rodata,"a"
.p2align 6
.amdhsa_kernel {KNAME}
  .amdhsa_next_free_vgpr 256
  .amdhsa_next_free_sgpr 102
  .amdhsa_accum_offset 160
  .amdhsa_group_segment_fixed_size 0
  .amdhsa_kernarg_size 112
  .amdhsa_user_sgpr_count 2
  .amdhsa_user_sgpr_kernarg_segment_ptr 1
  .amdhsa_system_sgpr_workgroup_id_x 1
.end_amdhsa_kernel
"""
    open(path, "w").write(txt)
    return len(lines), npad


if __name__ == "__main__":
    out = sys.argv[1] if len(sys.argv) > 1 else "k6.s"
    for a in sys.argv[2:]:
        k, v = a.split("=")
        CFG[k] = eval(v)
    print(emit(out))
```

```python
import sys, struct, math
sys.path.insert(0, "work")
from asmlib import Em, Ins, resolve_waits, pad_hazards

KNAME = "gated_mix__ssm_conv_h3__geglu_ffn__prompt_kernel"

CFG = dict(EMU_PREP=True, EMU_G1=True, STAMPS=False, POLL_MAX=200000, ROT=7, SLEEP=8, TOUCH=True,
           KV_AFTER=5, CPRIO=0, PRE=2, LPRE=True, LPRIO=2, PDELAY=0, ROTX=False, P3=False, SHAREB=True, LFIRST=True, EPRIO=0, GPRIO=0, DBGW=0, S7F=True, LG=(9, 18, 29, 69, 118), FLATE=False, PINLINE=True, CWF=29, TOUCH2=False, TDELAY=0, PC0=4, PB=15, PRIO_AT=0)

WS_KV = 0x600000
WS_Y2 = 0x800000
WS_G = 0xA00000
WS_FLG = 0xB00000
FL_EPOCH = WS_FLG
FL_P = WS_FLG + 0x1000
FL_H = WS_FLG + 0x2000
FL_Y = WS_FLG + 0x8000
FL_G = WS_FLG + 0xA000
WS_STAMP = 0xC00000
WS_SIZE = 0x10000000
TAGK = 0x9E3779B9

SLOT = 41216
PHYS = {2: 0, 0: SLOT, 1: 2 * SLOT}
L_WDB = 0
WDB_STRIDE = 20608
L_LWD = 2 * SLOT
L_EX = 2 * SLOT + 16384
L_P2L = 2 * SLOT
L_YT = 2 * SLOT + 4 * 17408
L_HC = 123648
L_UR = 148480
L_PT = 148480
L_SH = 161280
L_FL = 162304
L_GT = 162816
LDS_SIZE = 163840

S_X, S_K, S_V, S_SH, S_SSM, S_WG, S_WU, S_WD, S_GW, S_OUT, S_WS, S_HST, S_DD = [4 + 4 * i for i in range(13)]
S_WAVE, S_GI, S_GJ, S_I2, S_N2, S_TAG = 56, 57, 58, 59, 60, 61
T = list(range(62, 76))
S_C1, S_MASKHI = 76, 77
S_EXSAVE = 78
S_WSOFF, S_XSOFF, S_XM0, S_HOFF, S_FHOFF, S_CH, S_POLL, S_U, S_DF = 80, 81, 82, 83, 84, 85, 86, 87, 88
S_WDBASE = 89
S_RHO, S_WRB = 3, 2
S_FT = 90
S_STI = 101


def srd(b): return f"s[{b}:{b + 3}]"
def vr(b, n=4): return f"v[{b}:{b + n - 1}]"
def ar(b, n=4): return f"a[{b}:{b + n - 1}]"
def rr(k, b, n): return f"{k}[{b}:{b + n - 1}]"
def f32hex(x): return "0x%08x" % struct.unpack("<I", struct.pack("<f", x))[0]


V_LANE, V_L16 = 1, 2
TMP = [13, 14, 15, 16, 17, 18]
V_PA = 19
V_PD = 20
V_EPO, V_H01, V_OUTO, V_T = 24, 25, 26, 27
V_WTR = 3
V_XRD = 6
V_C0 = 9
ACC_OF = {0: 96, 1: 64, 2: 32}
V_ET = 144
A_WF = 0
A_XF = 48
P_K, P_V, P_SH, P_AD, P_T = 32, 52, 60, 76, 84
V_WDMA = 3
V_XDMA = 6
V_F, V_H, V_SHF = 3, 4, 5
V_HC = 32
C_ACC, C_H = 32, 64
A_F = 0
V_WDDMA = 28
V_WDTR = 10
CW_SET = [("v", 96), ("v", 112), ("v", 64), ("v", 80), ("v", 32)]
CH_SET = [("a", 64), ("a", 80), ("v", 128), ("v", 48), ("v", 144)]
LW_SET = [("a", 32), ("a", 48), ("a", 64), ("a", 80)]
LH_SET = [("v", 96), ("v", 112), ("v", 128), ("v", 144)]


_lbl = [0]


def stamp(e, idx):
    if not CFG["STAMPS"] or (CFG["STAMPS"] == 2 and idx not in (0, 15)):
        return
    if CFG["STAMPS"] == 3:
        n = _lbl[0]
        _lbl[0] += 1
        e.wait_all(vm=False, lg=True)
        e(f"s_cmp_lg_u32 s{S_STI}, {CFG['DBGW']}")
        e(f"s_cbranch_scc1 L_st{n}")
        e(f"s_load_dwordx2 s[{S_EXSAVE}:{S_EXSAVE + 1}], s[0:1], 96")
        e("s_memrealtime vcc")
        e("s_waitcnt lgkmcnt(0)")
        e(f"v_mov_b32 v{TMP[0]}, vcc_lo")
        e(f"v_mov_b32 v{TMP[1]}, 0")
        e("s_mov_b64 exec, 1")
        e(f"global_store_dword v{TMP[1]}, v{TMP[0]}, s[{S_EXSAVE}:{S_EXSAVE + 1}] offset:{idx * 4}")
        e("s_mov_b64 exec, -1")
        e.label(f"L_st{n}")
        return
    e.wait_all(vm=False, lg=True)
    e("s_memrealtime s[0:1]")
    e(f"s_memtime s[{S_EXSAVE}:{S_EXSAVE + 1}]")
    e.wait_all(vm=False, lg=True)
    e(f"v_mov_b32 v{TMP[0]}, s0")
    e(f"v_mov_b32 v{TMP[1]}, s{S_STI}")
    e(f"v_mov_b32 v{TMP[2]}, s{S_EXSAVE}")
    e("s_mov_b64 exec, 1")
    e.vm(f"buffer_store_dword v{TMP[0]}, v{TMP[1]}, {srd(S_WS)}, 0 offen offset:{idx * 4}")
    e.vm(f"buffer_store_dword v{TMP[2]}, v{TMP[1]}, {srd(S_WS)}, 0 offen offset:{128 + idx * 4}")
    if idx == 0:
        e(f"v_mov_b32 v{TMP[0]}, vcc_lo")
        e.vm(f"buffer_store_dword v{TMP[0]}, v{TMP[1]}, {srd(S_WS)}, 0 offen offset:{31 * 4}")
    e("s_mov_b64 exec, -1")


def flag_store(e, s_addr):
    e(f"v_mov_b32 v{TMP[0]}, s{S_TAG}")
    e(f"v_mov_b32 v{TMP[1]}, 0")
    e("s_mov_b64 exec, 1")
    t = e.vm(f"buffer_store_dword v{TMP[0]}, v{TMP[1]}, {srd(S_WS)}, s{s_addr} offen sc1")
    e("s_mov_b64 exec, -1")
    return t


def poll_issue(e, vaddr, s_addr, vdst):
    return e.vm(f"buffer_load_dwordx4 {vr(vdst)}, v{vaddr}, {srd(S_WS)}, s{s_addr} offen sc1")


def poll_check(e, tok, vaddr, s_addr, vdst, slp=None):
    n = _lbl[0]
    _lbl[0] += 1
    e.wait(vm=tok)
    e(f"s_mov_b32 s{S_POLL}, 0")
    e.label(f"L_pc{n}")
    for q in range(4):
        e(f"v_xor_b32 v{vdst + q}, s{S_TAG}, v{vdst + q}")
    e(f"v_or3_b32 v{vdst}, v{vdst}, v{vdst + 1}, v{vdst + 2}")
    e(f"v_or_b32 v{vdst}, v{vdst}, v{vdst + 3}")
    e(f"v_cmp_eq_u32 vcc, 0, v{vdst}")
    e("s_nop 1")
    e("s_cmp_eq_u64 vcc, -1")
    e(f"s_cbranch_scc1 L_pd{n}")
    e(f"s_add_u32 s{S_POLL}, s{S_POLL}, 1")
    e(f"s_cmp_ge_u32 s{S_POLL}, {CFG['POLL_MAX']}")
    e(f"s_cbranch_scc1 L_pd{n}")
    e(f"s_sleep {slp if slp is not None else CFG['SLEEP']}")
    e(f"buffer_load_dwordx4 {vr(vdst)}, v{vaddr}, {srd(S_WS)}, s{s_addr} offen sc1")
    e("s_waitcnt vmcnt(0)")
    e(f"s_branch L_pc{n}")
    e.label(f"L_pd{n}")


def lds_set(e, word_sgpr_or_int, val=1):
    if isinstance(word_sgpr_or_int, int):
        e(f"v_mov_b32 v{TMP[0]}, {L_FL + 4 * word_sgpr_or_int}")
    else:
        e(f"s_lshl_b32 s{T[0]}, {word_sgpr_or_int}, 2")
        e(f"s_add_u32 s{T[0]}, s{T[0]}, {L_FL}")
        e(f"v_mov_b32 v{TMP[0]}, s{T[0]}")
    e(f"v_mov_b32 v{TMP[1]}, {val}")
    e("s_mov_b64 exec, 1")
    t = e.lg(f"ds_write_b32 v{TMP[0]}, v{TMP[1]}")
    e("s_mov_b64 exec, -1")
    return t


def lds_wait4(e, word0):
    n = _lbl[0]
    _lbl[0] += 1
    e(f"v_mov_b32 v{TMP[0]}, {L_FL + 4 * word0}")
    e(f"s_mov_b32 s{S_POLL}, 0")
    e.label(f"L_lw{n}")
    e(f"ds_read_b128 {vr(V_PD)}, v{TMP[0]}")
    e("s_waitcnt lgkmcnt(0)")
    e(f"v_and_b32 v{V_PD}, v{V_PD}, v{V_PD + 1}")
    e(f"v_and_b32 v{V_PD + 2}, v{V_PD + 2}, v{V_PD + 3}")
    e(f"v_and_b32 v{V_PD}, v{V_PD}, v{V_PD + 2}")
    e(f"v_cmp_eq_u32 vcc, 1, v{V_PD}")
    e("s_nop 1")
    e("s_cmp_eq_u64 vcc, -1")
    e(f"s_cbranch_scc1 L_ld{n}")
    e(f"s_add_u32 s{S_POLL}, s{S_POLL}, 1")
    e(f"s_cmp_ge_u32 s{S_POLL}, {CFG['POLL_MAX'] * 8}")
    e(f"s_cbranch_scc1 L_ld{n}")
    e("s_sleep 1")
    e(f"s_branch L_lw{n}")
    e.label(f"L_ld{n}")
    e.wait_all(vm=False, lg=True)


def lds_wait1(e, s_word):
    n = _lbl[0]
    _lbl[0] += 1
    e(f"s_lshl_b32 s{T[0]}, s{s_word}, 2")
    e(f"s_add_u32 s{T[0]}, s{T[0]}, {L_FL}")
    e(f"v_mov_b32 v{TMP[4]}, s{T[0]}")
    e(f"s_mov_b32 s{S_POLL}, 0")
    e.label(f"L_lw{n}")
    e(f"ds_read_b32 v{V_PD}, v{TMP[4]}")
    e("s_waitcnt lgkmcnt(0)")
    e(f"v_cmp_eq_u32 vcc, 1, v{V_PD}")
    e("s_nop 1")
    e("s_cmp_eq_u64 vcc, -1")
    e(f"s_cbranch_scc1 L_ld{n}")
    e(f"s_add_u32 s{S_POLL}, s{S_POLL}, 1")
    e(f"s_cmp_ge_u32 s{S_POLL}, {CFG['POLL_MAX'] * 8}")
    e(f"s_cbranch_scc1 L_ld{n}")
    e(f"s_branch L_lw{n}")
    e.label(f"L_ld{n}")
    e.wait_all(vm=False, lg=True)


def lds_wait1i(e, word, slp=1):
    n = _lbl[0]
    _lbl[0] += 1
    e(f"v_mov_b32 v{TMP[4]}, {L_FL + 4 * word}")
    e(f"s_mov_b32 s{S_POLL}, 0")
    e.label(f"L_lw{n}")
    e(f"ds_read_b32 v{V_PD}, v{TMP[4]}")
    e("s_waitcnt lgkmcnt(0)")
    e(f"v_cmp_eq_u32 vcc, 1, v{V_PD}")
    e("s_nop 1")
    e("s_cmp_eq_u64 vcc, -1")
    e(f"s_cbranch_scc1 L_ld{n}")
    e(f"s_add_u32 s{S_POLL}, s{S_POLL}, 1")
    e(f"s_cmp_ge_u32 s{S_POLL}, {CFG['POLL_MAX'] * 8}")
    e(f"s_cbranch_scc1 L_ld{n}")
    e(f"s_sleep {slp}")
    e(f"s_branch L_lw{n}")
    e.label(f"L_ld{n}")
    e.wait_all(vm=False, lg=True)


def poll_one(e, vaddr, s_addr, word, slp=None):
    n = _lbl[0]
    _lbl[0] += 1
    e(f"s_cmp_lg_u32 s{S_WAVE}, 0")
    e(f"s_cbranch_scc1 L_po{n}")
    e(f"buffer_load_dwordx4 {vr(V_PD)}, v{vaddr}, {srd(S_WS)}, s{s_addr} offen sc1")
    e("s_waitcnt vmcnt(0)")
    poll_check(e, None, vaddr, s_addr, V_PD, slp)
    e(f"v_mov_b32 v{TMP[0]}, {L_FL + 4 * word}")
    e(f"v_mov_b32 v{TMP[1]}, 1")
    e(f"ds_write_b32 v{TMP[0]}, v{TMP[1]}")
    e(f"s_branch L_pe{n}")
    e.label(f"L_po{n}")
    lds_wait1i(e, word)
    e.label(f"L_pe{n}")
    e.wait_all(vm=False, lg=True)


def unpack(e, dst, src, hi):
    if hi:
        e(f"v_and_b32 v{dst}, s{S_MASKHI}, v{src}")
    else:
        e(f"v_lshlrev_b32 v{dst}, 16, v{src}")


def round2(e, a, b, tmp):
    e(f"v_cvt_pk_bf16_f32 v{tmp}, v{a}, v{b}")
    e(f"v_lshlrev_b32 v{a}, 16, v{tmp}")
    e(f"v_and_b32 v{b}, s{S_MASKHI}, v{tmp}")


def spread(gaps, L, lo, hi):
    n = len(L)
    for idx, ins in enumerate(L):
        gaps[lo + idx * (hi - lo) // n].L.append(ins)


def setup(e):
    if CFG["STAMPS"] in (True, 2):
        e("s_memrealtime vcc")
    e("s_cmp_ge_u32 s2, 256")
    e("s_cbranch_scc1 L_end")
    ptrs = [(S_WG, 56), (S_WU, 64), (S_X, 0), (S_K, 8), (S_V, 16), (S_SH, 24), (S_WS, 104), (S_SSM, 32), (S_DD, 40),
            (S_WD, 72), (S_GW, 80), (S_OUT, 88), (S_HST, 104)]
    for r, off in ptrs:
        e(f"s_load_dwordx2 s[{r}:{r + 1}], s[0:1], {off}")
    sizes = {S_X: 0x200000, S_K: 0x200000, S_V: 0x200000, S_SH: 4096, S_SSM: 0x200000, S_WG: 512 * 2752,
             S_WU: 512 * 2752, S_WD: 1376 * 1024, S_GW: 1024, S_OUT: 0x200000, S_WS: WS_SIZE, S_HST: WS_SIZE,
             S_DD: 1024}
    for r, sz in sizes.items():
        e(f"s_mov_b32 s{r + 2}, {sz:#x}")
        e(f"s_mov_b32 s{r + 3}, 0x00020000")
    e(f"v_lshrrev_b32 v{TMP[0]}, 6, v0")
    e(f"v_and_b32 v{V_LANE}, 63, v0")
    e(f"v_readfirstlane_b32 s{T[13]}, v{TMP[0]}")
    e(f"s_mov_b32 s{S_U}, s2")
    e(f"s_and_b32 s{T[0]}, s2, 7")
    e(f"s_lshr_b32 s{T[1]}, s2, 3")
    e(f"s_and_b32 s{T[2]}, s{T[1]}, 7")
    e(f"s_lshr_b32 s{T[3]}, s{T[1]}, 3")
    e(f"s_and_b32 s{T[4]}, s{T[0]}, 1")
    e(f"s_lshr_b32 s{T[5]}, s{T[0]}, 1")
    e(f"s_lshl_b32 s{S_GI}, s{T[4]}, 3")
    e(f"s_add_u32 s{S_GI}, s{S_GI}, s{T[2]}")
    e(f"s_lshl_b32 s{S_GJ}, s{T[5]}, 2")
    e(f"s_add_u32 s{S_GJ}, s{S_GJ}, s{T[3]}")
    e(f"s_lshl_b32 s{S_I2}, s{T[5]}, 3")
    e(f"s_add_u32 s{S_I2}, s{S_I2}, s{T[2]}")
    e(f"s_lshl_b32 s{S_N2}, s{T[4]}, 2")
    e(f"s_add_u32 s{S_N2}, s{S_N2}, s{T[3]}")
    e(f"s_and_b32 s{S_WAVE}, s{T[13]}, 3")
    e(f"s_mov_b32 s{S_MASKHI}, 0xffff0000")
    e(f"v_lshlrev_b32 v{V_L16}, 4, v{V_LANE}")
    if CFG["STAMPS"]:
        e(f"s_lshl_b32 s{S_STI}, s2, 3")
        e(f"s_add_u32 s{S_STI}, s{S_STI}, s{T[13]}")
        if CFG["STAMPS"] != 3:
            e(f"s_lshl_b32 s{S_STI}, s{S_STI}, 8")
            e(f"s_add_u32 s{S_STI}, s{S_STI}, {WS_STAMP:#x}")
    e(f"s_lshl_b32 s{S_XSOFF}, s{S_GI}, 17")
    e(f"s_lshl_b32 s{T[0]}, s{S_WAVE}, 15")
    e(f"s_add_u32 s{S_XSOFF}, s{S_XSOFF}, s{T[0]}")
    e(f"s_lshr_b32 s{T[0]}, s{S_WAVE}, 1")
    e(f"s_lshl_b32 s{S_CH}, s{S_U}, 1")
    e(f"s_add_u32 s{S_CH}, s{S_CH}, s{T[0]}")
    e(f"s_cmp_ge_u32 s{T[13]}, 4")
    e("s_cbranch_scc1 L_loader")


def misc_loads(e, need_d):
    e(f"v_mov_b32 v{TMP[0]}, 0")
    e(f"s_mov_b32 s{T[0]}, {FL_EPOCH:#x}")
    toks = [e.vm(f"buffer_load_dword v{V_EPO}, v{TMP[0]}, {srd(S_WS)}, s{T[0]} offen sc1")]
    if need_d:
        e(f"s_lshl_b32 s{T[1]}, s{S_U}, 2")
        toks.append(e.vm(f"buffer_load_dword v{V_H01}, v{TMP[0]}, {srd(S_DD)}, s{T[1]} offen"))
    return toks


def misc_use(e, toks, need_d):
    e.wait(vm=toks)
    e(f"v_readfirstlane_b32 s{S_TAG}, v{V_EPO}")
    if need_d:
        e(f"v_readfirstlane_b32 s{T[0]}, v{V_H01}")
    e("s_nop 3")
    e(f"s_add_u32 s{S_TAG}, s{S_TAG}, {TAGK:#x}")
    if need_d:
        e(f"s_lshl_b32 s{T[2]}, s{T[0]}, 16")
        e(f"s_and_b32 s{T[3]}, s{T[0]}, 0xffff0000")
        e(f"s_cmp_lt_u32 s{S_WAVE}, 2")
        e(f"s_cselect_b32 s{S_DF}, s{T[2]}, s{T[3]}")


def out_addr(e):
    a, b = TMP[0], TMP[1]
    e(f"v_lshrrev_b32 v{a}, 3, v0")
    e(f"v_and_b32 v{b}, 7, v0")
    e(f"v_lshlrev_b32 v{b}, 4, v{b}")
    e(f"v_lshl_add_u32 v{a}, v{a}, 10, v{b}")
    e(f"s_lshl_b32 s{T[0]}, s{S_I2}, 16")
    e(f"s_lshl_b32 s{T[1]}, s{S_N2}, 7")
    e(f"s_add_u32 s{T[0]}, s{T[0]}, s{T[1]}")
    e(f"v_add_u32 v{V_OUTO}, s{T[0]}, v{a}")


A_PK, A_PV = 56, 76
Q_RAW, Q_SH, Q_KC, Q_VV, Q_S4, Q_P, Q_W, Q_SA = 128, 136, 140, 145, 147, 151, 156, 157


def prep_a(e):
    a, b = TMP[0], TMP[1]
    AD = 128
    e(f"v_and_b32 v{a}, 7, v0")
    e(f"v_lshrrev_b32 v{b}, 3, v0")
    e(f"v_lshlrev_b32 v{a}, 4, v{a}")
    e(f"v_lshl_add_u32 v{a}, v{b}, 11, v{a}")
    e(f"s_lshl_b32 s{T[0]}, s{S_I2}, 16")
    e(f"s_lshl_b32 s{T[1]}, s{S_N2}, 7")
    e(f"s_add_u32 s{T[0]}, s{T[0]}, s{T[1]}")
    e(f"s_sub_u32 s{T[0]}, s{T[0]}, 3072")
    e(f"v_add_u32 v{AD}, s{T[0]}, v{a}")
    for m in range(1, 5):
        e(f"v_add_u32 v{AD + m}, {1024 * m}, v{AD}")
    e.wait_all(vm=False, lg=True)
    stamp(e, 0)
    if CFG["TOUCH2"]:
        e(f"v_lshrrev_b32 v{a}, 3, v{V_LANE}")
        e(f"v_lshlrev_b32 v{a}, 10, v{a}")
        e(f"v_and_b32 v{b}, 7, v{V_LANE}")
        e(f"v_lshl_add_u32 v{a}, v{b}, 7, v{a}")
        e(f"s_and_b32 s{T[0]}, s{S_GJ}, 3")
        e(f"s_lshl_b32 s{T[0]}, s{T[0]}, 15")
        e(f"s_lshl_b32 s{T[1]}, s{S_WAVE}, 13")
        e(f"s_add_u32 s{T[0]}, s{T[0]}, s{T[1]}")
        e(f"s_lshl_b32 s{T[1]}, s{S_GI}, 17")
        e(f"s_add_u32 s{T[0]}, s{T[0]}, s{T[1]}")
        e(f"v_mul_u32_u24 v{b}, 2752, v{V_LANE}")
        e(f"s_and_b32 s{T[2]}, s{S_GI}, 7")
        e(f"s_mul_i32 s{T[2]}, s{T[2]}, {64 * 2752}")
        e(f"s_mul_i32 s{T[3]}, s{S_GJ}, 192")
        e(f"s_add_u32 s{T[2]}, s{T[2]}, s{T[3]}")
        e(f"s_lshr_b32 s{T[3]}, s{S_WAVE}, 1")
        e(f"s_mul_i32 s{T[3]}, s{T[3]}, 188")
        e(f"s_add_u32 s{T[2]}, s{T[2]}, s{T[3]}")
        if CFG["TDELAY"]:
            e(f"s_sleep {CFG['TDELAY']}")
        e.vm(f"buffer_load_dword v{V_PD}, v{a}, {srd(S_X)}, s{T[0]} offen")
        e(f"s_bitcmp1_b32 s{S_WAVE}, 0")
        e("s_cbranch_scc1 L_t2u")
        e(f"buffer_load_dword v{V_PD + 1}, v{b}, {srd(S_WG)}, s{T[2]} offen")
        e("s_branch L_t2j")
        e.label("L_t2u")
        e(f"buffer_load_dword v{V_PD + 1}, v{b}, {srd(S_WU)}, s{T[2]} offen")
        e.label("L_t2j")
        e.vm("s_nop 0")
    if CFG["PDELAY"]:
        e(f"s_sleep {CFG['PDELAY']}")
    toks = []
    for m in range(5):
        toks.append(e.vm(f"buffer_load_dwordx4 {ar(A_PK + 4 * m)}, v{AD + m}, {srd(S_K)}, 0 offen"))
    for m in range(2):
        toks.append(e.vm(f"buffer_load_dwordx4 {ar(A_PV + 4 * m)}, v{AD + 3 + m}, {srd(S_V)}, 0 offen"))
    e(f"s_mov_b32 m0, {L_SH}")
    e(f"s_lshl_b32 s{T[1]}, s{S_N2}, 9")
    toks.append(e.vm(f"buffer_load_dwordx4 v{V_L16}, {srd(S_SH)}, s{T[1]} offen lds"))
    mt = misc_loads(e, False)
    e(";;SPLIT")
    c_addr(e)
    w = Q_W
    e(f"v_lshrrev_b32 v{b}, 3, v0")
    e(f"v_sub_u32 v{b}, 31, v{b}")
    e(f"v_lshrrev_b32 v{w}, 2, v{b}")
    e(f"v_and_b32 v{TMP[3]}, 7, v0")
    e(f"v_xor_b32 v{w}, v{w}, v{TMP[3]}")
    e(f"v_lshlrev_b32 v{w}, 4, v{w}")
    e(f"v_and_b32 v{b}, 3, v{b}")
    e(f"v_lshl_add_u32 v{w}, v{b}, 2, v{w}")
    e(f"v_lshl_add_u32 v{w}, v{TMP[3]}, 10, v{w}")
    e(f"v_add_u32 v{w}, {L_PT}, v{w}")
    e(f"v_lshlrev_b32 v{Q_SA}, 6, v{TMP[3]}")
    e(f"v_add_u32 v{Q_SA}, {L_SH}, v{Q_SA}")
    return toks, mt


def prep_compute(toks):
    e = Em()
    e.wait(vm=toks)
    wr = []
    for q in range(4):
        sh = e.lg(f"ds_read_b128 {vr(Q_SH)}, v{Q_SA} offset:{16 * q}")
        for m in range(5):
            e(f"v_accvgpr_read_b32 v{Q_RAW + m}, a{A_PK + 4 * m + q}")
        for m in range(2):
            e(f"v_accvgpr_read_b32 v{Q_RAW + 5 + m}, a{A_PV + 4 * m + q}")
        e.wait(lg=sh)
        for hi in range(2):
            c = 2 * q + hi
            kc = [Q_KC + m for m in range(5)]
            vv = [Q_VV, Q_VV + 1]
            s4 = [Q_S4 + j for j in range(4)]
            p0, p1, a0, a1, tp = Q_P, Q_P + 1, Q_P + 2, Q_P + 3, Q_P + 4
            for m in range(5):
                unpack(e, kc[m], Q_RAW + m, hi)
            for m in range(2):
                unpack(e, vv[m], Q_RAW + 5 + m, hi)
            for j in range(4):
                unpack(e, s4[j], Q_SH + 2 * hi + (j >> 1), j & 1)
            e(f"v_mul_f32 v{a0}, v{kc[0]}, v{s4[3]}")
            e(f"v_mul_f32 v{a1}, v{kc[1]}, v{s4[3]}")
            if CFG["EMU_PREP"]:
                round2(e, a0, a1, tp)
                for tt in range(1, 4):
                    e(f"v_mul_f32 v{p0}, v{kc[tt]}, v{s4[3 - tt]}")
                    e(f"v_mul_f32 v{p1}, v{kc[tt + 1]}, v{s4[3 - tt]}")
                    round2(e, p0, p1, tp)
                    e(f"v_add_f32 v{a0}, v{a0}, v{p0}")
                    e(f"v_add_f32 v{a1}, v{a1}, v{p1}")
                    round2(e, a0, a1, tp)
            else:
                for tt in range(1, 4):
                    e(f"v_fmac_f32 v{a0}, v{kc[tt]}, v{s4[3 - tt]}")
                    e(f"v_fmac_f32 v{a1}, v{kc[tt + 1]}, v{s4[3 - tt]}")
            e(f"v_mul_f32 v{a0}, v{a0}, v{vv[0]}")
            e(f"v_mul_f32 v{a1}, v{a1}, v{vv[1]}")
            e(f"v_cvt_pk_bf16_f32 v{p0}, v{a1}, v{a0}")
            wr.append(e.lg(f"ds_write_b32 v{Q_W}, v{p0} offset:{c * 128}"))
    return e, wr


def prep_rb_addr(e):
    a, b = TMP[0], TMP[1]
    RA, RB, RG = V_ET + 8, V_ET + 9, V_ET + 10
    e(f"v_lshrrev_b32 v{b}, 3, v0")
    e(f"v_lshrrev_b32 v{a}, 6, v0")
    e(f"v_and_b32 v{RG}, 7, v0")
    e(f"v_xor_b32 v{a}, v{a}, v{RG}")
    e(f"v_lshlrev_b32 v{a}, 4, v{a}")
    e(f"v_lshl_add_u32 v{a}, v{b}, 7, v{a}")
    e(f"v_xor_b32 v{RB}, 64, v{a}")
    e(f"v_add_u32 v{RA}, {L_PT}, v{a}")
    e(f"v_add_u32 v{RB}, {L_PT}, v{RB}")
    e(f"v_lshlrev_b32 v{RG}, 4, v{RG}")
    e(f"v_lshl_add_u32 v{RG}, v{b}, 12, v{RG}")


def prep_readback(e):
    RA, RB = V_ET + 8, V_ET + 9
    return [e.lg(f"ds_read_b128 {vr(V_ET)}, v{RA}"),
            e.lg(f"ds_read_b128 {vr(V_ET + 4)}, v{RB} offset:4096")]


def prep_store(e, rd):
    RG = V_ET + 10
    e(f"s_lshl_b32 s{T[0]}, s{S_N2}, 18")
    e(f"s_lshl_b32 s{T[1]}, s{S_I2}, 7")
    e(f"s_sub_u32 s{T[0]}, s{T[0]}, s{T[1]}")
    e(f"s_add_u32 s{T[0]}, s{T[0]}, {WS_KV + 3968:#x}")
    e(f"s_add_u32 s{T[1]}, s{T[0]}, {32 * 4096:#x}")
    e.wait(lg=rd)
    return [e.vm(f"buffer_store_dwordx4 {vr(V_ET)}, v{RG}, {srd(S_WS)}, s{T[0]} offen sc1"),
            e.vm(f"buffer_store_dwordx4 {vr(V_ET + 4)}, v{RG}, {srd(S_WS)}, s{T[1]} offen sc1")]


def prep_flag(e, toks):
    e.wait(vm=toks)
    e(f"s_lshl_b32 s{T[0]}, s{S_N2}, 9")
    e(f"s_lshl_b32 s{T[1]}, s{S_I2}, 4")
    e(f"s_add_u32 s{T[0]}, s{T[0]}, s{T[1]}")
    e(f"s_lshl_b32 s{T[1]}, s{S_WAVE}, 2")
    e(f"s_add_u32 s{T[0]}, s{T[0]}, s{T[1]}")
    e(f"s_add_u32 s{T[0]}, s{T[0]}, {FL_P:#x}")
    return flag_store(e, T[0])


def c_addr(e):
    a, b, c = TMP[0], TMP[1], TMP[2]
    e(f"v_lshrrev_b32 v{a}, 5, v{V_LANE}")
    e(f"v_lshlrev_b32 v{a}, 3, v{a}")
    e(f"v_bfe_u32 v{b}, v{V_LANE}, 2, 2")
    e(f"v_add_u32 v{a}, v{a}, v{b}")
    e(f"v_mul_u32_u24 v{a}, 192, v{a}")
    e(f"v_bfe_u32 v{b}, v{V_LANE}, 4, 1")
    e(f"v_lshl_add_u32 v{a}, v{b}, 5, v{a}")
    e(f"v_and_b32 v{b}, 3, v{V_LANE}")
    e(f"v_lshl_add_u32 v{a}, v{b}, 3, v{a}")
    for s in range(3):
        e(f"v_add_u32 v{V_WTR + s}, {PHYS[s]}, v{a}")
    e(f"v_bfe_u32 v{a}, v{V_LANE}, 3, 2")
    e(f"v_mul_u32_u24 v{a}, 1040, v{a}")
    e(f"v_and_b32 v{b}, 7, v{V_LANE}")
    e(f"v_lshl_add_u32 v{a}, v{b}, 7, v{a}")
    e(f"v_lshrrev_b32 v{b}, 5, v{V_LANE}")
    e(f"v_lshl_add_u32 v{a}, v{b}, 4, v{a}")
    e(f"s_mul_i32 s{T[0]}, s{S_WAVE}, 4160")
    e(f"v_add_u32 v{a}, s{T[0]}, v{a}")
    for s in range(3):
        e(f"v_add_u32 v{V_XRD + s}, {PHYS[s] + 24576}, v{a}")
    c0 = -2.0 * math.sqrt(2.0 / math.pi) * math.log2(math.e)
    e(f"v_mov_b32 v{V_C0}, {f32hex(c0)}")
    e(f"s_mov_b32 s{S_C1}, {f32hex(c0 * 0.044715)}")
    e(f"s_lshl_b32 s{T[0]}, s{S_GI}, 2")
    e(f"s_add_u32 s{T[0]}, s{T[0]}, s{S_WAVE}")
    e(f"s_mul_i32 s{T[1]}, s{T[0]}, 43")
    e(f"s_mul_i32 s{T[2]}, s{S_GJ}, 3")
    e(f"s_add_u32 s{T[1]}, s{T[1]}, s{T[2]}")
    e(f"s_lshl_b32 s{S_HOFF}, s{T[1]}, 11")
    e(f"s_lshr_b32 s{T[1]}, s{T[0]}, 1")
    e(f"s_lshl_b32 s{T[1]}, s{T[1]}, 9")
    e(f"s_and_b32 s{T[0]}, s{T[0]}, 1")
    e(f"s_lshl_b32 s{T[2]}, s{S_GJ}, 1")
    e(f"s_add_u32 s{T[0]}, s{T[0]}, s{T[2]}")
    e(f"s_lshl_b32 s{T[0]}, s{T[0]}, 2")
    e(f"s_add_u32 s{T[0]}, s{T[0]}, s{T[1]}")
    e(f"s_add_u32 s{S_FHOFF}, s{T[0]}, {FL_H:#x}")
    wd_addr(e, 0)
    out_addr(e)


def conv_addr(e):
    a, b, c = TMP[0], TMP[1], TMP[2]
    e(f"s_lshr_b32 s{T[0]}, s{S_WAVE}, 1")
    e(f"s_and_b32 s{T[1]}, s{S_WAVE}, 1")
    e(f"v_and_b32 v{a}, 15, v{V_LANE}")
    e(f"v_lshrrev_b32 v{b}, 4, v{V_LANE}")
    e(f"v_lshlrev_b32 v{c}, 2, v{b}")
    e(f"v_sub_u32 v{c}, v{c}, v{a}")
    e(f"v_add_u32 v{c}, 63, v{c}")
    e(f"v_mul_u32_u24 v{c}, 80, v{c}")
    e(f"s_mul_i32 s{T[2]}, s{T[0]}, 6400")
    e(f"s_mul_i32 s{T[3]}, s{T[1]}, 160")
    e(f"s_add_u32 s{T[2]}, s{T[2]}, s{T[3]}")
    e(f"s_add_u32 s{T[2]}, s{T[2]}, {L_UR - 3840}")
    e(f"v_add_u32 v{V_F}, s{T[2]}, v{c}")
    e(f"v_add_u32 v{a}, 1, v{a}")
    e(f"v_and_b32 v{V_SHF}, 1, v{a}")
    e(f"v_lshlrev_b32 v{V_SHF}, 4, v{V_SHF}")
    e(f"v_bfe_u32 v{c}, v{a}, 1, 1")
    e(f"v_mul_u32_u24 v{c}, 6208, v{c}")
    e(f"v_and_b32 v{a}, 28, v{a}")
    e(f"v_lshl_add_u32 v{c}, v{a}, 1, v{c}")
    e(f"v_mul_u32_u24 v{b}, 384, v{b}")
    e(f"v_add_u32 v{c}, v{c}, v{b}")
    e(f"s_mul_i32 s{T[2]}, s{T[0]}, 12416")
    e(f"s_lshl_b32 s{T[3]}, s{T[1]}, 7")
    e(f"s_add_u32 s{T[2]}, s{T[2]}, s{T[3]}")
    e(f"s_add_u32 s{T[2]}, s{T[2]}, {L_HC}")
    e(f"v_add_u32 v{V_H}, s{T[2]}, v{c}")


def wd_addr(e, role):
    a, b, c = TMP[0], TMP[1], TMP[2]
    e(f"v_lshrrev_b32 v{a}, 3, v{V_LANE}")
    e(f"v_bfe_u32 v{b}, v{V_LANE}, 4, 1")
    e(f"v_lshlrev_b32 v{b}, 2, v{b}")
    e(f"v_and_b32 v{c}, 7, v{V_LANE}")
    e(f"v_xor_b32 v{c}, v{c}, v{b}")
    e(f"v_lshlrev_b32 v{c}, 4, v{c}")
    e(f"v_lshl_add_u32 v{c}, v{a}, 10, v{c}")
    e(f"s_lshl_b32 s{T[0]}, s{S_N2}, 7")
    e(f"v_add_u32 v{V_WDDMA}, s{T[0]}, v{c}")
    for m in range(1, 4):
        e(f"v_add_u32 v{V_WDDMA + m}, {m * (8192 - 1024)}, v{V_WDDMA}")
    e(f"s_lshl_b32 s{S_WDBASE}, s{S_WAVE}, 12")
    e(f"s_mov_b32 s{T[1]}, s{S_WDBASE}")
    e(f"v_lshrrev_b32 v{a}, 5, v{V_LANE}")
    e(f"v_lshlrev_b32 v{a}, 9, v{a}")
    e(f"v_bfe_u32 v{b}, v{V_LANE}, 2, 2")
    e(f"v_lshl_add_u32 v{a}, v{b}, 7, v{a}")
    e(f"v_bfe_u32 v{b}, v{V_LANE}, 4, 1")
    e(f"v_lshl_add_u32 v{a}, v{b}, 5, v{a}")
    e(f"v_and_b32 v{b}, 3, v{V_LANE}")
    e(f"v_lshl_add_u32 v{a}, v{b}, 3, v{a}")
    e(f"v_bfe_u32 v{b}, v{V_LANE}, 3, 1")
    e(f"v_lshl_add_u32 v{a}, v{b}, 6, v{a}")
    e(f"v_add_u32 v{V_WDTR}, s{T[1]}, v{a}")
    e(f"v_xor_b32 v{b}, 64, v{a}")
    e(f"v_add_u32 v{V_WDTR + 1}, s{T[1]}, v{b}")
    e(f"s_mul_i32 s{T[0]}, s{S_WAVE}, {3 * 2048}")
    for m in range(11):
        if m <= 2:
            e(f"s_add_u32 s{S_FT + m}, s{T[0]}, {12 * m * 2048}")
        elif m == 3:
            e(f"s_add_u32 s{S_FT + m}, s{T[0]}, {36 * 2048}")
            e(f"s_cmp_eq_u32 s{S_WAVE}, 3")
            e(f"s_cselect_b32 s{S_FT + m}, {1 * 2048}, s{S_FT + m}")
        elif m <= 6:
            e(f"s_add_u32 s{S_FT + m}, s{T[0]}, {(3 * (4 * m - 15) + 1) * 2048}")
        elif m == 7:
            e(f"s_add_u32 s{S_FT + m}, s{T[0]}, {(-1 * 2048) & 0xffffffff:#x}")
            e(f"s_cmp_eq_u32 s{S_WAVE}, 0")
            e(f"s_cselect_b32 s{S_FT + m}, {40 * 2048}, s{S_FT + m}")
        else:
            e(f"s_add_u32 s{S_FT + m}, s{T[0]}, {(3 * (4 * m - 29) + 2) * 2048}")
    e(f"s_mul_i32 s{S_XM0 if role == 0 else S_HOFF}, s{S_I2}, {86 * 2048}")


def w_tr(e, T_, idx):
    ft, mat = idx >> 1, idx & 1
    n, ts = T_ // 4, T_ % 4
    base = mat * 12288 + ts * 3072 + ft * 64
    vb = V_WTR + n % 3
    d = A_WF + 24 * (T_ % 2) + 4 * idx
    return [e.lg(f"ds_read_b64_tr_b16 {ar(d, 2)}, v{vb} offset:{base}"),
            e.lg(f"ds_read_b64_tr_b16 {ar(d + 2, 2)}, v{vb} offset:{base + 768}")]


def x_fr(e, T_):
    n, ts = T_ // 4, T_ % 4
    return e.lg(f"ds_read_b128 {ar(A_XF + 4 * (T_ % 2))}, v{V_XRD + n % 3} offset:{ts * 32}")


def g1_epilogue(e, ftl, mids=()):
    A = ACC_OF[ftl]
    e(f"s_mul_i32 s{T[6]}, s{S_GJ}, 3")
    e(f"s_cmp_lt_u32 s{T[6]}, {43 - ftl}")
    e(f"s_cselect_b32 s{S_HST + 2}, {WS_SIZE:#x}, 0")
    e(f"s_add_u32 s{T[7]}, s{S_HOFF}, {ftl * 2048}")
    toks = []
    for half in range(2):
        O = V_ET + 8 + 4 * half
        for pr in range(4):
            r = 8 * half + 2 * pr
            B = V_ET + 4 * (pr & 1)
            g0, g1, u0, u1 = A + r, A + r + 1, A + 16 + r, A + 16 + r + 1
            t0, t1, tp, tq = B, B + 1, B + 2, B + 3
            if CFG["EMU_G1"]:
                round2(e, g0, g1, tp)
            e(f"v_mul_f32 v{t0}, v{g0}, v{g0}")
            e(f"v_mul_f32 v{t1}, v{g1}, v{g1}")
            e(f"v_fma_f32 v{t0}, v{t0}, s{S_C1}, v{V_C0}")
            e(f"v_fma_f32 v{t1}, v{t1}, s{S_C1}, v{V_C0}")
            e(f"v_mul_f32 v{t0}, v{t0}, v{g0}")
            e(f"v_mul_f32 v{t1}, v{t1}, v{g1}")
            e(f"v_exp_f32 v{t0}, v{t0}")
            e(f"v_exp_f32 v{t1}, v{t1}")
            if CFG["EMU_G1"]:
                e(f"v_cvt_pk_bf16_f32 v{tq}, v{u0}, v{u1}")
            else:
                e(f"v_mul_f32 v{u0}, v{u0}, v{g0}")
            e(f"v_add_f32 v{t0}, 1.0, v{t0}")
            e(f"v_add_f32 v{t1}, 1.0, v{t1}")
            e(f"v_rcp_f32 v{t0}, v{t0}")
            e(f"v_rcp_f32 v{t1}, v{t1}")
            if CFG["EMU_G1"]:
                e(f"v_lshlrev_b32 v{u0}, 16, v{tq}")
                e(f"v_mul_f32 v{t0}, v{t0}, v{g0}")
                e(f"v_mul_f32 v{t1}, v{t1}, v{g1}")
                e(f"v_and_b32 v{u1}, s{S_MASKHI}, v{tq}")
                round2(e, t0, t1, tp)
            else:
                e(f"v_mul_f32 v{u1}, v{u1}, v{g1}")
            e(f"v_mul_f32 v{t0}, v{t0}, v{u0}")
            e(f"v_mul_f32 v{t1}, v{t1}, v{u1}")
            e(f"v_cvt_pk_bf16_f32 v{O + pr}, v{t0}, v{t1}")
        toks.append(e.vm(
            f"buffer_store_dwordx4 {vr(O)}, v{V_L16}, {srd(S_HST)}, s{T[7]} offen offset:{half * 1024} sc1"))
        if half < len(mids) and mids[half] is not None:
            mids[half](e)
    return toks


def h_flag(e, ftl, toks):
    e.wait(vm=toks)
    e(f"s_add_u32 s{T[0]}, s{S_FHOFF}, {ftl * 128}")
    return flag_store(e, T[0])


def g_path(e):
    GWR, GWU, G, TB = 128, 132, 140, 144
    gw = e.vm(f"buffer_load_dwordx4 {vr(GWR)}, v{V_L16}, {srd(S_GW)}, 0 offen")
    e(f"v_mov_b32 v{G}, 0")
    X0 = 32
    for half in range(2):
        xt = []
        for r in range(16):
            e(f"s_add_u32 s{T[1]}, s{S_XSOFF}, {(16 * half + r) * 1024}")
            xt.append(e.vm(f"buffer_load_dwordx4 {vr(X0 + 4 * r)}, v{V_L16}, {srd(S_X)}, s{T[1]} offen"))
        if half == 0:
            e.wait(vm=gw)
            for q in range(8):
                unpack(e, GWU + q, GWR + (q >> 1), q & 1)
        for r4 in range(0, 16, 4):
            e.wait(vm=xt[r4 + 3])
            accs = []
            for r in range(r4, r4 + 4):
                X = X0 + 4 * r
                tb = TB + 4 * (r - r4)
                acc = tb + 3
                for q in range(4):
                    e(f"v_lshlrev_b32 v{tb}, 16, v{X + q}")
                    e(f"v_and_b32 v{tb + 1}, s{S_MASKHI}, v{X + q}")
                    e(f"v_mul_f32 v{tb}, v{tb}, v{GWU + 2 * q}")
                    e(f"v_mul_f32 v{tb + 1}, v{tb + 1}, v{GWU + 1 + 2 * q}")
                    e(f"v_cvt_pk_bf16_f32 v{tb + 2}, v{tb}, v{tb + 1}")
                    e(f"v_lshlrev_b32 v{tb}, 16, v{tb + 2}")
                    e(f"v_and_b32 v{tb + 1}, s{S_MASKHI}, v{tb + 2}")
                    if q == 0:
                        e(f"v_add_f32 v{acc}, v{tb}, v{tb + 1}")
                    else:
                        e(f"v_add_f32 v{tb}, v{tb}, v{tb + 1}")
                        e(f"v_add_f32 v{acc}, v{acc}, v{tb}")
                accs.append(acc)
            for mod in ("row_shr:1 row_mask:0xf bank_mask:0xf bound_ctrl:0",
                        "row_shr:2 row_mask:0xf bank_mask:0xf bound_ctrl:0",
                        "row_shr:4 row_mask:0xf bank_mask:0xf bound_ctrl:0",
                        "row_shr:8 row_mask:0xf bank_mask:0xf bound_ctrl:0",
                        "row_bcast:15 row_mask:0xa bank_mask:0xf",
                        "row_bcast:31 row_mask:0xc bank_mask:0xf"):
                for acc in accs:
                    e(f"v_add_f32_dpp v{acc}, v{acc}, v{acc} {mod}")
            for i, acc in enumerate(accs):
                e(f"v_readlane_b32 s{T[2 + i]}, v{acc}, 63")
            for i, acc in enumerate(accs):
                e(f"v_writelane_b32 v{G}, s{T[2 + i]}, {16 * half + r4 + i}")
    a, b, c = TB, TB + 1, TB + 2
    e(f"v_cvt_pk_bf16_f32 v{a}, v{G}, v{G}")
    e(f"v_lshlrev_b32 v{a}, 16, v{a}")
    e(f"v_mul_f32 v{a}, {f32hex(-math.log2(math.e))}, v{a}")
    e(f"v_exp_f32 v{a}, v{a}")
    e(f"v_add_f32 v{a}, 1.0, v{a}")
    e(f"v_rcp_f32 v{a}, v{a}")
    e(f"v_cvt_pk_bf16_f32 v{a}, v{a}, v{a}")
    e(f"v_lshlrev_b32 v{a}, 16, v{a}")
    e(f"v_sub_f32 v{b}, 1.0, v{a}")
    e(f"v_cvt_pk_bf16_f32 v{a}, v{a}, v{b}")
    e(f"v_lshlrev_b32 v{c}, 2, v{V_LANE}")
    e(f"s_lshl_b32 s{T[0]}, s{S_GI}, 9")
    e(f"s_lshl_b32 s{T[1]}, s{S_WAVE}, 7")
    e(f"s_add_u32 s{T[0]}, s{T[0]}, s{T[1]}")
    e(f"s_add_u32 s{T[0]}, s{T[0]}, {WS_G:#x}")
    e("s_mov_b64 exec, 0xffffffff")
    st = e.vm(f"buffer_store_dword v{a}, v{c}, {srd(S_WS)}, s{T[0]} offen sc1")
    e("s_mov_b64 exec, -1")
    return st


def conv_hraw(e, p, nn):
    d = C_H + 20 * p + 4 * (nn % 5)
    off = p * 1536 + 16 * nn
    return [e.lg(f"ds_read_b64 {vr(d, 2)}, v{V_H} offset:{off}"),
            e.lg(f"ds_read_b64 {vr(d + 2, 2)}, v{V_H} offset:{off + 8}")]


def conv_align(e, p, nn):
    d = C_H + 20 * p + 4 * (nn % 5)
    nx = C_H + 20 * p + 4 * ((nn + 1) % 5)
    for k in range(3):
        e(f"v_alignbit_b32 v{d + k}, v{d + k + 1}, v{d + k}, v{V_SHF}")
    e(f"v_alignbit_b32 v{d + 3}, v{nx}, v{d + 3}, v{V_SHF}")


def conv_f(e, tt, delta):
    d = A_F + 16 * (tt % 2) + 4 * delta
    off = 1280 * (3 - delta) + 80 * (tt >> 2) + 16 * (tt & 3)
    return e.lg(f"ds_read_b128 {ar(d)}, v{V_F} offset:{off}")


def conv_epilogue(e):
    a, b, c, u = TMP[0], TMP[1], TMP[2], TMP[3]
    OA, OB, OC, OU = V_ET, V_ET + 1, V_ET + 2, V_ET + 3
    e(f"s_xor_b32 s{T[2]}, s{S_WAVE}, 1")
    e(f"s_lshl_b32 s{T[8]}, s{S_WAVE}, 12")
    e(f"s_add_u32 s{T[8]}, s{T[8]}, {L_EX}")
    e(f"s_lshl_b32 s{T[1]}, s{T[2]}, 12")
    e(f"s_add_u32 s{T[1]}, s{T[1]}, {L_EX}")
    e(f"v_add_u32 v{OA}, s{T[8]}, v{V_L16}")
    e(f"v_add_u32 v{OB}, s{T[1]}, v{V_L16}")
    e(f"s_and_b32 s{T[3]}, s{S_WAVE}, 1")
    A0, A1 = C_ACC, C_ACC + 16
    e(f"v_and_b32 v{OC}, 15, v{V_LANE}")
    e(f"v_sub_u32 v{OU}, 47, v{OC}")
    e(f"v_mul_u32_u24 v{OU}, 80, v{OU}")
    e(f"v_lshrrev_b32 v{TMP[4]}, 4, v{V_LANE}")
    e(f"v_lshlrev_b32 v{TMP[5]}, 3, v{TMP[4]}")
    e(f"v_sub_u32 v{OU}, v{OU}, v{TMP[5]}")
    e(f"s_lshr_b32 s{T[4]}, s{S_WAVE}, 1")
    e(f"s_mul_i32 s{T[4]}, s{T[4]}, 6400")
    e(f"s_mul_i32 s{T[5]}, s{T[3]}, 2560")
    e(f"s_sub_u32 s{T[4]}, s{T[4]}, s{T[5]}")
    e(f"s_add_u32 s{T[4]}, s{T[4]}, {L_UR + 24}")
    e(f"v_add_u32 v{OU}, s{T[4]}, v{OU}")
    e(f"v_lshlrev_b32 v{OC}, 6, v{OC}")
    e(f"v_add_u32 v{OC}, v{OC}, v{TMP[5]}")
    e(f"v_add_u32 v{OC}, s{T[8]}, v{OC}")
    e(f"s_lshl_b32 s{T[4]}, s{S_CH}, 12")
    e(f"s_lshl_b32 s{T[5]}, s{T[3]}, 11")
    e(f"s_add_u32 s{T[4]}, s{T[4]}, s{T[5]}")
    e(f"s_add_u32 s{T[4]}, s{T[4]}, {WS_Y2:#x}")
    e(f"s_cmp_eq_u32 s{T[3]}, 0")
    e("s_cbranch_scc1 L_cv_noswap")
    for q in range(16):
        e(f"v_swap_b32 v{A0 + q}, v{A1 + q}")
    e.label("L_cv_noswap")
    e("s_nop 7")
    wr = [e.lg(f"ds_write_b128 v{OB}, {vr(A1 + 4 * q)} offset:{q * 1024}") for q in range(4)]
    RX, UU, t = C_H, C_H + 16, C_H + 24
    ur = {}
    for jj in range(2):
        for bb in range(2):
            ur[(jj, bb)] = e.lg(
                f"ds_read_b64 {vr(UU + 4 * jj + 2 * bb, 2)}, v{OU} offset:{(1 - jj) * 1280 + (1 - bb) * 32}")
    e.wait(lg=wr)
    e(f"s_add_u32 s{T[9]}, s{T[2]}, 4")
    lds_set(e, f"s{T[9]}")
    e(f"s_add_u32 s{T[9]}, s{S_WAVE}, 4")
    lds_wait1(e, T[9])
    rd = [e.lg(f"ds_read_b128 {vr(RX + 4 * q)}, v{OA} offset:{q * 1024}") for q in range(4)]
    outs = []
    for q in range(4):
        jj, bb = q >> 1, q & 1
        e.wait(lg=[rd[q], ur[(jj, bb)]])
        A = A0 + 4 * q
        U = UU + 4 * jj + 2 * bb
        for r in range(4):
            e(f"v_add_f32 v{A + r}, v{A + r}, v{RX + 4 * q + r}")
        round2(e, A, A + 1, t + 4)
        round2(e, A + 2, A + 3, t + 5)
        unpack(e, t, U + 1, 1)
        unpack(e, t + 1, U + 1, 0)
        unpack(e, t + 2, U, 1)
        unpack(e, t + 3, U, 0)
        for r in range(4):
            e(f"v_mul_f32 v{t + r}, s{S_DF}, v{t + r}")
        round2(e, t, t + 1, t + 4)
        round2(e, t + 2, t + 3, t + 5)
        for r in range(4):
            e(f"v_add_f32 v{A + r}, v{A + r}, v{t + r}")
        O = A1 + 2 * q
        e(f"v_cvt_pk_bf16_f32 v{O}, v{A}, v{A + 1}")
        e(f"v_cvt_pk_bf16_f32 v{O + 1}, v{A + 2}, v{A + 3}")
        outs.append(O)
    e.wait(lg=rd)
    for q in range(4):
        e.lg(f"ds_write_b64 v{OC}, {vr(outs[q], 2)} offset:{(q >> 1) * 1024 + (q & 1) * 32}")
    r0 = e.lg(f"ds_read_b128 {vr(RX)}, v{OA}")
    r1 = e.lg(f"ds_read_b128 {vr(RX + 4)}, v{OA} offset:1024")
    e.wait(lg=[r0, r1])
    return [e.vm(f"buffer_store_dwordx4 {vr(RX)}, v{V_L16}, {srd(S_WS)}, s{T[4]} offen sc1"),
            e.vm(f"buffer_store_dwordx4 {vr(RX + 4)}, v{V_L16}, {srd(S_WS)}, s{T[4]} offen offset:1024 sc1")]


def y_flag(e, toks):
    e.wait(vm=toks)
    e(f"s_lshl_b32 s{T[0]}, s{S_U}, 4")
    e(f"s_lshl_b32 s{T[1]}, s{S_WAVE}, 2")
    e(f"s_add_u32 s{T[0]}, s{T[0]}, s{T[1]}")
    e(f"s_add_u32 s{T[0]}, s{T[0]}, {FL_Y:#x}")
    return flag_store(e, T[0])


def y_stage(e):
    a, b, c, d = TMP[0], TMP[1], TMP[2], TMP[3]
    YD, YA = 96, 104
    e(f"s_lshl_b32 s{T[13]}, s{S_N2}, 9")
    e(f"s_add_u32 s{T[13]}, s{T[13]}, {FL_Y:#x}")
    e(f"v_add_u32 v{V_PA}, s{T[13]}, v{V_L16}")
    e(f"s_lshr_b32 s{T[13]}, s{S_I2}, 1")
    e(f"s_lshl_b32 s{T[13]}, s{T[13]}, 4")
    e(f"s_add_u32 s{T[13]}, s{T[13]}, {FL_G:#x}")
    e(f"v_mov_b32 v{a}, s{T[13]}")
    e(f"v_cmp_gt_u32 vcc, 32, v{V_LANE}")
    e(f"s_mov_b32 s{T[13]}, 0")
    e(f"v_cndmask_b32 v{V_PA}, v{a}, v{V_PA}, vcc")
    e(f"v_lshrrev_b32 v{b}, 3, v0")
    e(f"v_and_b32 v{d}, 7, v0")
    e(f"v_lshlrev_b32 v{a}, 4, v{d}")
    e(f"v_lshl_add_u32 v{YA}, v{b}, 12, v{a}")
    e(f"v_lshrrev_b32 v{c}, 6, v0")
    e(f"v_xor_b32 v{c}, v{c}, v{d}")
    e(f"v_lshlrev_b32 v{c}, 4, v{c}")
    e(f"v_lshl_add_u32 v{c}, v{b}, 7, v{c}")
    e(f"v_xor_b32 v{YA + 2}, 64, v{c}")
    e(f"v_add_u32 v{YA + 1}, {L_YT}, v{c}")
    e(f"v_add_u32 v{YA + 2}, {L_YT}, v{YA + 2}")
    e(f"s_lshl_b32 s{T[2]}, s{S_N2}, 18")
    e(f"s_lshl_b32 s{T[3]}, s{S_I2}, 7")
    e(f"s_add_u32 s{T[2]}, s{T[2]}, s{T[3]}")
    e(f"s_add_u32 s{T[2]}, s{T[2]}, {WS_Y2:#x}")
    e(f"s_add_u32 s{T[3]}, s{T[2]}, {32 * 4096:#x}")
    poll_one(e, V_PA, T[13], 15, 4)
    y0 = e.vm(f"buffer_load_dwordx4 {vr(YD)}, v{YA}, {srd(S_WS)}, s{T[2]} offen sc1")
    y1 = e.vm(f"buffer_load_dwordx4 {vr(YD + 4)}, v{YA}, {srd(S_WS)}, s{T[3]} offen sc1")
    e(f"v_lshlrev_b32 v{a}, 2, v{V_LANE}")
    e(f"s_lshl_b32 s{T[2]}, s{S_I2}, 8")
    e(f"s_add_u32 s{T[2]}, s{T[2]}, {WS_G:#x}")
    g0 = e.vm(f"buffer_load_dword v{YA + 3}, v{a}, {srd(S_WS)}, s{T[2]} offen sc1")
    e(f"v_add_u32 v{a}, {L_GT}, v{a}")
    e.wait(vm=[y0, y1, g0])
    e.lg(f"ds_write_b32 v{a}, v{YA + 3}")
    e.lg(f"ds_write_b128 v{YA + 1}, {vr(YD)}")
    e.lg(f"ds_write_b128 v{YA + 2}, {vr(YD + 4)} offset:4096")


B_Q, B_G = 140, 144 + 8


def qg_loads(e):
    a = TMP[0]
    e(f"v_lshrrev_b32 v{a}, 3, v0")
    e(f"v_lshlrev_b32 v{a}, 2, v{a}")
    e(f"s_lshl_b32 s{T[0]}, s{S_I2}, 8")
    e(f"s_add_u32 s{T[0]}, s{T[0]}, {WS_G:#x}")
    return [e.vm(f"buffer_load_dwordx4 {vr(BQ)}, v{V_OUTO}, {srd(S_X)}, 0 offen")]


BQ, BG = 28, 12


def blend(e, qgt):
    a, b, c, d = TMP[0], TMP[1], TMP[2], TMP[3]
    P, Y = 32, 96
    e(f"v_lshrrev_b32 v{b}, 3, v0")
    e(f"v_and_b32 v{d}, 7, v0")
    e(f"v_mul_u32_u24 v{a}, 272, v{b}")
    e(f"v_lshl_add_u32 v{a}, v{d}, 5, v{a}")
    e(f"v_add_u32 v{TMP[4]}, {L_P2L}, v{a}")
    e(f"v_lshrrev_b32 v{c}, 6, v0")
    e(f"v_xor_b32 v{c}, v{c}, v{d}")
    e(f"v_lshlrev_b32 v{c}, 4, v{c}")
    e(f"v_lshl_add_u32 v{c}, v{d}, 10, v{c}")
    e(f"v_lshlrev_b32 v{TMP[5]}, 2, v{b}")
    e(f"v_add_u32 v{TMP[5]}, {L_GT}, v{TMP[5]}")
    e(f"v_and_b32 v{b}, 7, v{b}")
    e(f"v_lshl_add_u32 v{c}, v{b}, 1, v{c}")
    e(f"v_add_u32 v{c}, {L_YT}, v{c}")
    e.wait_all(vm=False, lg=True)
    for q in range(8):
        e(f"v_mov_b32 v{Y + q}, 0")
    e("s_barrier")
    gr = e.lg(f"ds_read_b32 v{BG}, v{TMP[5]}")
    rd = []
    for wv in range(4):
        for h in range(2):
            rd.append(e.lg(f"ds_read_b128 {vr(P + 8 * wv + 4 * h)}, v{a} offset:{wv * 17408 + h * 16}"))
    for wv in range(4):
        for h in range(2):
            rd.append(e.lg(f"ds_read_b128 {vr(P + 32 + 8 * wv + 4 * h)}, v{TMP[4]} offset:{wv * 17408 + h * 16}"))
    yr = [e.lg(f"ds_read_u16_d16_hi v{Y + cc}, v{c} offset:{cc * 128}") for cc in range(8)]
    e.wait(vm=qgt, lg=gr)
    e(f"v_lshlrev_b32 v104, 16, v{BG}")
    e(f"v_and_b32 v105, s{S_MASKHI}, v{BG}")
    for pr in range(4):
        unpack(e, 112 + 2 * pr, BQ + pr, 0)
        unpack(e, 113 + 2 * pr, BQ + pr, 1)
    for k in range(4):
        e.wait(lg=rd[4 * k:4 * k + 4])
        for r in range(8):
            e(f"v_add_f32 v{P + 16 * k + r}, v{P + 16 * k + r}, v{P + 16 * k + 8 + r}")
    for r in range(8):
        e(f"v_add_f32 v{P + r}, v{P + r}, v{P + 16 + r}")
        e(f"v_add_f32 v{P + 32 + r}, v{P + 32 + r}, v{P + 48 + r}")
    for r in range(8):
        e(f"v_add_f32 v{P + r}, v{P + r}, v{P + 32 + r}")
    e.wait(lg=yr)
    for pr in range(4):
        b0, b1 = P + 2 * pr, P + 2 * pr + 1
        q0, q1, tp, tq = 112 + 2 * pr, 113 + 2 * pr, 106 + 2 * (pr & 1), 107 + 2 * (pr & 1)
        round2(e, b0, b1, tp)
        e(f"v_mul_f32 v{q0}, v{q0}, v{Y + 2 * pr}")
        e(f"v_mul_f32 v{q1}, v{q1}, v{Y + 2 * pr + 1}")
        e(f"v_mul_f32 v{b0}, v{b0}, v105")
        e(f"v_mul_f32 v{b1}, v{b1}, v105")
        round2(e, q0, q1, tq)
        e(f"v_mul_f32 v{q0}, v{q0}, v104")
        e(f"v_mul_f32 v{q1}, v{q1}, v104")
        round2(e, b0, b1, tp)
        round2(e, q0, q1, tq)
        e(f"v_add_f32 v{b0}, v{b0}, v{q0}")
        e(f"v_add_f32 v{b1}, v{b1}, v{q1}")
        e(f"v_cvt_pk_bf16_f32 v{P + 16 + pr}, v{b0}, v{b1}")
    e.vm(f"buffer_store_dwordx4 {vr(P + 16)}, v{V_OUTO}, {srd(S_OUT)}, 0 offen")


def c_body():
    e = Em()
    if CFG["CPRIO"]:
        e(f"s_setprio {CFG['CPRIO']}")
    ptoks, mt = prep_a(e)
    stamp(e, 1)
    e(f"s_cmp_eq_u32 s{S_GJ}, 15")
    e("s_cbranch_scc1 L_c_g")
    if CFG["PINLINE"] and not CFG["P3"]:
        pc, pwr = prep_compute(ptoks)
        e.extend(pc)
        misc_use(e, mt, False)
        prep_rb_addr(e)
        e.wait(lg=pwr)
    e("s_barrier")
    if CFG["GPRIO"]:
        e(f"s_setprio {CFG['GPRIO']}")
    NK = 32
    gaps = [Em() for _ in range(6 * NK)]
    trtok, xf = {}, {}
    xf[0] = x_fr(e, 0)
    for idx in range(6):
        trtok[(0, idx)] = w_tr(e, 0, idx)
    stamp(e, 2)
    if CFG["P3"]:
        PB = 3
        pc, pwr = prep_compute(ptoks)
        g = gaps[6 * 2 + 5]
        g.extend(pc)
        misc_use(g, mt, False)
        prep_rb_addr(g)
        prd = prep_readback(gaps[6 * 3 + 1])
        pst = prep_store(gaps[6 * 3 + 5], prd)
        prep_flag(gaps[6 * 11 + 2], pst)
    elif CFG["PINLINE"]:
        PB = -1
        prd = prep_readback(gaps[0])
        pst = prep_store(gaps[4], prd)
        prep_flag(gaps[6 * 8 + 2], pst)
    else:
        pc, pwr = prep_compute(ptoks)
        PB = CFG["PB"]
        spread(gaps, pc.L, 6 * CFG["PC0"], 6 * PB - 2)
        prep_rb_addr(gaps[6 * PB])
        prd = prep_readback(gaps[6 * PB + 1])
        misc_use(gaps[6 * PB + 3], mt, False)
        pst = prep_store(gaps[6 * PB + 5], prd)
        prep_flag(gaps[6 * (PB + 7) + 2], pst)
    for T_ in range(1, NK):
        xf[T_] = x_fr(gaps[6 * (T_ - 1)], T_)
        for idx in range(6):
            trtok[(T_, idx)] = w_tr(gaps[6 * (T_ - 1) + idx], T_, idx)
    for T_ in range(NK):
        if T_ in (8, 16, 24):
            stamp(e, 2 + T_ // 8)
        last = (T_ % 4 == 3) and T_ < NK - 5
        if T_ == 27 and CFG["S7F"]:
            lds_wait4(e, 32)
        if last:
            e.wait(lg=[t for idx in range(6) for t in trtok[(T_, idx)]] + [xf[T_]] + (pwr if T_ == PB else []))
            e("s_barrier")
        else:
            e.wait(lg=trtok[(T_, 0)] + trtok[(T_, 1)] + [xf[T_]])
        for idx in range(6):
            ft, mat = idx >> 1, idx & 1
            A = ACC_OF[ft] + 16 * mat
            if idx in (2, 4):
                e.wait(lg=trtok[(T_, idx)] + trtok[(T_, idx + 1)])
            c = "0" if T_ == 0 else vr(A, 16)
            e(f"v_mfma_f32_32x32x16_bf16 {vr(A, 16)}, {ar(A_WF + 24 * (T_ % 2) + 4 * idx)}, "
              f"{ar(A_XF + 4 * (T_ % 2))}, {c}")
            e.extend(gaps[6 * T_ + idx])
    ge = Em()
    ge.label("L_c_g")
    ge.wait_all()
    gpc, gwr = prep_compute([])
    ge.extend(gpc)
    misc_use(ge, [], False)
    prep_rb_addr(ge)
    ge.wait_all()
    ge("s_barrier")
    gps = prep_store(ge, prep_readback(ge))
    ge(f"s_add_u32 s{T[9]}, s{S_WAVE}, 8")
    lds_set(ge, f"s{T[9]}")
    prep_flag(ge, gps)
    for ftl in range(3):
        h_flag(ge, ftl, [])
    g_path(ge)
    ge.wait_all()
    ge(f"s_lshl_b32 s{T[0]}, s{S_GI}, 4")
    ge(f"s_lshl_b32 s{T[1]}, s{S_WAVE}, 2")
    ge(f"s_add_u32 s{T[0]}, s{T[0]}, s{T[1]}")
    ge(f"s_add_u32 s{T[0]}, s{T[0]}, {FL_G:#x}")
    flag_store(ge, T[0])
    ge.wait_all()
    ge("s_branch L_c_join2")
    e.L.append(("SUB", ge))
    e.label("L_c_join")
    stamp(e, 6)
    e(f"s_add_u32 s{T[9]}, s{S_WAVE}, 8")
    lds_set(e, f"s{T[9]}")
    ht, wtr, wdt, hl = {}, {}, {}, {}
    if CFG["EPRIO"]:
        e(f"s_setprio {CFG['EPRIO']}")
    ht[0] = g1_epilogue(e, 0)
    f0 = lambda em: h_flag(em, 0, ht[0])
    f1 = lambda em: h_flag(em, 1, ht[1])
    ht[1] = g1_epilogue(e, 1, mids=(None, f0) if CFG["FLATE"] else (f0,))
    stamp(e, 7)
    ht[2] = g1_epilogue(e, 2, mids=(None, f1) if CFG["FLATE"] else (f1,))
    if CFG["EPRIO"]:
        e("s_setprio 0")
    e.label("L_c_join2")
    stamp(e, 8)
    e(f"s_add_u32 s{T[9]}, s{S_WAVE}, 24")
    lds_wait1(e, T[9])
    for m in range(5):
        wtr[m] = wd_tr(e, m, CW_SET[m])
    h_flag(e, 2, ht[2])
    h_poll(e, 0)
    stamp(e, 9)
    for m in range(3):
        hl[m] = h_loads(e, m, CH_SET[m], S_XM0)
    for n in (5, 6):
        wdt[n] = wd_dma(e, n, n - 5)
    stamp(e, 10)
    h_poll(e, 1)
    for m in range(3, 5):
        hl[m] = h_loads(e, m, CH_SET[m], S_XM0)
    stamp(e, 11)
    for m in range(7):
        g2_slot(e, m == 0, CW_SET[m % 5], CH_SET[m % 5], hl[m], wtr[m], "a", 0)
        n = m + 5
        if n < 7:
            hl[n] = h_loads(e, n, CH_SET[n % 5], S_XM0)
            e.wait(vm=wdt[n])
            wtr[n] = wd_tr(e, n % 5, CW_SET[n % 5])
        if m == 2:
            e.wait(lg=wtr[6])
            e(f"s_add_u32 s{T[9]}, s{S_WAVE}, 20")
            lds_set(e, f"s{T[9]}")
    stamp(e, 12)
    qgt = qg_loads(e)
    lds_wait4(e, 20)
    e(f"s_mul_i32 s{T[9]}, s{S_WAVE}, 17408")
    partials(e, f"s{T[9]}", "a", 0)
    lds_wait4(e, 28)
    stamp(e, 13)
    y_stage(e)
    stamp(e, 14)
    if CFG["SHAREB"]:
        e(f"s_mov_b32 s{S_GJ}, 0")
        e("s_branch L_blend")
        return e
    blend(e, qgt)
    stamp(e, 15)
    e("s_branch L_fin")
    return e


def l_addr(e):
    a, b, c = TMP[0], TMP[1], TMP[2]
    e(f"s_mov_b32 s{T[0]}, 0x5556")
    for i in range(3):
        e(f"v_add_u32 v{a}, {64 * i}, v{V_LANE}")
        e(f"v_mul_u32_u24 v{b}, s{T[0]}, v{a}")
        e(f"v_lshrrev_b32 v{b}, 18, v{b}")
        e(f"v_mul_u32_u24 v{c}, 12, v{b}")
        e(f"v_sub_u32 v{a}, v{a}, v{c}")
        e(f"v_lshlrev_b32 v{a}, 4, v{a}")
        e(f"v_mul_u32_u24 v{b}, 2752, v{b}")
        e(f"v_add_u32 v{V_WDMA + i}, v{a}, v{b}")
        if i:
            e(f"v_subrev_u32 v{V_WDMA + i}, {1024 * i}, v{V_WDMA + i}")
    e(f"s_mul_i32 s{S_WSOFF}, s{S_GJ}, 192")
    e(f"s_mul_i32 s{T[0]}, s{S_WAVE}, {16 * 2752}")
    e(f"s_add_u32 s{S_WSOFF}, s{S_WSOFF}, s{T[0]}")
    e(f"v_lshrrev_b32 v{a}, 3, v{V_LANE}")
    e(f"v_lshlrev_b32 v{a}, 10, v{a}")
    e(f"v_and_b32 v{b}, 7, v{V_LANE}")
    e(f"v_lshl_add_u32 v{V_XDMA}, v{b}, 4, v{a}")
    for m in range(1, 4):
        e(f"v_add_u32 v{V_XDMA + m}, {m * (8192 - 1040)}, v{V_XDMA}")
    e(f"s_lshl_b32 s{S_RHO}, s{S_GJ}, 1")
    e(f"s_add_u32 s{S_RHO}, s{S_RHO}, s{S_GI}")
    e(f"s_and_b32 s{S_RHO}, s{S_RHO}, {CFG['ROT']}")
    e(f"s_mul_i32 s{S_WRB}, s{S_WAVE}, 3072")
    e(f"s_mul_i32 s{S_XM0}, s{S_WAVE}, 4160")


def l_addr2(e):
    a, b, c = TMP[0], TMP[1], TMP[2]
    e(f"v_and_b32 v{V_T}, 255, v0")
    e(f"s_and_b32 s{T[1]}, s{S_WAVE}, 1")
    e(f"s_lshl_b32 s{T[2]}, s{S_CH}, 12")
    e(f"s_lshl_b32 s{T[3]}, s{T[1]}, 2")
    e(f"s_add_u32 s{T[2]}, s{T[2]}, s{T[3]}")
    e(f"s_sub_u32 s{T[2]}, s{T[2]}, 64")
    e(f"s_mov_b32 s{T[1]}, 0xaaab")
    for phi in range(3):
        e(f"v_add_u32 v{a}, {phi * 64}, v{V_LANE}")
        e(f"v_mul_u32_u24 v{b}, s{T[1]}, v{a}")
        e(f"v_lshrrev_b32 v{b}, 20, v{b}")
        e(f"v_mul_u32_u24 v{c}, 24, v{b}")
        e(f"v_sub_u32 v{c}, v{a}, v{c}")
        e(f"v_lshlrev_b32 v{c}, 4, v{c}")
        e(f"v_lshl_add_u32 v{c}, v{b}, 8, v{c}")
        e(f"v_add_u32 v{V_HC + phi}, s{T[2]}, v{c}")
        e(f"v_add_u32 v{V_HC + 3 + phi}, 2048, v{V_HC + phi}")
    wd_addr(e, 1)
    out_addr(e)


def stage_dma(e, n):
    toks = []
    base = PHYS[n % 3]
    if CFG["ROTX"]:
        if n == 0:
            e(f"s_mov_b32 s{T[4]}, 0")
        else:
            e(f"s_add_u32 s{T[4]}, s{S_RHO}, {n}")
            e(f"s_sub_u32 s{T[5]}, s{T[4]}, 7")
            e(f"s_cmp_gt_u32 s{T[4]}, 7")
            e(f"s_cselect_b32 s{T[4]}, s{T[5]}, s{T[4]}")
    else:
        e(f"s_add_u32 s{T[4]}, s{S_RHO}, {n}")
        e(f"s_and_b32 s{T[4]}, s{T[4]}, 7")
    e(f"s_lshl_b32 s{T[5]}, s{T[4]}, 7")
    e(f"s_add_u32 s{T[5]}, s{T[5]}, s{S_XSOFF}")
    e(f"s_mul_i32 s{T[4]}, s{T[4]}, {64 * 2752}")
    e(f"s_add_u32 s{T[4]}, s{T[4]}, s{S_WSOFF}")
    e(f"s_add_u32 m0, s{S_XM0}, {base + 24576}")
    e("s_nop 0")
    for m in range(4):
        toks.append(e.vm(f"buffer_load_dwordx4 v{V_XDMA + m}, {srd(S_X)}, s{T[5]} offen offset:{m * 1040} lds"))
    for mat, sr in ((0, S_WG), (1, S_WU)):
        e(f"s_add_u32 m0, s{S_WRB}, {base + mat * 12288}")
        e("s_nop 0")
        for i in range(3):
            toks.append(e.vm(f"buffer_load_dwordx4 v{V_WDMA + i}, {srd(sr)}, s{T[4]} offen offset:{1024 * i} lds"))
    return toks


def hc_dma(e):
    toks = []
    e(f"s_mul_i32 s{T[8]}, s{S_WAVE}, 6208")
    for q in range(6):
        e(f"s_add_u32 m0, s{T[8]}, {L_HC + q * 1024}")
        e("s_nop 0")
        toks.append(e.vm(f"buffer_load_dwordx4 v{V_HC + q}, {srd(S_SSM)}, 0 offen lds"))
    e(f"s_lshl_b32 s{T[8]}, s{S_CH}, 12")
    e(f"v_mov_b32 v{TMP[4]}, 0")
    toks.append(e.vm(f"buffer_load_dword v{V_H01}, v{TMP[4]}, {srd(S_SSM)}, s{T[8]} offen"))
    return toks


def hc_fix(e, toks):
    a, b = TMP[4], TMP[5]
    e.wait(vm=toks)
    e(f"s_and_b32 s{T[8]}, s{S_WAVE}, 1")
    e(f"s_cmp_eq_u32 s{T[8]}, 1")
    e(f"s_cselect_b32 s{T[9]}, 15, 99")
    e(f"v_cmp_eq_u32 vcc, s{T[9]}, v{V_LANE}")
    e(f"s_mul_i32 s{T[8]}, s{S_WAVE}, 6208")
    e(f"s_add_u32 s{T[8]}, s{T[8]}, {L_HC}")
    e(f"v_cndmask_b32 v{a}, 0, v{V_H01}, vcc")
    e(f"v_lshlrev_b32 v{b}, 2, v{V_LANE}")
    e(f"v_add_u32 v{b}, s{T[8]}, v{b}")
    e("s_mov_b64 exec, 0xffff")
    t = e.lg(f"ds_write_b32 v{b}, v{a}")
    e("s_mov_b64 exec, -1")
    return t


K_D, K_A, K_Z = 144, 152, 156


def ur_zero(e):
    a = TMP[4]
    for q in range(4):
        e(f"v_mov_b32 v{K_Z + q}, 0")
    e(f"v_lshlrev_b32 v{a}, 4, v{V_T}")
    e(f"v_add_u32 v{a}, {L_UR}, v{a}")
    e(f"v_cmp_gt_u32 vcc, 80, v{V_T}")
    e(f"s_and_saveexec_b64 s[{S_EXSAVE}:{S_EXSAVE + 1}], vcc")
    e.lg(f"ds_write_b128 v{a}, {vr(K_Z)} offset:5120")
    e.lg(f"ds_write_b128 v{a}, {vr(K_Z)} offset:{6400 + 5120}")
    e("s_mov_b64 exec, -1")


def kv_poll_issue(e):
    e(f"v_and_b32 v{V_PA}, 31, v{V_LANE}")
    e(f"v_lshlrev_b32 v{V_PA}, 4, v{V_PA}")
    e(f"s_lshr_b32 s{T[10]}, s{S_U}, 5")
    e(f"s_lshl_b32 s{T[10]}, s{T[10]}, 9")
    e(f"s_add_u32 s{T[10]}, s{T[10]}, {FL_P:#x}")
    return None


def kv_load(e, tok, slp=None):
    poll_one(e, V_PA, T[10], 14, slp)
    e(f"v_lshlrev_b32 v{K_A}, 4, v{V_T}")
    e(f"s_lshl_b32 s{T[11]}, s{S_U}, 13")
    e(f"s_add_u32 s{T[11]}, s{T[11]}, {WS_KV:#x}")
    e(f"s_add_u32 s{T[12]}, s{T[11]}, 4096")
    return [e.vm(f"buffer_load_dwordx4 {vr(K_D)}, v{K_A}, {srd(S_WS)}, s{T[11]} offen sc1"),
            e.vm(f"buffer_load_dwordx4 {vr(K_D + 4)}, v{K_A}, {srd(S_WS)}, s{T[12]} offen sc1")]


def kv_write(e, toks):
    e(f"v_lshrrev_b32 v{K_A}, 2, v{V_T}")
    e(f"v_mul_u32_u24 v{K_A}, 80, v{K_A}")
    e(f"v_and_b32 v{K_A + 1}, 3, v{V_T}")
    e(f"v_lshl_add_u32 v{K_A}, v{K_A + 1}, 4, v{K_A}")
    e(f"v_add_u32 v{K_A}, {L_UR}, v{K_A}")
    e.wait(vm=toks)
    return [e.lg(f"ds_write_b128 v{K_A}, {vr(K_D)}"),
            e.lg(f"ds_write_b128 v{K_A}, {vr(K_D + 4)} offset:6400")]


def touch_loads(e):
    b = TMP[1]
    e(f"s_and_b32 s{T[0]}, s{S_I2}, 7")
    e(f"s_lshl_b32 s{T[0]}, s{T[0]}, 2")
    e(f"s_add_u32 s{T[0]}, s{T[0]}, s{S_WAVE}")
    e(f"s_lshl_b32 s{T[0]}, s{T[0]}, 16")
    e(f"s_lshl_b32 s{T[1]}, s{S_N2}, 7")
    e(f"s_add_u32 s{T[0]}, s{T[0]}, s{T[1]}")
    e(f"v_lshlrev_b32 v{b}, 10, v{V_LANE}")
    e.vm(f"buffer_load_dword v12, v{b}, {srd(S_WD)}, s{T[0]} offen")


def wd_dma(e, m, buf):
    toks = []
    e(f"s_add_u32 m0, s{S_WDBASE}, {buf * 16384}")
    e(f"s_lshl_b32 s{T[8]}, s{S_FT + m}, 4")
    for q in range(4):
        toks.append(e.vm(f"buffer_load_dwordx4 v{V_WDDMA + q}, {srd(S_WD)}, s{T[8]} offen offset:{q * 1024} lds"))
    return toks


def wd_tr(e, buf, kr):
    toks = []
    k, r0 = kr
    base, vb = buf * 16384, (V_WDTR, V_WDTR + 1)
    if buf == 4:
        e(f"v_add_u32 v{TMP[2]}, 0x10000, v{V_WDTR}")
        e(f"v_add_u32 v{TMP[3]}, 0x10000, v{V_WDTR + 1}")
        base, vb = 0, (TMP[2], TMP[3])
    for half in range(2):
        for dt in range(2):
            r = r0 + 4 * (half * 2 + dt)
            for q in range(2):
                toks.append(e.lg(
                    f"ds_read_b64_tr_b16 {rr(k, r + 2 * q, 2)}, v{vb[dt]} offset:{base + (16 * half + 8 * q) * 128}"))
    return toks


def h_poll(e, level):
    e(f"v_and_b32 v{V_PA}, 7, v{V_LANE}")
    e(f"v_lshlrev_b32 v{V_PA}, 4, v{V_PA}")
    e(f"s_lshl_b32 s{T[13]}, s{S_I2}, 9")
    e(f"s_add_u32 s{T[13]}, s{T[13]}, {FL_H + 128 * level:#x}")
    poll_one(e, V_PA, T[13], (12, 16, 13)[level], 4)


def h_loads(e, m, kr, sbase):
    toks = {}
    k, r0 = kr
    for st in range(2):
        e(f"s_add_u32 s{T[9]}, s{sbase}, s{S_FT + m}")
        if st:
            e(f"s_add_u32 s{T[9]}, s{T[9]}, {43 * 2048}")
        if m == 10:
            e(f"s_cmp_eq_u32 s{S_WAVE}, 3")
            e(f"s_cselect_b32 s{T[9]}, {WS_SIZE:#x}, s{T[9]}")
        for half in range(2):
            r = r0 + 4 * (st * 2 + half)
            toks[(st, half)] = e.vm(
                f"buffer_load_dwordx4 {rr(k, r, 4)}, v{V_L16}, {srd(S_WS)}, s{T[9]} offen offset:{half * 1024} sc1")
    return toks


def g2_slot(e, first, wk, hk, ht, wtr, acck, acc0):
    ka, ra0 = wk
    kb, rb0 = hk
    for half in range(2):
        for stt in range(2):
            e.wait(vm=ht[(stt, half)], lg=wtr if (half == 0 and stt == 0) else None)
            for dt in range(2):
                acc = rr(acck, acc0 + 32 * dt + 16 * stt, 16)
                c = "0" if (first and half == 0) else acc
                e(f"v_mfma_f32_32x32x16_bf16 {acc}, {rr(ka, ra0 + 4 * (half * 2 + dt), 4)}, "
                  f"{rr(kb, rb0 + 4 * (stt * 2 + half), 4)}, {c}")


def partials(e, sbase_expr, acck, acc0):
    a, b = TMP[0], TMP[1]
    e(f"v_and_b32 v{a}, 31, v{V_LANE}")
    e(f"v_mul_u32_u24 v{a}, 272, v{a}")
    e(f"v_lshrrev_b32 v{b}, 5, v{V_LANE}")
    e(f"v_lshl_add_u32 v{a}, v{b}, 4, v{a}")
    e(f"v_add_u32 v{a}, {sbase_expr}, v{a}")
    e("s_nop 7")
    for dt in range(2):
        for stt in range(2):
            for q in range(4):
                e.lg(f"ds_write_b128 v{a}, {rr(acck, acc0 + 32 * dt + 16 * stt + 4 * q, 4)} "
                     f"offset:{stt * 32 * 272 + dt * 128 + q * 32}")


def epoch_cond(e, lbl):
    e(f"s_lshl_b32 s{T[0]}, s{S_GI}, 2")
    e(f"s_add_u32 s{T[0]}, s{T[0]}, s{S_WAVE}")
    e(f"s_lshl_b32 s{T[0]}, s{T[0]}, 4")
    e(f"s_add_u32 s{T[0]}, s{T[0]}, s{S_GJ}")
    e(f"s_cmp_lg_u32 s{T[0]}, 15")
    e(f"s_cbranch_scc1 {lbl}")


def epoch_finish(e):
    epoch_cond(e, "L_noep2")
    for q in range(4):
        e(f"s_mov_b32 s{T[1]}, {FL_P + q * 1024:#x}")
        e(f"buffer_load_dwordx4 {vr(96 + 4 * q)}, v{V_L16}, {srd(S_WS)}, s{T[1]} offen sc1")
    e("s_waitcnt vmcnt(0)")
    for q in range(4):
        e(f"s_mov_b32 s{T[10]}, {FL_P + q * 1024:#x}")
        poll_check(e, None, V_L16, T[10], 96 + 4 * q, 20)
    e(f"s_sub_u32 s{T[0]}, s{S_TAG}, {TAGK - 1:#x}")
    e(f"v_mov_b32 v{TMP[0]}, s{T[0]}")
    e(f"v_mov_b32 v{TMP[1]}, 0")
    e(f"s_mov_b32 s{T[1]}, {FL_EPOCH:#x}")
    e("s_mov_b64 exec, 1")
    e(f"buffer_store_dword v{TMP[0]}, v{TMP[1]}, {srd(S_WS)}, s{T[1]} offen sc1")
    e("s_mov_b64 exec, -1")
    e.label("L_noep2")


def conv_staging(e, hct, slp=None):
    pt = kv_poll_issue(e)
    ur_zero(e)
    kt = kv_load(e, pt, slp)
    hc_fix(e, hct)
    return kt


def l_body():
    e = Em()
    e.label("L_loader")
    l_addr(e)
    e(f"v_lshlrev_b32 v{TMP[0]}, 2, v{V_LANE}")
    e(f"v_add_u32 v{TMP[0]}, {L_FL}, v{TMP[0]}")
    e(f"v_mov_b32 v{TMP[1]}, 0")
    e.wait_all(vm=False, lg=True)
    e.lg(f"ds_write_b32 v{TMP[0]}, v{TMP[1]}")
    stamp(e, 0)
    e(f"s_cmp_eq_u32 s{S_GJ}, 15")
    e("s_cbranch_scc1 L_l_g")
    st = {}
    for n in range(CFG["PRE"]):
        st[n] = stage_dma(e, n)
    stamp(e, 1)
    for n in range(7):
        e.wait(vm=st[n] if (n < 6 or CFG['S7F']) else st[7])
        e.wait_all(vm=False, lg=True)
        e("s_barrier")
        if n in (0, 4):
            stamp(e, 2 + n // 4)
        for k in range(n + 1, min(n + 3, 8)):
            if k not in st:
                st[k] = stage_dma(e, k)
        if n == 0:
            mt = misc_loads(e, True)
            l_addr2(e)
        if n == 2:
            misc_use(e, mt, True)
        if n == 3 and CFG["TOUCH"]:
            touch_loads(e)
        if n == 5:
            hct = hc_dma(e)
            conv_addr(e)
            kv_poll_issue(e)
            ur_zero(e)
    if CFG["S7F"]:
        e.wait(vm=st[7])
        e(f"s_add_u32 s{T[9]}, s{S_WAVE}, 32")
        lds_set(e, f"s{T[9]}")
    ge = Em()
    ge.label("L_l_g")
    misc_loads(ge, True)
    l_addr2(ge)
    ge.wait_all()
    ge("s_barrier")
    misc_use(ge, [], True)
    hc_dma(ge)
    conv_addr(ge)
    lds_wait4(ge, 8)
    kv_poll_issue(ge)
    ur_zero(ge)
    ge.wait_all()
    ge("s_branch L_l_join")
    e.L.append(("SUB", ge))
    e.label("L_l_join")
    stamp(e, 4)
    kt = kv_load(e, None)
    lwt = {}
    lw = {0: wd_dma(e, 7, 0), 1: wd_dma(e, 8, 1)}
    hc_fix(e, hct)
    kv_write(e, kt)
    e.wait_all(vm=False, lg=True)
    lds_set(e, f"s{S_WAVE}")
    if CFG["LPRIO"] and CFG["PRIO_AT"] == 0:
        e(f"s_setprio {CFG['LPRIO']}")
    lds_wait4(e, 0)
    stamp(e, 5)
    hr, ft = {}, {}
    for nn in range(4):
        for p in range(4):
            hr[(p, nn)] = conv_hraw(e, p, nn)
    for dl in range(4):
        ft[(0, dl)] = conv_f(e, 0, dl)
    for nn in range(3):
        for p in range(4):
            e.wait(lg=hr[(p, nn)] + hr[(p, nn + 1)][:1])
            conv_align(e, p, nn)
    stamp(e, 6)
    cg = [Em() for _ in range(160)]
    for tt in range(8):
        g0 = 20 * tt
        if tt + 4 <= 10:
            for p in range(4):
                hr[(p, tt + 4)] = conv_hraw(cg[g0 + p], p, tt + 4)
        if tt + 1 < 8:
            for dl in range(4):
                ft[(tt + 1, dl)] = conv_f(cg[g0 + 4 + dl], tt + 1, dl)
            g = cg[g0 + 11]
            g.wait(lg=[t for p in range(4) for t in hr[(p, tt + 3)] + hr[(p, tt + 4)][:1]])
            for p in range(4):
                conv_align(cg[g0 + 11 + 2 * p], p, tt + 3)
    G0, G1, G2, G3, G4 = CFG["LG"]
    g = cg[G0]
    for i in range(2):
        g.wait(vm=lw[i])
        lwt[i] = wd_tr(g, i, LW_SET[i])
    g = cg[G1]
    g.wait(lg=lwt[1])
    cw = wd_dma(g, 0, 0) + wd_dma(cg[G1 + 3], 1, 1)
    g = cg[G2]
    lds_wait4(g, 8)
    lw[2] = wd_dma(g, 9, 2)
    lw[3] = wd_dma(cg[G2 + 3], 10, 3)
    cw += wd_dma(cg[G2 + 6], 4, 4)
    g = cg[G3]
    for i in range(2, 4):
        g.wait(vm=lw[i])
        lwt[i] = wd_tr(g, i, LW_SET[i])
    g = cg[G3 + 6]
    g.wait(lg=lwt[3])
    cw += wd_dma(g, 2, 2) + wd_dma(cg[G3 + 9], 3, 3)
    g = cg[G4]
    g.wait(vm=cw)
    g(f"s_add_u32 s{T[9]}, s{S_WAVE}, 24")
    lds_set(g, f"s{T[9]}")
    for tt in range(8):
        idx = 0
        if tt == 4:
            stamp(e, 7)
        if CFG["LPRIO"] and CFG["PRIO_AT"] and tt == CFG["PRIO_AT"]:
            e(f"s_setprio {CFG['LPRIO']}")
        for dl in range(4):
            e.wait(lg=ft[(tt, dl)])
            for p in range(4 - dl):
                j = p + dl
                for bb in range(2):
                    acc = C_ACC + 8 * j + 4 * bb
                    h = C_H + 20 * p + 4 * ((tt + 2 * bb) % 5)
                    f = A_F + 16 * (tt % 2) + 4 * dl
                    c = "0" if (tt == 0 and dl == 0) else vr(acc)
                    e(f"v_mfma_f32_16x16x32_bf16 {vr(acc)}, {vr(h)}, {ar(f)}, {c}")
                    e.extend(cg[20 * tt + idx])
                    idx += 1
    stamp(e, 8)
    lds_wait4(e, 8)
    yst = conv_epilogue(e)
    e.wait_all(vm=False, lg=True)
    e(f"s_add_u32 s{T[9]}, s{S_WAVE}, 28")
    lds_set(e, f"s{T[9]}")
    y_flag(e, yst)
    if CFG["LPRIO"]:
        e("s_setprio 0")
    stamp(e, 9)
    lds_wait1i(e, 12)
    lds_wait1i(e, 16)
    h_poll(e, 2)
    hl = {}
    for i in range(4):
        hl[i] = h_loads(e, 7 + i, LH_SET[i], S_HOFF)
    qgt = qg_loads(e)
    stamp(e, 10)
    for i in range(4):
        g2_slot(e, i == 0, LW_SET[i], LH_SET[i], hl[i], lwt[i], "v", 32)
    stamp(e, 11)
    lds_wait4(e, 28)
    e(f"s_mul_i32 s{T[9]}, s{S_WAVE}, 17408")
    e(f"s_add_u32 s{T[9]}, s{T[9]}, {L_P2L}")
    partials(e, f"s{T[9]}", "v", 32)
    stamp(e, 12)
    if CFG["SHAREB"]:
        e.label("L_blend")
        e.wait_all()
    blend(e, qgt)
    stamp(e, 15)
    epoch_finish(e)
    return e


def resolve_sub(ge):
    own = {id(i) for i in ge.L}
    L = []
    for i in ge.L:
        if i.kind == "wait":
            L.append(Ins("", "wait", [t for t in i.vm if id(t) in own], [t for t in i.lg if id(t) in own]))
        else:
            L.append(i)
    return resolve_waits(L)


TAIL = []


def flatten(e):
    subs, L = {}, []
    for i in e.L:
        if isinstance(i, tuple):
            key = f";;SUB{len(subs)}"
            subs[key] = i[1]
            L.append(Ins(key))
        else:
            L.append(i)
    out = []
    for ln in resolve_waits(L):
        if ln in subs:
            TAIL.extend(resolve_sub(subs[ln]))
        else:
            out.append(ln)
    return out


def emit(path):
    _lbl[0] = 0
    TAIL.clear()
    e0 = Em()
    setup(e0)
    cb, lb = flatten(c_body()), flatten(l_body())
    k = cb.index(";;SPLIT")
    if CFG["LFIRST"]:
        lines = flatten(e0) + cb[:k] + ["s_branch L_compute"] + lb + ["s_branch L_fin", "L_compute:"] + cb[k + 1:]
    else:
        lines = flatten(e0) + cb[:k] + cb[k + 1:] + lb
    lines = lines + TAIL
    lines, npad = pad_hazards(lines)
    hdr = open("gated_mix__ssm_conv_h3__geglu_ffn__prompt.s.ref").read().split("; @launch")[0]
    txt = hdr
    txt += f"; @launch grid=(256,1,1) block=(512,1,1) lds={LDS_SIZE}\n"
    txt += '.amdgcn_target "amdgcn-amd-amdhsa--gfx950"\n.text\n'
    txt += f".globl {KNAME}\n.p2align 8\n.type {KNAME},@function\n{KNAME}:\n"
    for ln in lines:
        txt += ("" if ln.endswith(":") else "    ") + ln + "\n"
    txt += "L_fin:\nL_end:\n    s_endpgm\n"
    txt += f""".section .rodata,"a"
.p2align 6
.amdhsa_kernel {KNAME}
  .amdhsa_next_free_vgpr 256
  .amdhsa_next_free_sgpr 102
  .amdhsa_accum_offset 160
  .amdhsa_group_segment_fixed_size 0
  .amdhsa_kernarg_size 112
  .amdhsa_user_sgpr_count 2
  .amdhsa_user_sgpr_kernarg_segment_ptr 1
  .amdhsa_system_sgpr_workgroup_id_x 1
.end_amdhsa_kernel
"""
    open(path, "w").write(txt)
    return len(lines), npad


if __name__ == "__main__":
    out = sys.argv[1] if len(sys.argv) > 1 else "k6.s"
    for a in sys.argv[2:]:
        k, v = a.split("=")
        CFG[k] = eval(v)
    print(emit(out))
```

```python
import sys, struct, math
sys.path.insert(0, "work")
from asmlib import Em, Ins, resolve_waits, pad_hazards

KNAME = "gated_mix__ssm_conv_h3__geglu_ffn__prompt_kernel"

CFG = dict(EMU_PREP=True, EMU_G1=True, STAMPS=False, POLL_MAX=200000, ROT=7, SLEEP=8, TOUCH=True,
           KV_AFTER=5, CPRIO=0, PRE=2, LPRE=True, LPRIO=2, PDELAY=0, NTK='', NTV='', NTS='', NTO='', SHAREB=True, LFIRST=True, EPRIO=0, GPRIO=0, DBGW=0, S7F=True, LG=(9, 18, 29, 69, 118), FLATE=False, PINLINE=True, CWF=29, TOUCH2=False, TDELAY=0, PC0=4, PB=15, PRIO_AT=0)

WS_KV = 0x600000
WS_Y2 = 0x800000
WS_G = 0xA00000
WS_FLG = 0xB00000
FL_EPOCH = WS_FLG
FL_P = WS_FLG + 0x1000
FL_H = WS_FLG + 0x2000
FL_Y = WS_FLG + 0x8000
FL_G = WS_FLG + 0xA000
WS_STAMP = 0xC00000
WS_SIZE = 0x10000000
TAGK = 0x9E3779B9

SLOT = 41216
PHYS = {2: 0, 0: SLOT, 1: 2 * SLOT}
L_WDB = 0
WDB_STRIDE = 20608
L_LWD = 2 * SLOT
L_EX = 2 * SLOT + 16384
L_P2L = 2 * SLOT
L_YT = 2 * SLOT + 4 * 17408
L_HC = 123648
L_UR = 148480
L_PT = 148480
L_SH = 161280
L_FL = 162304
L_GT = 162816
LDS_SIZE = 163840

S_X, S_K, S_V, S_SH, S_SSM, S_WG, S_WU, S_WD, S_GW, S_OUT, S_WS, S_HST, S_DD = [4 + 4 * i for i in range(13)]
S_WAVE, S_GI, S_GJ, S_I2, S_N2, S_TAG = 56, 57, 58, 59, 60, 61
T = list(range(62, 76))
S_C1, S_MASKHI = 76, 77
S_EXSAVE = 78
S_WSOFF, S_XSOFF, S_XM0, S_HOFF, S_FHOFF, S_CH, S_POLL, S_U, S_DF = 80, 81, 82, 83, 84, 85, 86, 87, 88
S_WDBASE = 89
S_RHO, S_WRB = 3, 2
S_FT = 90
S_STI = 101


def srd(b): return f"s[{b}:{b + 3}]"
def vr(b, n=4): return f"v[{b}:{b + n - 1}]"
def ar(b, n=4): return f"a[{b}:{b + n - 1}]"
def rr(k, b, n): return f"{k}[{b}:{b + n - 1}]"
def f32hex(x): return "0x%08x" % struct.unpack("<I", struct.pack("<f", x))[0]


V_LANE, V_L16 = 1, 2
TMP = [13, 14, 15, 16, 17, 18]
V_PA = 19
V_PD = 20
V_EPO, V_H01, V_OUTO, V_T = 24, 25, 26, 27
V_WTR = 3
V_XRD = 6
V_C0 = 9
ACC_OF = {0: 96, 1: 64, 2: 32}
V_ET = 144
A_WF = 0
A_XF = 48
P_K, P_V, P_SH, P_AD, P_T = 32, 52, 60, 76, 84
V_WDMA = 3
V_XDMA = 6
V_F, V_H, V_SHF = 3, 4, 5
V_HC = 32
C_ACC, C_H = 32, 64
A_F = 0
V_WDDMA = 28
V_WDTR = 10
CW_SET = [("v", 96), ("v", 112), ("v", 64), ("v", 80), ("v", 32)]
CH_SET = [("a", 64), ("a", 80), ("v", 128), ("v", 48), ("v", 144)]
LW_SET = [("a", 32), ("a", 48), ("a", 64), ("a", 80)]
LH_SET = [("v", 96), ("v", 112), ("v", 128), ("v", 144)]


_lbl = [0]


def stamp(e, idx):
    if not CFG["STAMPS"] or (CFG["STAMPS"] == 2 and idx not in (0, 15)):
        return
    if CFG["STAMPS"] == 3:
        n = _lbl[0]
        _lbl[0] += 1
        e.wait_all(vm=False, lg=True)
        e(f"s_cmp_lg_u32 s{S_STI}, {CFG['DBGW']}")
        e(f"s_cbranch_scc1 L_st{n}")
        e(f"s_load_dwordx2 s[{S_EXSAVE}:{S_EXSAVE + 1}], s[0:1], 96")
        e("s_memrealtime vcc")
        e("s_waitcnt lgkmcnt(0)")
        e(f"v_mov_b32 v{TMP[0]}, vcc_lo")
        e(f"v_mov_b32 v{TMP[1]}, 0")
        e("s_mov_b64 exec, 1")
        e(f"global_store_dword v{TMP[1]}, v{TMP[0]}, s[{S_EXSAVE}:{S_EXSAVE + 1}] offset:{idx * 4}")
        e("s_mov_b64 exec, -1")
        e.label(f"L_st{n}")
        return
    e.wait_all(vm=False, lg=True)
    e("s_memrealtime s[0:1]")
    e(f"s_memtime s[{S_EXSAVE}:{S_EXSAVE + 1}]")
    e.wait_all(vm=False, lg=True)
    e(f"v_mov_b32 v{TMP[0]}, s0")
    e(f"v_mov_b32 v{TMP[1]}, s{S_STI}")
    e(f"v_mov_b32 v{TMP[2]}, s{S_EXSAVE}")
    e("s_mov_b64 exec, 1")
    e.vm(f"buffer_store_dword v{TMP[0]}, v{TMP[1]}, {srd(S_WS)}, 0 offen offset:{idx * 4}")
    e.vm(f"buffer_store_dword v{TMP[2]}, v{TMP[1]}, {srd(S_WS)}, 0 offen offset:{128 + idx * 4}")
    if idx == 0:
        e(f"v_mov_b32 v{TMP[0]}, vcc_lo")
        e.vm(f"buffer_store_dword v{TMP[0]}, v{TMP[1]}, {srd(S_WS)}, 0 offen offset:{31 * 4}")
    e("s_mov_b64 exec, -1")


def flag_store(e, s_addr):
    e(f"v_mov_b32 v{TMP[0]}, s{S_TAG}")
    e(f"v_mov_b32 v{TMP[1]}, 0")
    e("s_mov_b64 exec, 1")
    t = e.vm(f"buffer_store_dword v{TMP[0]}, v{TMP[1]}, {srd(S_WS)}, s{s_addr} offen sc1")
    e("s_mov_b64 exec, -1")
    return t


def poll_issue(e, vaddr, s_addr, vdst):
    return e.vm(f"buffer_load_dwordx4 {vr(vdst)}, v{vaddr}, {srd(S_WS)}, s{s_addr} offen sc1")


def poll_check(e, tok, vaddr, s_addr, vdst, slp=None):
    n = _lbl[0]
    _lbl[0] += 1
    e.wait(vm=tok)
    e(f"s_mov_b32 s{S_POLL}, 0")
    e.label(f"L_pc{n}")
    for q in range(4):
        e(f"v_xor_b32 v{vdst + q}, s{S_TAG}, v{vdst + q}")
    e(f"v_or3_b32 v{vdst}, v{vdst}, v{vdst + 1}, v{vdst + 2}")
    e(f"v_or_b32 v{vdst}, v{vdst}, v{vdst + 3}")
    e(f"v_cmp_eq_u32 vcc, 0, v{vdst}")
    e("s_nop 1")
    e("s_cmp_eq_u64 vcc, -1")
    e(f"s_cbranch_scc1 L_pd{n}")
    e(f"s_add_u32 s{S_POLL}, s{S_POLL}, 1")
    e(f"s_cmp_ge_u32 s{S_POLL}, {CFG['POLL_MAX']}")
    e(f"s_cbranch_scc1 L_pd{n}")
    e(f"s_sleep {slp if slp is not None else CFG['SLEEP']}")
    e(f"buffer_load_dwordx4 {vr(vdst)}, v{vaddr}, {srd(S_WS)}, s{s_addr} offen sc1")
    e("s_waitcnt vmcnt(0)")
    e(f"s_branch L_pc{n}")
    e.label(f"L_pd{n}")


def lds_set(e, word_sgpr_or_int, val=1):
    if isinstance(word_sgpr_or_int, int):
        e(f"v_mov_b32 v{TMP[0]}, {L_FL + 4 * word_sgpr_or_int}")
    else:
        e(f"s_lshl_b32 s{T[0]}, {word_sgpr_or_int}, 2")
        e(f"s_add_u32 s{T[0]}, s{T[0]}, {L_FL}")
        e(f"v_mov_b32 v{TMP[0]}, s{T[0]}")
    e(f"v_mov_b32 v{TMP[1]}, {val}")
    e("s_mov_b64 exec, 1")
    t = e.lg(f"ds_write_b32 v{TMP[0]}, v{TMP[1]}")
    e("s_mov_b64 exec, -1")
    return t


def lds_wait4(e, word0):
    n = _lbl[0]
    _lbl[0] += 1
    e(f"v_mov_b32 v{TMP[0]}, {L_FL + 4 * word0}")
    e(f"s_mov_b32 s{S_POLL}, 0")
    e.label(f"L_lw{n}")
    e(f"ds_read_b128 {vr(V_PD)}, v{TMP[0]}")
    e("s_waitcnt lgkmcnt(0)")
    e(f"v_and_b32 v{V_PD}, v{V_PD}, v{V_PD + 1}")
    e(f"v_and_b32 v{V_PD + 2}, v{V_PD + 2}, v{V_PD + 3}")
    e(f"v_and_b32 v{V_PD}, v{V_PD}, v{V_PD + 2}")
    e(f"v_cmp_eq_u32 vcc, 1, v{V_PD}")
    e("s_nop 1")
    e("s_cmp_eq_u64 vcc, -1")
    e(f"s_cbranch_scc1 L_ld{n}")
    e(f"s_add_u32 s{S_POLL}, s{S_POLL}, 1")
    e(f"s_cmp_ge_u32 s{S_POLL}, {CFG['POLL_MAX'] * 8}")
    e(f"s_cbranch_scc1 L_ld{n}")
    e("s_sleep 1")
    e(f"s_branch L_lw{n}")
    e.label(f"L_ld{n}")
    e.wait_all(vm=False, lg=True)


def lds_wait1(e, s_word):
    n = _lbl[0]
    _lbl[0] += 1
    e(f"s_lshl_b32 s{T[0]}, s{s_word}, 2")
    e(f"s_add_u32 s{T[0]}, s{T[0]}, {L_FL}")
    e(f"v_mov_b32 v{TMP[4]}, s{T[0]}")
    e(f"s_mov_b32 s{S_POLL}, 0")
    e.label(f"L_lw{n}")
    e(f"ds_read_b32 v{V_PD}, v{TMP[4]}")
    e("s_waitcnt lgkmcnt(0)")
    e(f"v_cmp_eq_u32 vcc, 1, v{V_PD}")
    e("s_nop 1")
    e("s_cmp_eq_u64 vcc, -1")
    e(f"s_cbranch_scc1 L_ld{n}")
    e(f"s_add_u32 s{S_POLL}, s{S_POLL}, 1")
    e(f"s_cmp_ge_u32 s{S_POLL}, {CFG['POLL_MAX'] * 8}")
    e(f"s_cbranch_scc1 L_ld{n}")
    e(f"s_branch L_lw{n}")
    e.label(f"L_ld{n}")
    e.wait_all(vm=False, lg=True)


def lds_wait1i(e, word, slp=1):
    n = _lbl[0]
    _lbl[0] += 1
    e(f"v_mov_b32 v{TMP[4]}, {L_FL + 4 * word}")
    e(f"s_mov_b32 s{S_POLL}, 0")
    e.label(f"L_lw{n}")
    e(f"ds_read_b32 v{V_PD}, v{TMP[4]}")
    e("s_waitcnt lgkmcnt(0)")
    e(f"v_cmp_eq_u32 vcc, 1, v{V_PD}")
    e("s_nop 1")
    e("s_cmp_eq_u64 vcc, -1")
    e(f"s_cbranch_scc1 L_ld{n}")
    e(f"s_add_u32 s{S_POLL}, s{S_POLL}, 1")
    e(f"s_cmp_ge_u32 s{S_POLL}, {CFG['POLL_MAX'] * 8}")
    e(f"s_cbranch_scc1 L_ld{n}")
    e(f"s_sleep {slp}")
    e(f"s_branch L_lw{n}")
    e.label(f"L_ld{n}")
    e.wait_all(vm=False, lg=True)


def poll_one(e, vaddr, s_addr, word, slp=None):
    n = _lbl[0]
    _lbl[0] += 1
    e(f"s_cmp_lg_u32 s{S_WAVE}, 0")
    e(f"s_cbranch_scc1 L_po{n}")
    e(f"buffer_load_dwordx4 {vr(V_PD)}, v{vaddr}, {srd(S_WS)}, s{s_addr} offen sc1")
    e("s_waitcnt vmcnt(0)")
    poll_check(e, None, vaddr, s_addr, V_PD, slp)
    e(f"v_mov_b32 v{TMP[0]}, {L_FL + 4 * word}")
    e(f"v_mov_b32 v{TMP[1]}, 1")
    e(f"ds_write_b32 v{TMP[0]}, v{TMP[1]}")
    e(f"s_branch L_pe{n}")
    e.label(f"L_po{n}")
    lds_wait1i(e, word)
    e.label(f"L_pe{n}")
    e.wait_all(vm=False, lg=True)


def unpack(e, dst, src, hi):
    if hi:
        e(f"v_and_b32 v{dst}, s{S_MASKHI}, v{src}")
    else:
        e(f"v_lshlrev_b32 v{dst}, 16, v{src}")


def round2(e, a, b, tmp):
    e(f"v_cvt_pk_bf16_f32 v{tmp}, v{a}, v{b}")
    e(f"v_lshlrev_b32 v{a}, 16, v{tmp}")
    e(f"v_and_b32 v{b}, s{S_MASKHI}, v{tmp}")


def spread(gaps, L, lo, hi):
    n = len(L)
    for idx, ins in enumerate(L):
        gaps[lo + idx * (hi - lo) // n].L.append(ins)


def setup(e):
    if CFG["STAMPS"] in (True, 2):
        e("s_memrealtime vcc")
    e("s_cmp_ge_u32 s2, 256")
    e("s_cbranch_scc1 L_end")
    ptrs = [(S_WG, 56), (S_WU, 64), (S_X, 0), (S_K, 8), (S_V, 16), (S_SH, 24), (S_WS, 104), (S_SSM, 32), (S_DD, 40),
            (S_WD, 72), (S_GW, 80), (S_OUT, 88), (S_HST, 104)]
    for r, off in ptrs:
        e(f"s_load_dwordx2 s[{r}:{r + 1}], s[0:1], {off}")
    sizes = {S_X: 0x200000, S_K: 0x200000, S_V: 0x200000, S_SH: 4096, S_SSM: 0x200000, S_WG: 512 * 2752,
             S_WU: 512 * 2752, S_WD: 1376 * 1024, S_GW: 1024, S_OUT: 0x200000, S_WS: WS_SIZE, S_HST: WS_SIZE,
             S_DD: 1024}
    for r, sz in sizes.items():
        e(f"s_mov_b32 s{r + 2}, {sz:#x}")
        e(f"s_mov_b32 s{r + 3}, 0x00020000")
    e(f"v_lshrrev_b32 v{TMP[0]}, 6, v0")
    e(f"v_and_b32 v{V_LANE}, 63, v0")
    e(f"v_readfirstlane_b32 s{T[13]}, v{TMP[0]}")
    e(f"s_mov_b32 s{S_U}, s2")
    e(f"s_and_b32 s{T[0]}, s2, 7")
    e(f"s_lshr_b32 s{T[1]}, s2, 3")
    e(f"s_and_b32 s{T[2]}, s{T[1]}, 7")
    e(f"s_lshr_b32 s{T[3]}, s{T[1]}, 3")
    e(f"s_and_b32 s{T[4]}, s{T[0]}, 1")
    e(f"s_lshr_b32 s{T[5]}, s{T[0]}, 1")
    e(f"s_lshl_b32 s{S_GI}, s{T[4]}, 3")
    e(f"s_add_u32 s{S_GI}, s{S_GI}, s{T[2]}")
    e(f"s_lshl_b32 s{S_GJ}, s{T[5]}, 2")
    e(f"s_add_u32 s{S_GJ}, s{S_GJ}, s{T[3]}")
    e(f"s_lshl_b32 s{S_I2}, s{T[5]}, 3")
    e(f"s_add_u32 s{S_I2}, s{S_I2}, s{T[2]}")
    e(f"s_lshl_b32 s{S_N2}, s{T[4]}, 2")
    e(f"s_add_u32 s{S_N2}, s{S_N2}, s{T[3]}")
    e(f"s_and_b32 s{S_WAVE}, s{T[13]}, 3")
    e(f"s_mov_b32 s{S_MASKHI}, 0xffff0000")
    e(f"v_lshlrev_b32 v{V_L16}, 4, v{V_LANE}")
    if CFG["STAMPS"]:
        e(f"s_lshl_b32 s{S_STI}, s2, 3")
        e(f"s_add_u32 s{S_STI}, s{S_STI}, s{T[13]}")
        if CFG["STAMPS"] != 3:
            e(f"s_lshl_b32 s{S_STI}, s{S_STI}, 8")
            e(f"s_add_u32 s{S_STI}, s{S_STI}, {WS_STAMP:#x}")
    e(f"s_lshl_b32 s{S_XSOFF}, s{S_GI}, 17")
    e(f"s_lshl_b32 s{T[0]}, s{S_WAVE}, 15")
    e(f"s_add_u32 s{S_XSOFF}, s{S_XSOFF}, s{T[0]}")
    e(f"s_lshr_b32 s{T[0]}, s{S_WAVE}, 1")
    e(f"s_lshl_b32 s{S_CH}, s{S_U}, 1")
    e(f"s_add_u32 s{S_CH}, s{S_CH}, s{T[0]}")
    e(f"s_cmp_ge_u32 s{T[13]}, 4")
    e("s_cbranch_scc1 L_loader")


def misc_loads(e, need_d):
    e(f"v_mov_b32 v{TMP[0]}, 0")
    e(f"s_mov_b32 s{T[0]}, {FL_EPOCH:#x}")
    toks = [e.vm(f"buffer_load_dword v{V_EPO}, v{TMP[0]}, {srd(S_WS)}, s{T[0]} offen sc1")]
    if need_d:
        e(f"s_lshl_b32 s{T[1]}, s{S_U}, 2")
        toks.append(e.vm(f"buffer_load_dword v{V_H01}, v{TMP[0]}, {srd(S_DD)}, s{T[1]} offen"))
    return toks


def misc_use(e, toks, need_d):
    e.wait(vm=toks)
    e(f"v_readfirstlane_b32 s{S_TAG}, v{V_EPO}")
    if need_d:
        e(f"v_readfirstlane_b32 s{T[0]}, v{V_H01}")
    e("s_nop 3")
    e(f"s_add_u32 s{S_TAG}, s{S_TAG}, {TAGK:#x}")
    if need_d:
        e(f"s_lshl_b32 s{T[2]}, s{T[0]}, 16")
        e(f"s_and_b32 s{T[3]}, s{T[0]}, 0xffff0000")
        e(f"s_cmp_lt_u32 s{S_WAVE}, 2")
        e(f"s_cselect_b32 s{S_DF}, s{T[2]}, s{T[3]}")


def out_addr(e):
    a, b = TMP[0], TMP[1]
    e(f"v_lshrrev_b32 v{a}, 3, v0")
    e(f"v_and_b32 v{b}, 7, v0")
    e(f"v_lshlrev_b32 v{b}, 4, v{b}")
    e(f"v_lshl_add_u32 v{a}, v{a}, 10, v{b}")
    e(f"s_lshl_b32 s{T[0]}, s{S_I2}, 16")
    e(f"s_lshl_b32 s{T[1]}, s{S_N2}, 7")
    e(f"s_add_u32 s{T[0]}, s{T[0]}, s{T[1]}")
    e(f"v_add_u32 v{V_OUTO}, s{T[0]}, v{a}")


A_PK, A_PV = 56, 76
Q_RAW, Q_SH, Q_KC, Q_VV, Q_S4, Q_P, Q_W, Q_SA = 128, 136, 140, 145, 147, 151, 156, 157


def prep_a(e):
    a, b = TMP[0], TMP[1]
    AD = 128
    e(f"v_and_b32 v{a}, 7, v0")
    e(f"v_lshrrev_b32 v{b}, 3, v0")
    e(f"v_lshlrev_b32 v{a}, 4, v{a}")
    e(f"v_lshl_add_u32 v{a}, v{b}, 11, v{a}")
    e(f"s_lshl_b32 s{T[0]}, s{S_I2}, 16")
    e(f"s_lshl_b32 s{T[1]}, s{S_N2}, 7")
    e(f"s_add_u32 s{T[0]}, s{T[0]}, s{T[1]}")
    e(f"s_sub_u32 s{T[0]}, s{T[0]}, 3072")
    e(f"v_add_u32 v{AD}, s{T[0]}, v{a}")
    for m in range(1, 5):
        e(f"v_add_u32 v{AD + m}, {1024 * m}, v{AD}")
    e.wait_all(vm=False, lg=True)
    stamp(e, 0)
    if CFG["TOUCH2"]:
        e(f"v_lshrrev_b32 v{a}, 3, v{V_LANE}")
        e(f"v_lshlrev_b32 v{a}, 10, v{a}")
        e(f"v_and_b32 v{b}, 7, v{V_LANE}")
        e(f"v_lshl_add_u32 v{a}, v{b}, 7, v{a}")
        e(f"s_and_b32 s{T[0]}, s{S_GJ}, 3")
        e(f"s_lshl_b32 s{T[0]}, s{T[0]}, 15")
        e(f"s_lshl_b32 s{T[1]}, s{S_WAVE}, 13")
        e(f"s_add_u32 s{T[0]}, s{T[0]}, s{T[1]}")
        e(f"s_lshl_b32 s{T[1]}, s{S_GI}, 17")
        e(f"s_add_u32 s{T[0]}, s{T[0]}, s{T[1]}")
        e(f"v_mul_u32_u24 v{b}, 2752, v{V_LANE}")
        e(f"s_and_b32 s{T[2]}, s{S_GI}, 7")
        e(f"s_mul_i32 s{T[2]}, s{T[2]}, {64 * 2752}")
        e(f"s_mul_i32 s{T[3]}, s{S_GJ}, 192")
        e(f"s_add_u32 s{T[2]}, s{T[2]}, s{T[3]}")
        e(f"s_lshr_b32 s{T[3]}, s{S_WAVE}, 1")
        e(f"s_mul_i32 s{T[3]}, s{T[3]}, 188")
        e(f"s_add_u32 s{T[2]}, s{T[2]}, s{T[3]}")
        if CFG["TDELAY"]:
            e(f"s_sleep {CFG['TDELAY']}")
        e.vm(f"buffer_load_dword v{V_PD}, v{a}, {srd(S_X)}, s{T[0]} offen")
        e(f"s_bitcmp1_b32 s{S_WAVE}, 0")
        e("s_cbranch_scc1 L_t2u")
        e(f"buffer_load_dword v{V_PD + 1}, v{b}, {srd(S_WG)}, s{T[2]} offen")
        e("s_branch L_t2j")
        e.label("L_t2u")
        e(f"buffer_load_dword v{V_PD + 1}, v{b}, {srd(S_WU)}, s{T[2]} offen")
        e.label("L_t2j")
        e.vm("s_nop 0")
    if CFG["PDELAY"]:
        e(f"s_sleep {CFG['PDELAY']}")
    toks = []
    for m in range(5):
        toks.append(e.vm(f"buffer_load_dwordx4 {ar(A_PK + 4 * m)}, v{AD + m}, {srd(S_K)}, 0 offen{CFG['NTK']}"))
    for m in range(2):
        toks.append(e.vm(f"buffer_load_dwordx4 {ar(A_PV + 4 * m)}, v{AD + 3 + m}, {srd(S_V)}, 0 offen{CFG['NTV']}"))
    e(f"s_mov_b32 m0, {L_SH}")
    e(f"s_lshl_b32 s{T[1]}, s{S_N2}, 9")
    toks.append(e.vm(f"buffer_load_dwordx4 v{V_L16}, {srd(S_SH)}, s{T[1]} offen lds"))
    mt = misc_loads(e, False)
    e(";;SPLIT")
    c_addr(e)
    w = Q_W
    e(f"v_lshrrev_b32 v{b}, 3, v0")
    e(f"v_sub_u32 v{b}, 31, v{b}")
    e(f"v_lshrrev_b32 v{w}, 2, v{b}")
    e(f"v_and_b32 v{TMP[3]}, 7, v0")
    e(f"v_xor_b32 v{w}, v{w}, v{TMP[3]}")
    e(f"v_lshlrev_b32 v{w}, 4, v{w}")
    e(f"v_and_b32 v{b}, 3, v{b}")
    e(f"v_lshl_add_u32 v{w}, v{b}, 2, v{w}")
    e(f"v_lshl_add_u32 v{w}, v{TMP[3]}, 10, v{w}")
    e(f"v_add_u32 v{w}, {L_PT}, v{w}")
    e(f"v_lshlrev_b32 v{Q_SA}, 6, v{TMP[3]}")
    e(f"v_add_u32 v{Q_SA}, {L_SH}, v{Q_SA}")
    return toks, mt


def prep_compute(toks):
    e = Em()
    e.wait(vm=toks)
    wr = []
    for q in range(4):
        sh = e.lg(f"ds_read_b128 {vr(Q_SH)}, v{Q_SA} offset:{16 * q}")
        for m in range(5):
            e(f"v_accvgpr_read_b32 v{Q_RAW + m}, a{A_PK + 4 * m + q}")
        for m in range(2):
            e(f"v_accvgpr_read_b32 v{Q_RAW + 5 + m}, a{A_PV + 4 * m + q}")
        e.wait(lg=sh)
        for hi in range(2):
            c = 2 * q + hi
            kc = [Q_KC + m for m in range(5)]
            vv = [Q_VV, Q_VV + 1]
            s4 = [Q_S4 + j for j in range(4)]
            p0, p1, a0, a1, tp = Q_P, Q_P + 1, Q_P + 2, Q_P + 3, Q_P + 4
            for m in range(5):
                unpack(e, kc[m], Q_RAW + m, hi)
            for m in range(2):
                unpack(e, vv[m], Q_RAW + 5 + m, hi)
            for j in range(4):
                unpack(e, s4[j], Q_SH + 2 * hi + (j >> 1), j & 1)
            e(f"v_mul_f32 v{a0}, v{kc[0]}, v{s4[3]}")
            e(f"v_mul_f32 v{a1}, v{kc[1]}, v{s4[3]}")
            if CFG["EMU_PREP"]:
                round2(e, a0, a1, tp)
                for tt in range(1, 4):
                    e(f"v_mul_f32 v{p0}, v{kc[tt]}, v{s4[3 - tt]}")
                    e(f"v_mul_f32 v{p1}, v{kc[tt + 1]}, v{s4[3 - tt]}")
                    round2(e, p0, p1, tp)
                    e(f"v_add_f32 v{a0}, v{a0}, v{p0}")
                    e(f"v_add_f32 v{a1}, v{a1}, v{p1}")
                    round2(e, a0, a1, tp)
            else:
                for tt in range(1, 4):
                    e(f"v_fmac_f32 v{a0}, v{kc[tt]}, v{s4[3 - tt]}")
                    e(f"v_fmac_f32 v{a1}, v{kc[tt + 1]}, v{s4[3 - tt]}")
            e(f"v_mul_f32 v{a0}, v{a0}, v{vv[0]}")
            e(f"v_mul_f32 v{a1}, v{a1}, v{vv[1]}")
            e(f"v_cvt_pk_bf16_f32 v{p0}, v{a1}, v{a0}")
            wr.append(e.lg(f"ds_write_b32 v{Q_W}, v{p0} offset:{c * 128}"))
    return e, wr


def prep_rb_addr(e):
    a, b = TMP[0], TMP[1]
    RA, RB, RG = V_ET + 8, V_ET + 9, V_ET + 10
    e(f"v_lshrrev_b32 v{b}, 3, v0")
    e(f"v_lshrrev_b32 v{a}, 6, v0")
    e(f"v_and_b32 v{RG}, 7, v0")
    e(f"v_xor_b32 v{a}, v{a}, v{RG}")
    e(f"v_lshlrev_b32 v{a}, 4, v{a}")
    e(f"v_lshl_add_u32 v{a}, v{b}, 7, v{a}")
    e(f"v_xor_b32 v{RB}, 64, v{a}")
    e(f"v_add_u32 v{RA}, {L_PT}, v{a}")
    e(f"v_add_u32 v{RB}, {L_PT}, v{RB}")
    e(f"v_lshlrev_b32 v{RG}, 4, v{RG}")
    e(f"v_lshl_add_u32 v{RG}, v{b}, 12, v{RG}")


def prep_readback(e):
    RA, RB = V_ET + 8, V_ET + 9
    return [e.lg(f"ds_read_b128 {vr(V_ET)}, v{RA}"),
            e.lg(f"ds_read_b128 {vr(V_ET + 4)}, v{RB} offset:4096")]


def prep_store(e, rd):
    RG = V_ET + 10
    e(f"s_lshl_b32 s{T[0]}, s{S_N2}, 18")
    e(f"s_lshl_b32 s{T[1]}, s{S_I2}, 7")
    e(f"s_sub_u32 s{T[0]}, s{T[0]}, s{T[1]}")
    e(f"s_add_u32 s{T[0]}, s{T[0]}, {WS_KV + 3968:#x}")
    e(f"s_add_u32 s{T[1]}, s{T[0]}, {32 * 4096:#x}")
    e.wait(lg=rd)
    return [e.vm(f"buffer_store_dwordx4 {vr(V_ET)}, v{RG}, {srd(S_WS)}, s{T[0]} offen sc1"),
            e.vm(f"buffer_store_dwordx4 {vr(V_ET + 4)}, v{RG}, {srd(S_WS)}, s{T[1]} offen sc1")]


def prep_flag(e, toks):
    e.wait(vm=toks)
    e(f"s_lshl_b32 s{T[0]}, s{S_N2}, 9")
    e(f"s_lshl_b32 s{T[1]}, s{S_I2}, 4")
    e(f"s_add_u32 s{T[0]}, s{T[0]}, s{T[1]}")
    e(f"s_lshl_b32 s{T[1]}, s{S_WAVE}, 2")
    e(f"s_add_u32 s{T[0]}, s{T[0]}, s{T[1]}")
    e(f"s_add_u32 s{T[0]}, s{T[0]}, {FL_P:#x}")
    return flag_store(e, T[0])


def c_addr(e):
    a, b, c = TMP[0], TMP[1], TMP[2]
    e(f"v_lshrrev_b32 v{a}, 5, v{V_LANE}")
    e(f"v_lshlrev_b32 v{a}, 3, v{a}")
    e(f"v_bfe_u32 v{b}, v{V_LANE}, 2, 2")
    e(f"v_add_u32 v{a}, v{a}, v{b}")
    e(f"v_mul_u32_u24 v{a}, 192, v{a}")
    e(f"v_bfe_u32 v{b}, v{V_LANE}, 4, 1")
    e(f"v_lshl_add_u32 v{a}, v{b}, 5, v{a}")
    e(f"v_and_b32 v{b}, 3, v{V_LANE}")
    e(f"v_lshl_add_u32 v{a}, v{b}, 3, v{a}")
    for s in range(3):
        e(f"v_add_u32 v{V_WTR + s}, {PHYS[s]}, v{a}")
    e(f"v_bfe_u32 v{a}, v{V_LANE}, 3, 2")
    e(f"v_mul_u32_u24 v{a}, 1040, v{a}")
    e(f"v_and_b32 v{b}, 7, v{V_LANE}")
    e(f"v_lshl_add_u32 v{a}, v{b}, 7, v{a}")
    e(f"v_lshrrev_b32 v{b}, 5, v{V_LANE}")
    e(f"v_lshl_add_u32 v{a}, v{b}, 4, v{a}")
    e(f"s_mul_i32 s{T[0]}, s{S_WAVE}, 4160")
    e(f"v_add_u32 v{a}, s{T[0]}, v{a}")
    for s in range(3):
        e(f"v_add_u32 v{V_XRD + s}, {PHYS[s] + 24576}, v{a}")
    c0 = -2.0 * math.sqrt(2.0 / math.pi) * math.log2(math.e)
    e(f"v_mov_b32 v{V_C0}, {f32hex(c0)}")
    e(f"s_mov_b32 s{S_C1}, {f32hex(c0 * 0.044715)}")
    e(f"s_lshl_b32 s{T[0]}, s{S_GI}, 2")
    e(f"s_add_u32 s{T[0]}, s{T[0]}, s{S_WAVE}")
    e(f"s_mul_i32 s{T[1]}, s{T[0]}, 43")
    e(f"s_mul_i32 s{T[2]}, s{S_GJ}, 3")
    e(f"s_add_u32 s{T[1]}, s{T[1]}, s{T[2]}")
    e(f"s_lshl_b32 s{S_HOFF}, s{T[1]}, 11")
    e(f"s_lshr_b32 s{T[1]}, s{T[0]}, 1")
    e(f"s_lshl_b32 s{T[1]}, s{T[1]}, 9")
    e(f"s_and_b32 s{T[0]}, s{T[0]}, 1")
    e(f"s_lshl_b32 s{T[2]}, s{S_GJ}, 1")
    e(f"s_add_u32 s{T[0]}, s{T[0]}, s{T[2]}")
    e(f"s_lshl_b32 s{T[0]}, s{T[0]}, 2")
    e(f"s_add_u32 s{T[0]}, s{T[0]}, s{T[1]}")
    e(f"s_add_u32 s{S_FHOFF}, s{T[0]}, {FL_H:#x}")
    wd_addr(e, 0)
    out_addr(e)


def conv_addr(e):
    a, b, c = TMP[0], TMP[1], TMP[2]
    e(f"s_lshr_b32 s{T[0]}, s{S_WAVE}, 1")
    e(f"s_and_b32 s{T[1]}, s{S_WAVE}, 1")
    e(f"v_and_b32 v{a}, 15, v{V_LANE}")
    e(f"v_lshrrev_b32 v{b}, 4, v{V_LANE}")
    e(f"v_lshlrev_b32 v{c}, 2, v{b}")
    e(f"v_sub_u32 v{c}, v{c}, v{a}")
    e(f"v_add_u32 v{c}, 63, v{c}")
    e(f"v_mul_u32_u24 v{c}, 80, v{c}")
    e(f"s_mul_i32 s{T[2]}, s{T[0]}, 6400")
    e(f"s_mul_i32 s{T[3]}, s{T[1]}, 160")
    e(f"s_add_u32 s{T[2]}, s{T[2]}, s{T[3]}")
    e(f"s_add_u32 s{T[2]}, s{T[2]}, {L_UR - 3840}")
    e(f"v_add_u32 v{V_F}, s{T[2]}, v{c}")
    e(f"v_add_u32 v{a}, 1, v{a}")
    e(f"v_and_b32 v{V_SHF}, 1, v{a}")
    e(f"v_lshlrev_b32 v{V_SHF}, 4, v{V_SHF}")
    e(f"v_bfe_u32 v{c}, v{a}, 1, 1")
    e(f"v_mul_u32_u24 v{c}, 6208, v{c}")
    e(f"v_and_b32 v{a}, 28, v{a}")
    e(f"v_lshl_add_u32 v{c}, v{a}, 1, v{c}")
    e(f"v_mul_u32_u24 v{b}, 384, v{b}")
    e(f"v_add_u32 v{c}, v{c}, v{b}")
    e(f"s_mul_i32 s{T[2]}, s{T[0]}, 12416")
    e(f"s_lshl_b32 s{T[3]}, s{T[1]}, 7")
    e(f"s_add_u32 s{T[2]}, s{T[2]}, s{T[3]}")
    e(f"s_add_u32 s{T[2]}, s{T[2]}, {L_HC}")
    e(f"v_add_u32 v{V_H}, s{T[2]}, v{c}")


def wd_addr(e, role):
    a, b, c = TMP[0], TMP[1], TMP[2]
    e(f"v_lshrrev_b32 v{a}, 3, v{V_LANE}")
    e(f"v_bfe_u32 v{b}, v{V_LANE}, 4, 1")
    e(f"v_lshlrev_b32 v{b}, 2, v{b}")
    e(f"v_and_b32 v{c}, 7, v{V_LANE}")
    e(f"v_xor_b32 v{c}, v{c}, v{b}")
    e(f"v_lshlrev_b32 v{c}, 4, v{c}")
    e(f"v_lshl_add_u32 v{c}, v{a}, 10, v{c}")
    e(f"s_lshl_b32 s{T[0]}, s{S_N2}, 7")
    e(f"v_add_u32 v{V_WDDMA}, s{T[0]}, v{c}")
    for m in range(1, 4):
        e(f"v_add_u32 v{V_WDDMA + m}, {m * (8192 - 1024)}, v{V_WDDMA}")
    e(f"s_lshl_b32 s{S_WDBASE}, s{S_WAVE}, 12")
    e(f"s_mov_b32 s{T[1]}, s{S_WDBASE}")
    e(f"v_lshrrev_b32 v{a}, 5, v{V_LANE}")
    e(f"v_lshlrev_b32 v{a}, 9, v{a}")
    e(f"v_bfe_u32 v{b}, v{V_LANE}, 2, 2")
    e(f"v_lshl_add_u32 v{a}, v{b}, 7, v{a}")
    e(f"v_bfe_u32 v{b}, v{V_LANE}, 4, 1")
    e(f"v_lshl_add_u32 v{a}, v{b}, 5, v{a}")
    e(f"v_and_b32 v{b}, 3, v{V_LANE}")
    e(f"v_lshl_add_u32 v{a}, v{b}, 3, v{a}")
    e(f"v_bfe_u32 v{b}, v{V_LANE}, 3, 1")
    e(f"v_lshl_add_u32 v{a}, v{b}, 6, v{a}")
    e(f"v_add_u32 v{V_WDTR}, s{T[1]}, v{a}")
    e(f"v_xor_b32 v{b}, 64, v{a}")
    e(f"v_add_u32 v{V_WDTR + 1}, s{T[1]}, v{b}")
    e(f"s_mul_i32 s{T[0]}, s{S_WAVE}, {3 * 2048}")
    for m in range(11):
        if m <= 2:
            e(f"s_add_u32 s{S_FT + m}, s{T[0]}, {12 * m * 2048}")
        elif m == 3:
            e(f"s_add_u32 s{S_FT + m}, s{T[0]}, {36 * 2048}")
            e(f"s_cmp_eq_u32 s{S_WAVE}, 3")
            e(f"s_cselect_b32 s{S_FT + m}, {1 * 2048}, s{S_FT + m}")
        elif m <= 6:
            e(f"s_add_u32 s{S_FT + m}, s{T[0]}, {(3 * (4 * m - 15) + 1) * 2048}")
        elif m == 7:
            e(f"s_add_u32 s{S_FT + m}, s{T[0]}, {(-1 * 2048) & 0xffffffff:#x}")
            e(f"s_cmp_eq_u32 s{S_WAVE}, 0")
            e(f"s_cselect_b32 s{S_FT + m}, {40 * 2048}, s{S_FT + m}")
        else:
            e(f"s_add_u32 s{S_FT + m}, s{T[0]}, {(3 * (4 * m - 29) + 2) * 2048}")
    e(f"s_mul_i32 s{S_XM0 if role == 0 else S_HOFF}, s{S_I2}, {86 * 2048}")


def w_tr(e, T_, idx):
    ft, mat = idx >> 1, idx & 1
    n, ts = T_ // 4, T_ % 4
    base = mat * 12288 + ts * 3072 + ft * 64
    vb = V_WTR + n % 3
    d = A_WF + 24 * (T_ % 2) + 4 * idx
    return [e.lg(f"ds_read_b64_tr_b16 {ar(d, 2)}, v{vb} offset:{base}"),
            e.lg(f"ds_read_b64_tr_b16 {ar(d + 2, 2)}, v{vb} offset:{base + 768}")]


def x_fr(e, T_):
    n, ts = T_ // 4, T_ % 4
    return e.lg(f"ds_read_b128 {ar(A_XF + 4 * (T_ % 2))}, v{V_XRD + n % 3} offset:{ts * 32}")


def g1_epilogue(e, ftl, mids=()):
    A = ACC_OF[ftl]
    e(f"s_mul_i32 s{T[6]}, s{S_GJ}, 3")
    e(f"s_cmp_lt_u32 s{T[6]}, {43 - ftl}")
    e(f"s_cselect_b32 s{S_HST + 2}, {WS_SIZE:#x}, 0")
    e(f"s_add_u32 s{T[7]}, s{S_HOFF}, {ftl * 2048}")
    toks = []
    for half in range(2):
        O = V_ET + 8 + 4 * half
        for pr in range(4):
            r = 8 * half + 2 * pr
            B = V_ET + 4 * (pr & 1)
            g0, g1, u0, u1 = A + r, A + r + 1, A + 16 + r, A + 16 + r + 1
            t0, t1, tp, tq = B, B + 1, B + 2, B + 3
            if CFG["EMU_G1"]:
                round2(e, g0, g1, tp)
            e(f"v_mul_f32 v{t0}, v{g0}, v{g0}")
            e(f"v_mul_f32 v{t1}, v{g1}, v{g1}")
            e(f"v_fma_f32 v{t0}, v{t0}, s{S_C1}, v{V_C0}")
            e(f"v_fma_f32 v{t1}, v{t1}, s{S_C1}, v{V_C0}")
            e(f"v_mul_f32 v{t0}, v{t0}, v{g0}")
            e(f"v_mul_f32 v{t1}, v{t1}, v{g1}")
            e(f"v_exp_f32 v{t0}, v{t0}")
            e(f"v_exp_f32 v{t1}, v{t1}")
            if CFG["EMU_G1"]:
                e(f"v_cvt_pk_bf16_f32 v{tq}, v{u0}, v{u1}")
            else:
                e(f"v_mul_f32 v{u0}, v{u0}, v{g0}")
            e(f"v_add_f32 v{t0}, 1.0, v{t0}")
            e(f"v_add_f32 v{t1}, 1.0, v{t1}")
            e(f"v_rcp_f32 v{t0}, v{t0}")
            e(f"v_rcp_f32 v{t1}, v{t1}")
            if CFG["EMU_G1"]:
                e(f"v_lshlrev_b32 v{u0}, 16, v{tq}")
                e(f"v_mul_f32 v{t0}, v{t0}, v{g0}")
                e(f"v_mul_f32 v{t1}, v{t1}, v{g1}")
                e(f"v_and_b32 v{u1}, s{S_MASKHI}, v{tq}")
                round2(e, t0, t1, tp)
            else:
                e(f"v_mul_f32 v{u1}, v{u1}, v{g1}")
            e(f"v_mul_f32 v{t0}, v{t0}, v{u0}")
            e(f"v_mul_f32 v{t1}, v{t1}, v{u1}")
            e(f"v_cvt_pk_bf16_f32 v{O + pr}, v{t0}, v{t1}")
        toks.append(e.vm(
            f"buffer_store_dwordx4 {vr(O)}, v{V_L16}, {srd(S_HST)}, s{T[7]} offen offset:{half * 1024} sc1"))
        if half < len(mids) and mids[half] is not None:
            mids[half](e)
    return toks


def h_flag(e, ftl, toks):
    e.wait(vm=toks)
    e(f"s_add_u32 s{T[0]}, s{S_FHOFF}, {ftl * 128}")
    return flag_store(e, T[0])


def g_path(e):
    GWR, GWU, G, TB = 128, 132, 140, 144
    gw = e.vm(f"buffer_load_dwordx4 {vr(GWR)}, v{V_L16}, {srd(S_GW)}, 0 offen")
    e(f"v_mov_b32 v{G}, 0")
    X0 = 32
    for half in range(2):
        xt = []
        for r in range(16):
            e(f"s_add_u32 s{T[1]}, s{S_XSOFF}, {(16 * half + r) * 1024}")
            xt.append(e.vm(f"buffer_load_dwordx4 {vr(X0 + 4 * r)}, v{V_L16}, {srd(S_X)}, s{T[1]} offen"))
        if half == 0:
            e.wait(vm=gw)
            for q in range(8):
                unpack(e, GWU + q, GWR + (q >> 1), q & 1)
        for r4 in range(0, 16, 4):
            e.wait(vm=xt[r4 + 3])
            accs = []
            for r in range(r4, r4 + 4):
                X = X0 + 4 * r
                tb = TB + 4 * (r - r4)
                acc = tb + 3
                for q in range(4):
                    e(f"v_lshlrev_b32 v{tb}, 16, v{X + q}")
                    e(f"v_and_b32 v{tb + 1}, s{S_MASKHI}, v{X + q}")
                    e(f"v_mul_f32 v{tb}, v{tb}, v{GWU + 2 * q}")
                    e(f"v_mul_f32 v{tb + 1}, v{tb + 1}, v{GWU + 1 + 2 * q}")
                    e(f"v_cvt_pk_bf16_f32 v{tb + 2}, v{tb}, v{tb + 1}")
                    e(f"v_lshlrev_b32 v{tb}, 16, v{tb + 2}")
                    e(f"v_and_b32 v{tb + 1}, s{S_MASKHI}, v{tb + 2}")
                    if q == 0:
                        e(f"v_add_f32 v{acc}, v{tb}, v{tb + 1}")
                    else:
                        e(f"v_add_f32 v{tb}, v{tb}, v{tb + 1}")
                        e(f"v_add_f32 v{acc}, v{acc}, v{tb}")
                accs.append(acc)
            for mod in ("row_shr:1 row_mask:0xf bank_mask:0xf bound_ctrl:0",
                        "row_shr:2 row_mask:0xf bank_mask:0xf bound_ctrl:0",
                        "row_shr:4 row_mask:0xf bank_mask:0xf bound_ctrl:0",
                        "row_shr:8 row_mask:0xf bank_mask:0xf bound_ctrl:0",
                        "row_bcast:15 row_mask:0xa bank_mask:0xf",
                        "row_bcast:31 row_mask:0xc bank_mask:0xf"):
                for acc in accs:
                    e(f"v_add_f32_dpp v{acc}, v{acc}, v{acc} {mod}")
            for i, acc in enumerate(accs):
                e(f"v_readlane_b32 s{T[2 + i]}, v{acc}, 63")
            for i, acc in enumerate(accs):
                e(f"v_writelane_b32 v{G}, s{T[2 + i]}, {16 * half + r4 + i}")
    a, b, c = TB, TB + 1, TB + 2
    e(f"v_cvt_pk_bf16_f32 v{a}, v{G}, v{G}")
    e(f"v_lshlrev_b32 v{a}, 16, v{a}")
    e(f"v_mul_f32 v{a}, {f32hex(-math.log2(math.e))}, v{a}")
    e(f"v_exp_f32 v{a}, v{a}")
    e(f"v_add_f32 v{a}, 1.0, v{a}")
    e(f"v_rcp_f32 v{a}, v{a}")
    e(f"v_cvt_pk_bf16_f32 v{a}, v{a}, v{a}")
    e(f"v_lshlrev_b32 v{a}, 16, v{a}")
    e(f"v_sub_f32 v{b}, 1.0, v{a}")
    e(f"v_cvt_pk_bf16_f32 v{a}, v{a}, v{b}")
    e(f"v_lshlrev_b32 v{c}, 2, v{V_LANE}")
    e(f"s_lshl_b32 s{T[0]}, s{S_GI}, 9")
    e(f"s_lshl_b32 s{T[1]}, s{S_WAVE}, 7")
    e(f"s_add_u32 s{T[0]}, s{T[0]}, s{T[1]}")
    e(f"s_add_u32 s{T[0]}, s{T[0]}, {WS_G:#x}")
    e("s_mov_b64 exec, 0xffffffff")
    st = e.vm(f"buffer_store_dword v{a}, v{c}, {srd(S_WS)}, s{T[0]} offen sc1")
    e("s_mov_b64 exec, -1")
    return st


def conv_hraw(e, p, nn):
    d = C_H + 20 * p + 4 * (nn % 5)
    off = p * 1536 + 16 * nn
    return [e.lg(f"ds_read_b64 {vr(d, 2)}, v{V_H} offset:{off}"),
            e.lg(f"ds_read_b64 {vr(d + 2, 2)}, v{V_H} offset:{off + 8}")]


def conv_align(e, p, nn):
    d = C_H + 20 * p + 4 * (nn % 5)
    nx = C_H + 20 * p + 4 * ((nn + 1) % 5)
    for k in range(3):
        e(f"v_alignbit_b32 v{d + k}, v{d + k + 1}, v{d + k}, v{V_SHF}")
    e(f"v_alignbit_b32 v{d + 3}, v{nx}, v{d + 3}, v{V_SHF}")


def conv_f(e, tt, delta):
    d = A_F + 16 * (tt % 2) + 4 * delta
    off = 1280 * (3 - delta) + 80 * (tt >> 2) + 16 * (tt & 3)
    return e.lg(f"ds_read_b128 {ar(d)}, v{V_F} offset:{off}")


def conv_epilogue(e):
    a, b, c, u = TMP[0], TMP[1], TMP[2], TMP[3]
    OA, OB, OC, OU = V_ET, V_ET + 1, V_ET + 2, V_ET + 3
    e(f"s_xor_b32 s{T[2]}, s{S_WAVE}, 1")
    e(f"s_lshl_b32 s{T[8]}, s{S_WAVE}, 12")
    e(f"s_add_u32 s{T[8]}, s{T[8]}, {L_EX}")
    e(f"s_lshl_b32 s{T[1]}, s{T[2]}, 12")
    e(f"s_add_u32 s{T[1]}, s{T[1]}, {L_EX}")
    e(f"v_add_u32 v{OA}, s{T[8]}, v{V_L16}")
    e(f"v_add_u32 v{OB}, s{T[1]}, v{V_L16}")
    e(f"s_and_b32 s{T[3]}, s{S_WAVE}, 1")
    A0, A1 = C_ACC, C_ACC + 16
    e(f"v_and_b32 v{OC}, 15, v{V_LANE}")
    e(f"v_sub_u32 v{OU}, 47, v{OC}")
    e(f"v_mul_u32_u24 v{OU}, 80, v{OU}")
    e(f"v_lshrrev_b32 v{TMP[4]}, 4, v{V_LANE}")
    e(f"v_lshlrev_b32 v{TMP[5]}, 3, v{TMP[4]}")
    e(f"v_sub_u32 v{OU}, v{OU}, v{TMP[5]}")
    e(f"s_lshr_b32 s{T[4]}, s{S_WAVE}, 1")
    e(f"s_mul_i32 s{T[4]}, s{T[4]}, 6400")
    e(f"s_mul_i32 s{T[5]}, s{T[3]}, 2560")
    e(f"s_sub_u32 s{T[4]}, s{T[4]}, s{T[5]}")
    e(f"s_add_u32 s{T[4]}, s{T[4]}, {L_UR + 24}")
    e(f"v_add_u32 v{OU}, s{T[4]}, v{OU}")
    e(f"v_lshlrev_b32 v{OC}, 6, v{OC}")
    e(f"v_add_u32 v{OC}, v{OC}, v{TMP[5]}")
    e(f"v_add_u32 v{OC}, s{T[8]}, v{OC}")
    e(f"s_lshl_b32 s{T[4]}, s{S_CH}, 12")
    e(f"s_lshl_b32 s{T[5]}, s{T[3]}, 11")
    e(f"s_add_u32 s{T[4]}, s{T[4]}, s{T[5]}")
    e(f"s_add_u32 s{T[4]}, s{T[4]}, {WS_Y2:#x}")
    e(f"s_cmp_eq_u32 s{T[3]}, 0")
    e("s_cbranch_scc1 L_cv_noswap")
    for q in range(16):
        e(f"v_swap_b32 v{A0 + q}, v{A1 + q}")
    e.label("L_cv_noswap")
    e("s_nop 7")
    wr = [e.lg(f"ds_write_b128 v{OB}, {vr(A1 + 4 * q)} offset:{q * 1024}") for q in range(4)]
    RX, UU, t = C_H, C_H + 16, C_H + 24
    ur = {}
    for jj in range(2):
        for bb in range(2):
            ur[(jj, bb)] = e.lg(
                f"ds_read_b64 {vr(UU + 4 * jj + 2 * bb, 2)}, v{OU} offset:{(1 - jj) * 1280 + (1 - bb) * 32}")
    e.wait(lg=wr)
    e(f"s_add_u32 s{T[9]}, s{T[2]}, 4")
    lds_set(e, f"s{T[9]}")
    e(f"s_add_u32 s{T[9]}, s{S_WAVE}, 4")
    lds_wait1(e, T[9])
    rd = [e.lg(f"ds_read_b128 {vr(RX + 4 * q)}, v{OA} offset:{q * 1024}") for q in range(4)]
    outs = []
    for q in range(4):
        jj, bb = q >> 1, q & 1
        e.wait(lg=[rd[q], ur[(jj, bb)]])
        A = A0 + 4 * q
        U = UU + 4 * jj + 2 * bb
        for r in range(4):
            e(f"v_add_f32 v{A + r}, v{A + r}, v{RX + 4 * q + r}")
        round2(e, A, A + 1, t + 4)
        round2(e, A + 2, A + 3, t + 5)
        unpack(e, t, U + 1, 1)
        unpack(e, t + 1, U + 1, 0)
        unpack(e, t + 2, U, 1)
        unpack(e, t + 3, U, 0)
        for r in range(4):
            e(f"v_mul_f32 v{t + r}, s{S_DF}, v{t + r}")
        round2(e, t, t + 1, t + 4)
        round2(e, t + 2, t + 3, t + 5)
        for r in range(4):
            e(f"v_add_f32 v{A + r}, v{A + r}, v{t + r}")
        O = A1 + 2 * q
        e(f"v_cvt_pk_bf16_f32 v{O}, v{A}, v{A + 1}")
        e(f"v_cvt_pk_bf16_f32 v{O + 1}, v{A + 2}, v{A + 3}")
        outs.append(O)
    e.wait(lg=rd)
    for q in range(4):
        e.lg(f"ds_write_b64 v{OC}, {vr(outs[q], 2)} offset:{(q >> 1) * 1024 + (q & 1) * 32}")
    r0 = e.lg(f"ds_read_b128 {vr(RX)}, v{OA}")
    r1 = e.lg(f"ds_read_b128 {vr(RX + 4)}, v{OA} offset:1024")
    e.wait(lg=[r0, r1])
    return [e.vm(f"buffer_store_dwordx4 {vr(RX)}, v{V_L16}, {srd(S_WS)}, s{T[4]} offen sc1"),
            e.vm(f"buffer_store_dwordx4 {vr(RX + 4)}, v{V_L16}, {srd(S_WS)}, s{T[4]} offen offset:1024 sc1")]


def y_flag(e, toks):
    e.wait(vm=toks)
    e(f"s_lshl_b32 s{T[0]}, s{S_U}, 4")
    e(f"s_lshl_b32 s{T[1]}, s{S_WAVE}, 2")
    e(f"s_add_u32 s{T[0]}, s{T[0]}, s{T[1]}")
    e(f"s_add_u32 s{T[0]}, s{T[0]}, {FL_Y:#x}")
    return flag_store(e, T[0])


def y_stage(e):
    a, b, c, d = TMP[0], TMP[1], TMP[2], TMP[3]
    YD, YA = 96, 104
    e(f"s_lshl_b32 s{T[13]}, s{S_N2}, 9")
    e(f"s_add_u32 s{T[13]}, s{T[13]}, {FL_Y:#x}")
    e(f"v_add_u32 v{V_PA}, s{T[13]}, v{V_L16}")
    e(f"s_lshr_b32 s{T[13]}, s{S_I2}, 1")
    e(f"s_lshl_b32 s{T[13]}, s{T[13]}, 4")
    e(f"s_add_u32 s{T[13]}, s{T[13]}, {FL_G:#x}")
    e(f"v_mov_b32 v{a}, s{T[13]}")
    e(f"v_cmp_gt_u32 vcc, 32, v{V_LANE}")
    e(f"s_mov_b32 s{T[13]}, 0")
    e(f"v_cndmask_b32 v{V_PA}, v{a}, v{V_PA}, vcc")
    e(f"v_lshrrev_b32 v{b}, 3, v0")
    e(f"v_and_b32 v{d}, 7, v0")
    e(f"v_lshlrev_b32 v{a}, 4, v{d}")
    e(f"v_lshl_add_u32 v{YA}, v{b}, 12, v{a}")
    e(f"v_lshrrev_b32 v{c}, 6, v0")
    e(f"v_xor_b32 v{c}, v{c}, v{d}")
    e(f"v_lshlrev_b32 v{c}, 4, v{c}")
    e(f"v_lshl_add_u32 v{c}, v{b}, 7, v{c}")
    e(f"v_xor_b32 v{YA + 2}, 64, v{c}")
    e(f"v_add_u32 v{YA + 1}, {L_YT}, v{c}")
    e(f"v_add_u32 v{YA + 2}, {L_YT}, v{YA + 2}")
    e(f"s_lshl_b32 s{T[2]}, s{S_N2}, 18")
    e(f"s_lshl_b32 s{T[3]}, s{S_I2}, 7")
    e(f"s_add_u32 s{T[2]}, s{T[2]}, s{T[3]}")
    e(f"s_add_u32 s{T[2]}, s{T[2]}, {WS_Y2:#x}")
    e(f"s_add_u32 s{T[3]}, s{T[2]}, {32 * 4096:#x}")
    poll_one(e, V_PA, T[13], 15, 4)
    y0 = e.vm(f"buffer_load_dwordx4 {vr(YD)}, v{YA}, {srd(S_WS)}, s{T[2]} offen sc1")
    y1 = e.vm(f"buffer_load_dwordx4 {vr(YD + 4)}, v{YA}, {srd(S_WS)}, s{T[3]} offen sc1")
    e(f"v_lshlrev_b32 v{a}, 2, v{V_LANE}")
    e(f"s_lshl_b32 s{T[2]}, s{S_I2}, 8")
    e(f"s_add_u32 s{T[2]}, s{T[2]}, {WS_G:#x}")
    g0 = e.vm(f"buffer_load_dword v{YA + 3}, v{a}, {srd(S_WS)}, s{T[2]} offen sc1")
    e(f"v_add_u32 v{a}, {L_GT}, v{a}")
    e.wait(vm=[y0, y1, g0])
    e.lg(f"ds_write_b32 v{a}, v{YA + 3}")
    e.lg(f"ds_write_b128 v{YA + 1}, {vr(YD)}")
    e.lg(f"ds_write_b128 v{YA + 2}, {vr(YD + 4)} offset:4096")


B_Q, B_G = 140, 144 + 8


def qg_loads(e):
    a = TMP[0]
    e(f"v_lshrrev_b32 v{a}, 3, v0")
    e(f"v_lshlrev_b32 v{a}, 2, v{a}")
    e(f"s_lshl_b32 s{T[0]}, s{S_I2}, 8")
    e(f"s_add_u32 s{T[0]}, s{T[0]}, {WS_G:#x}")
    return [e.vm(f"buffer_load_dwordx4 {vr(BQ)}, v{V_OUTO}, {srd(S_X)}, 0 offen")]


BQ, BG = 28, 12


def blend(e, qgt):
    a, b, c, d = TMP[0], TMP[1], TMP[2], TMP[3]
    P, Y = 32, 96
    e(f"v_lshrrev_b32 v{b}, 3, v0")
    e(f"v_and_b32 v{d}, 7, v0")
    e(f"v_mul_u32_u24 v{a}, 272, v{b}")
    e(f"v_lshl_add_u32 v{a}, v{d}, 5, v{a}")
    e(f"v_add_u32 v{TMP[4]}, {L_P2L}, v{a}")
    e(f"v_lshrrev_b32 v{c}, 6, v0")
    e(f"v_xor_b32 v{c}, v{c}, v{d}")
    e(f"v_lshlrev_b32 v{c}, 4, v{c}")
    e(f"v_lshl_add_u32 v{c}, v{d}, 10, v{c}")
    e(f"v_lshlrev_b32 v{TMP[5]}, 2, v{b}")
    e(f"v_add_u32 v{TMP[5]}, {L_GT}, v{TMP[5]}")
    e(f"v_and_b32 v{b}, 7, v{b}")
    e(f"v_lshl_add_u32 v{c}, v{b}, 1, v{c}")
    e(f"v_add_u32 v{c}, {L_YT}, v{c}")
    e.wait_all(vm=False, lg=True)
    for q in range(8):
        e(f"v_mov_b32 v{Y + q}, 0")
    e("s_barrier")
    gr = e.lg(f"ds_read_b32 v{BG}, v{TMP[5]}")
    rd = []
    for wv in range(4):
        for h in range(2):
            rd.append(e.lg(f"ds_read_b128 {vr(P + 8 * wv + 4 * h)}, v{a} offset:{wv * 17408 + h * 16}"))
    for wv in range(4):
        for h in range(2):
            rd.append(e.lg(f"ds_read_b128 {vr(P + 32 + 8 * wv + 4 * h)}, v{TMP[4]} offset:{wv * 17408 + h * 16}"))
    yr = [e.lg(f"ds_read_u16_d16_hi v{Y + cc}, v{c} offset:{cc * 128}") for cc in range(8)]
    e.wait(vm=qgt, lg=gr)
    e(f"v_lshlrev_b32 v104, 16, v{BG}")
    e(f"v_and_b32 v105, s{S_MASKHI}, v{BG}")
    for pr in range(4):
        unpack(e, 112 + 2 * pr, BQ + pr, 0)
        unpack(e, 113 + 2 * pr, BQ + pr, 1)
    for k in range(4):
        e.wait(lg=rd[4 * k:4 * k + 4])
        for r in range(8):
            e(f"v_add_f32 v{P + 16 * k + r}, v{P + 16 * k + r}, v{P + 16 * k + 8 + r}")
    for r in range(8):
        e(f"v_add_f32 v{P + r}, v{P + r}, v{P + 16 + r}")
        e(f"v_add_f32 v{P + 32 + r}, v{P + 32 + r}, v{P + 48 + r}")
    for r in range(8):
        e(f"v_add_f32 v{P + r}, v{P + r}, v{P + 32 + r}")
    e.wait(lg=yr)
    for pr in range(4):
        b0, b1 = P + 2 * pr, P + 2 * pr + 1
        q0, q1, tp, tq = 112 + 2 * pr, 113 + 2 * pr, 106 + 2 * (pr & 1), 107 + 2 * (pr & 1)
        round2(e, b0, b1, tp)
        e(f"v_mul_f32 v{q0}, v{q0}, v{Y + 2 * pr}")
        e(f"v_mul_f32 v{q1}, v{q1}, v{Y + 2 * pr + 1}")
        e(f"v_mul_f32 v{b0}, v{b0}, v105")
        e(f"v_mul_f32 v{b1}, v{b1}, v105")
        round2(e, q0, q1, tq)
        e(f"v_mul_f32 v{q0}, v{q0}, v104")
        e(f"v_mul_f32 v{q1}, v{q1}, v104")
        round2(e, b0, b1, tp)
        round2(e, q0, q1, tq)
        e(f"v_add_f32 v{b0}, v{b0}, v{q0}")
        e(f"v_add_f32 v{b1}, v{b1}, v{q1}")
        e(f"v_cvt_pk_bf16_f32 v{P + 16 + pr}, v{b0}, v{b1}")
    e.vm(f"buffer_store_dwordx4 {vr(P + 16)}, v{V_OUTO}, {srd(S_OUT)}, 0 offen{CFG['NTO']}")


def c_body():
    e = Em()
    if CFG["CPRIO"]:
        e(f"s_setprio {CFG['CPRIO']}")
    ptoks, mt = prep_a(e)
    stamp(e, 1)
    e(f"s_cmp_eq_u32 s{S_GJ}, 15")
    e("s_cbranch_scc1 L_c_g")
    if CFG["PINLINE"]:
        pc, pwr = prep_compute(ptoks)
        e.extend(pc)
        misc_use(e, mt, False)
        prep_rb_addr(e)
        e.wait(lg=pwr)
    e("s_barrier")
    if CFG["GPRIO"]:
        e(f"s_setprio {CFG['GPRIO']}")
    NK = 32
    gaps = [Em() for _ in range(6 * NK)]
    trtok, xf = {}, {}
    xf[0] = x_fr(e, 0)
    for idx in range(6):
        trtok[(0, idx)] = w_tr(e, 0, idx)
    stamp(e, 2)
    if CFG["PINLINE"]:
        PB = -1
        prd = prep_readback(gaps[0])
        pst = prep_store(gaps[4], prd)
        prep_flag(gaps[6 * 8 + 2], pst)
    else:
        pc, pwr = prep_compute(ptoks)
        PB = CFG["PB"]
        spread(gaps, pc.L, 6 * CFG["PC0"], 6 * PB - 2)
        prep_rb_addr(gaps[6 * PB])
        prd = prep_readback(gaps[6 * PB + 1])
        misc_use(gaps[6 * PB + 3], mt, False)
        pst = prep_store(gaps[6 * PB + 5], prd)
        prep_flag(gaps[6 * (PB + 7) + 2], pst)
    for T_ in range(1, NK):
        xf[T_] = x_fr(gaps[6 * (T_ - 1)], T_)
        for idx in range(6):
            trtok[(T_, idx)] = w_tr(gaps[6 * (T_ - 1) + idx], T_, idx)
    for T_ in range(NK):
        if T_ in (8, 16, 24):
            stamp(e, 2 + T_ // 8)
        last = (T_ % 4 == 3) and T_ < NK - 5
        if T_ == 27 and CFG["S7F"]:
            lds_wait4(e, 32)
        if last:
            e.wait(lg=[t for idx in range(6) for t in trtok[(T_, idx)]] + [xf[T_]] + (pwr if T_ == PB else []))
            e("s_barrier")
        else:
            e.wait(lg=trtok[(T_, 0)] + trtok[(T_, 1)] + [xf[T_]])
        for idx in range(6):
            ft, mat = idx >> 1, idx & 1
            A = ACC_OF[ft] + 16 * mat
            if idx in (2, 4):
                e.wait(lg=trtok[(T_, idx)] + trtok[(T_, idx + 1)])
            c = "0" if T_ == 0 else vr(A, 16)
            e(f"v_mfma_f32_32x32x16_bf16 {vr(A, 16)}, {ar(A_WF + 24 * (T_ % 2) + 4 * idx)}, "
              f"{ar(A_XF + 4 * (T_ % 2))}, {c}")
            e.extend(gaps[6 * T_ + idx])
    ge = Em()
    ge.label("L_c_g")
    ge.wait_all()
    gpc, gwr = prep_compute([])
    ge.extend(gpc)
    misc_use(ge, [], False)
    prep_rb_addr(ge)
    ge.wait_all()
    ge("s_barrier")
    gps = prep_store(ge, prep_readback(ge))
    ge(f"s_add_u32 s{T[9]}, s{S_WAVE}, 8")
    lds_set(ge, f"s{T[9]}")
    prep_flag(ge, gps)
    for ftl in range(3):
        h_flag(ge, ftl, [])
    g_path(ge)
    ge.wait_all()
    ge(f"s_lshl_b32 s{T[0]}, s{S_GI}, 4")
    ge(f"s_lshl_b32 s{T[1]}, s{S_WAVE}, 2")
    ge(f"s_add_u32 s{T[0]}, s{T[0]}, s{T[1]}")
    ge(f"s_add_u32 s{T[0]}, s{T[0]}, {FL_G:#x}")
    flag_store(ge, T[0])
    ge.wait_all()
    ge("s_branch L_c_join2")
    e.L.append(("SUB", ge))
    e.label("L_c_join")
    stamp(e, 6)
    e(f"s_add_u32 s{T[9]}, s{S_WAVE}, 8")
    lds_set(e, f"s{T[9]}")
    ht, wtr, wdt, hl = {}, {}, {}, {}
    if CFG["EPRIO"]:
        e(f"s_setprio {CFG['EPRIO']}")
    ht[0] = g1_epilogue(e, 0)
    f0 = lambda em: h_flag(em, 0, ht[0])
    f1 = lambda em: h_flag(em, 1, ht[1])
    ht[1] = g1_epilogue(e, 1, mids=(None, f0) if CFG["FLATE"] else (f0,))
    stamp(e, 7)
    ht[2] = g1_epilogue(e, 2, mids=(None, f1) if CFG["FLATE"] else (f1,))
    if CFG["EPRIO"]:
        e("s_setprio 0")
    e.label("L_c_join2")
    stamp(e, 8)
    e(f"s_add_u32 s{T[9]}, s{S_WAVE}, 24")
    lds_wait1(e, T[9])
    for m in range(5):
        wtr[m] = wd_tr(e, m, CW_SET[m])
    h_flag(e, 2, ht[2])
    h_poll(e, 0)
    stamp(e, 9)
    for m in range(3):
        hl[m] = h_loads(e, m, CH_SET[m], S_XM0)
    for n in (5, 6):
        wdt[n] = wd_dma(e, n, n - 5)
    stamp(e, 10)
    h_poll(e, 1)
    for m in range(3, 5):
        hl[m] = h_loads(e, m, CH_SET[m], S_XM0)
    stamp(e, 11)
    for m in range(7):
        g2_slot(e, m == 0, CW_SET[m % 5], CH_SET[m % 5], hl[m], wtr[m], "a", 0)
        n = m + 5
        if n < 7:
            hl[n] = h_loads(e, n, CH_SET[n % 5], S_XM0)
            e.wait(vm=wdt[n])
            wtr[n] = wd_tr(e, n % 5, CW_SET[n % 5])
        if m == 2:
            e.wait(lg=wtr[6])
            e(f"s_add_u32 s{T[9]}, s{S_WAVE}, 20")
            lds_set(e, f"s{T[9]}")
    stamp(e, 12)
    qgt = qg_loads(e)
    lds_wait4(e, 20)
    e(f"s_mul_i32 s{T[9]}, s{S_WAVE}, 17408")
    partials(e, f"s{T[9]}", "a", 0)
    lds_wait4(e, 28)
    stamp(e, 13)
    y_stage(e)
    stamp(e, 14)
    if CFG["SHAREB"]:
        e(f"s_mov_b32 s{S_GJ}, 0")
        e("s_branch L_blend")
        return e
    blend(e, qgt)
    stamp(e, 15)
    e("s_branch L_fin")
    return e


def l_addr(e):
    a, b, c = TMP[0], TMP[1], TMP[2]
    e(f"s_mov_b32 s{T[0]}, 0x5556")
    for i in range(3):
        e(f"v_add_u32 v{a}, {64 * i}, v{V_LANE}")
        e(f"v_mul_u32_u24 v{b}, s{T[0]}, v{a}")
        e(f"v_lshrrev_b32 v{b}, 18, v{b}")
        e(f"v_mul_u32_u24 v{c}, 12, v{b}")
        e(f"v_sub_u32 v{a}, v{a}, v{c}")
        e(f"v_lshlrev_b32 v{a}, 4, v{a}")
        e(f"v_mul_u32_u24 v{b}, 2752, v{b}")
        e(f"v_add_u32 v{V_WDMA + i}, v{a}, v{b}")
        if i:
            e(f"v_subrev_u32 v{V_WDMA + i}, {1024 * i}, v{V_WDMA + i}")
    e(f"s_mul_i32 s{S_WSOFF}, s{S_GJ}, 192")
    e(f"s_mul_i32 s{T[0]}, s{S_WAVE}, {16 * 2752}")
    e(f"s_add_u32 s{S_WSOFF}, s{S_WSOFF}, s{T[0]}")
    e(f"v_lshrrev_b32 v{a}, 3, v{V_LANE}")
    e(f"v_lshlrev_b32 v{a}, 10, v{a}")
    e(f"v_and_b32 v{b}, 7, v{V_LANE}")
    e(f"v_lshl_add_u32 v{V_XDMA}, v{b}, 4, v{a}")
    for m in range(1, 4):
        e(f"v_add_u32 v{V_XDMA + m}, {m * (8192 - 1040)}, v{V_XDMA}")
    e(f"s_lshl_b32 s{S_RHO}, s{S_GJ}, 1")
    e(f"s_add_u32 s{S_RHO}, s{S_RHO}, s{S_GI}")
    e(f"s_and_b32 s{S_RHO}, s{S_RHO}, {CFG['ROT']}")
    e(f"s_mul_i32 s{S_WRB}, s{S_WAVE}, 3072")
    e(f"s_mul_i32 s{S_XM0}, s{S_WAVE}, 4160")


def l_addr2(e):
    a, b, c = TMP[0], TMP[1], TMP[2]
    e(f"v_and_b32 v{V_T}, 255, v0")
    e(f"s_and_b32 s{T[1]}, s{S_WAVE}, 1")
    e(f"s_lshl_b32 s{T[2]}, s{S_CH}, 12")
    e(f"s_lshl_b32 s{T[3]}, s{T[1]}, 2")
    e(f"s_add_u32 s{T[2]}, s{T[2]}, s{T[3]}")
    e(f"s_sub_u32 s{T[2]}, s{T[2]}, 64")
    e(f"s_mov_b32 s{T[1]}, 0xaaab")
    for phi in range(3):
        e(f"v_add_u32 v{a}, {phi * 64}, v{V_LANE}")
        e(f"v_mul_u32_u24 v{b}, s{T[1]}, v{a}")
        e(f"v_lshrrev_b32 v{b}, 20, v{b}")
        e(f"v_mul_u32_u24 v{c}, 24, v{b}")
        e(f"v_sub_u32 v{c}, v{a}, v{c}")
        e(f"v_lshlrev_b32 v{c}, 4, v{c}")
        e(f"v_lshl_add_u32 v{c}, v{b}, 8, v{c}")
        e(f"v_add_u32 v{V_HC + phi}, s{T[2]}, v{c}")
        e(f"v_add_u32 v{V_HC + 3 + phi}, 2048, v{V_HC + phi}")
    wd_addr(e, 1)
    out_addr(e)


def stage_dma(e, n):
    toks = []
    base = PHYS[n % 3]
    e(f"s_add_u32 s{T[4]}, s{S_RHO}, {n}")
    e(f"s_and_b32 s{T[4]}, s{T[4]}, 7")
    e(f"s_lshl_b32 s{T[5]}, s{T[4]}, 7")
    e(f"s_add_u32 s{T[5]}, s{T[5]}, s{S_XSOFF}")
    e(f"s_mul_i32 s{T[4]}, s{T[4]}, {64 * 2752}")
    e(f"s_add_u32 s{T[4]}, s{T[4]}, s{S_WSOFF}")
    e(f"s_add_u32 m0, s{S_XM0}, {base + 24576}")
    e("s_nop 0")
    for m in range(4):
        toks.append(e.vm(f"buffer_load_dwordx4 v{V_XDMA + m}, {srd(S_X)}, s{T[5]} offen offset:{m * 1040} lds"))
    for mat, sr in ((0, S_WG), (1, S_WU)):
        e(f"s_add_u32 m0, s{S_WRB}, {base + mat * 12288}")
        e("s_nop 0")
        for i in range(3):
            toks.append(e.vm(f"buffer_load_dwordx4 v{V_WDMA + i}, {srd(sr)}, s{T[4]} offen offset:{1024 * i} lds"))
    return toks


def hc_dma(e):
    toks = []
    e(f"s_mul_i32 s{T[8]}, s{S_WAVE}, 6208")
    for q in range(6):
        e(f"s_add_u32 m0, s{T[8]}, {L_HC + q * 1024}")
        e("s_nop 0")
        toks.append(e.vm(f"buffer_load_dwordx4 v{V_HC + q}, {srd(S_SSM)}, 0 offen{CFG['NTS']} lds"))
    e(f"s_lshl_b32 s{T[8]}, s{S_CH}, 12")
    e(f"v_mov_b32 v{TMP[4]}, 0")
    toks.append(e.vm(f"buffer_load_dword v{V_H01}, v{TMP[4]}, {srd(S_SSM)}, s{T[8]} offen"))
    return toks


def hc_fix(e, toks):
    a, b = TMP[4], TMP[5]
    e.wait(vm=toks)
    e(f"s_and_b32 s{T[8]}, s{S_WAVE}, 1")
    e(f"s_cmp_eq_u32 s{T[8]}, 1")
    e(f"s_cselect_b32 s{T[9]}, 15, 99")
    e(f"v_cmp_eq_u32 vcc, s{T[9]}, v{V_LANE}")
    e(f"s_mul_i32 s{T[8]}, s{S_WAVE}, 6208")
    e(f"s_add_u32 s{T[8]}, s{T[8]}, {L_HC}")
    e(f"v_cndmask_b32 v{a}, 0, v{V_H01}, vcc")
    e(f"v_lshlrev_b32 v{b}, 2, v{V_LANE}")
    e(f"v_add_u32 v{b}, s{T[8]}, v{b}")
    e("s_mov_b64 exec, 0xffff")
    t = e.lg(f"ds_write_b32 v{b}, v{a}")
    e("s_mov_b64 exec, -1")
    return t


K_D, K_A, K_Z = 144, 152, 156


def ur_zero(e):
    a = TMP[4]
    for q in range(4):
        e(f"v_mov_b32 v{K_Z + q}, 0")
    e(f"v_lshlrev_b32 v{a}, 4, v{V_T}")
    e(f"v_add_u32 v{a}, {L_UR}, v{a}")
    e(f"v_cmp_gt_u32 vcc, 80, v{V_T}")
    e(f"s_and_saveexec_b64 s[{S_EXSAVE}:{S_EXSAVE + 1}], vcc")
    e.lg(f"ds_write_b128 v{a}, {vr(K_Z)} offset:5120")
    e.lg(f"ds_write_b128 v{a}, {vr(K_Z)} offset:{6400 + 5120}")
    e("s_mov_b64 exec, -1")


def kv_poll_issue(e):
    e(f"v_and_b32 v{V_PA}, 31, v{V_LANE}")
    e(f"v_lshlrev_b32 v{V_PA}, 4, v{V_PA}")
    e(f"s_lshr_b32 s{T[10]}, s{S_U}, 5")
    e(f"s_lshl_b32 s{T[10]}, s{T[10]}, 9")
    e(f"s_add_u32 s{T[10]}, s{T[10]}, {FL_P:#x}")
    return None


def kv_load(e, tok, slp=None):
    poll_one(e, V_PA, T[10], 14, slp)
    e(f"v_lshlrev_b32 v{K_A}, 4, v{V_T}")
    e(f"s_lshl_b32 s{T[11]}, s{S_U}, 13")
    e(f"s_add_u32 s{T[11]}, s{T[11]}, {WS_KV:#x}")
    e(f"s_add_u32 s{T[12]}, s{T[11]}, 4096")
    return [e.vm(f"buffer_load_dwordx4 {vr(K_D)}, v{K_A}, {srd(S_WS)}, s{T[11]} offen sc1"),
            e.vm(f"buffer_load_dwordx4 {vr(K_D + 4)}, v{K_A}, {srd(S_WS)}, s{T[12]} offen sc1")]


def kv_write(e, toks):
    e(f"v_lshrrev_b32 v{K_A}, 2, v{V_T}")
    e(f"v_mul_u32_u24 v{K_A}, 80, v{K_A}")
    e(f"v_and_b32 v{K_A + 1}, 3, v{V_T}")
    e(f"v_lshl_add_u32 v{K_A}, v{K_A + 1}, 4, v{K_A}")
    e(f"v_add_u32 v{K_A}, {L_UR}, v{K_A}")
    e.wait(vm=toks)
    return [e.lg(f"ds_write_b128 v{K_A}, {vr(K_D)}"),
            e.lg(f"ds_write_b128 v{K_A}, {vr(K_D + 4)} offset:6400")]


def touch_loads(e):
    b = TMP[1]
    e(f"s_and_b32 s{T[0]}, s{S_I2}, 7")
    e(f"s_lshl_b32 s{T[0]}, s{T[0]}, 2")
    e(f"s_add_u32 s{T[0]}, s{T[0]}, s{S_WAVE}")
    e(f"s_lshl_b32 s{T[0]}, s{T[0]}, 16")
    e(f"s_lshl_b32 s{T[1]}, s{S_N2}, 7")
    e(f"s_add_u32 s{T[0]}, s{T[0]}, s{T[1]}")
    e(f"v_lshlrev_b32 v{b}, 10, v{V_LANE}")
    e.vm(f"buffer_load_dword v12, v{b}, {srd(S_WD)}, s{T[0]} offen")


def wd_dma(e, m, buf):
    toks = []
    e(f"s_add_u32 m0, s{S_WDBASE}, {buf * 16384}")
    e(f"s_lshl_b32 s{T[8]}, s{S_FT + m}, 4")
    for q in range(4):
        toks.append(e.vm(f"buffer_load_dwordx4 v{V_WDDMA + q}, {srd(S_WD)}, s{T[8]} offen offset:{q * 1024} lds"))
    return toks


def wd_tr(e, buf, kr):
    toks = []
    k, r0 = kr
    base, vb = buf * 16384, (V_WDTR, V_WDTR + 1)
    if buf == 4:
        e(f"v_add_u32 v{TMP[2]}, 0x10000, v{V_WDTR}")
        e(f"v_add_u32 v{TMP[3]}, 0x10000, v{V_WDTR + 1}")
        base, vb = 0, (TMP[2], TMP[3])
    for half in range(2):
        for dt in range(2):
            r = r0 + 4 * (half * 2 + dt)
            for q in range(2):
                toks.append(e.lg(
                    f"ds_read_b64_tr_b16 {rr(k, r + 2 * q, 2)}, v{vb[dt]} offset:{base + (16 * half + 8 * q) * 128}"))
    return toks


def h_poll(e, level):
    e(f"v_and_b32 v{V_PA}, 7, v{V_LANE}")
    e(f"v_lshlrev_b32 v{V_PA}, 4, v{V_PA}")
    e(f"s_lshl_b32 s{T[13]}, s{S_I2}, 9")
    e(f"s_add_u32 s{T[13]}, s{T[13]}, {FL_H + 128 * level:#x}")
    poll_one(e, V_PA, T[13], (12, 16, 13)[level], 4)


def h_loads(e, m, kr, sbase):
    toks = {}
    k, r0 = kr
    for st in range(2):
        e(f"s_add_u32 s{T[9]}, s{sbase}, s{S_FT + m}")
        if st:
            e(f"s_add_u32 s{T[9]}, s{T[9]}, {43 * 2048}")
        if m == 10:
            e(f"s_cmp_eq_u32 s{S_WAVE}, 3")
            e(f"s_cselect_b32 s{T[9]}, {WS_SIZE:#x}, s{T[9]}")
        for half in range(2):
            r = r0 + 4 * (st * 2 + half)
            toks[(st, half)] = e.vm(
                f"buffer_load_dwordx4 {rr(k, r, 4)}, v{V_L16}, {srd(S_WS)}, s{T[9]} offen offset:{half * 1024} sc1")
    return toks


def g2_slot(e, first, wk, hk, ht, wtr, acck, acc0):
    ka, ra0 = wk
    kb, rb0 = hk
    for half in range(2):
        for stt in range(2):
            e.wait(vm=ht[(stt, half)], lg=wtr if (half == 0 and stt == 0) else None)
            for dt in range(2):
                acc = rr(acck, acc0 + 32 * dt + 16 * stt, 16)
                c = "0" if (first and half == 0) else acc
                e(f"v_mfma_f32_32x32x16_bf16 {acc}, {rr(ka, ra0 + 4 * (half * 2 + dt), 4)}, "
                  f"{rr(kb, rb0 + 4 * (stt * 2 + half), 4)}, {c}")


def partials(e, sbase_expr, acck, acc0):
    a, b = TMP[0], TMP[1]
    e(f"v_and_b32 v{a}, 31, v{V_LANE}")
    e(f"v_mul_u32_u24 v{a}, 272, v{a}")
    e(f"v_lshrrev_b32 v{b}, 5, v{V_LANE}")
    e(f"v_lshl_add_u32 v{a}, v{b}, 4, v{a}")
    e(f"v_add_u32 v{a}, {sbase_expr}, v{a}")
    e("s_nop 7")
    for dt in range(2):
        for stt in range(2):
            for q in range(4):
                e.lg(f"ds_write_b128 v{a}, {rr(acck, acc0 + 32 * dt + 16 * stt + 4 * q, 4)} "
                     f"offset:{stt * 32 * 272 + dt * 128 + q * 32}")


def epoch_cond(e, lbl):
    e(f"s_lshl_b32 s{T[0]}, s{S_GI}, 2")
    e(f"s_add_u32 s{T[0]}, s{T[0]}, s{S_WAVE}")
    e(f"s_lshl_b32 s{T[0]}, s{T[0]}, 4")
    e(f"s_add_u32 s{T[0]}, s{T[0]}, s{S_GJ}")
    e(f"s_cmp_lg_u32 s{T[0]}, 15")
    e(f"s_cbranch_scc1 {lbl}")


def epoch_finish(e):
    epoch_cond(e, "L_noep2")
    for q in range(4):
        e(f"s_mov_b32 s{T[1]}, {FL_P + q * 1024:#x}")
        e(f"buffer_load_dwordx4 {vr(96 + 4 * q)}, v{V_L16}, {srd(S_WS)}, s{T[1]} offen sc1")
    e("s_waitcnt vmcnt(0)")
    for q in range(4):
        e(f"s_mov_b32 s{T[10]}, {FL_P + q * 1024:#x}")
        poll_check(e, None, V_L16, T[10], 96 + 4 * q, 20)
    e(f"s_sub_u32 s{T[0]}, s{S_TAG}, {TAGK - 1:#x}")
    e(f"v_mov_b32 v{TMP[0]}, s{T[0]}")
    e(f"v_mov_b32 v{TMP[1]}, 0")
    e(f"s_mov_b32 s{T[1]}, {FL_EPOCH:#x}")
    e("s_mov_b64 exec, 1")
    e(f"buffer_store_dword v{TMP[0]}, v{TMP[1]}, {srd(S_WS)}, s{T[1]} offen sc1")
    e("s_mov_b64 exec, -1")
    e.label("L_noep2")


def conv_staging(e, hct, slp=None):
    pt = kv_poll_issue(e)
    ur_zero(e)
    kt = kv_load(e, pt, slp)
    hc_fix(e, hct)
    return kt


def l_body():
    e = Em()
    e.label("L_loader")
    l_addr(e)
    e(f"v_lshlrev_b32 v{TMP[0]}, 2, v{V_LANE}")
    e(f"v_add_u32 v{TMP[0]}, {L_FL}, v{TMP[0]}")
    e(f"v_mov_b32 v{TMP[1]}, 0")
    e.wait_all(vm=False, lg=True)
    e.lg(f"ds_write_b32 v{TMP[0]}, v{TMP[1]}")
    stamp(e, 0)
    e(f"s_cmp_eq_u32 s{S_GJ}, 15")
    e("s_cbranch_scc1 L_l_g")
    st = {}
    for n in range(CFG["PRE"]):
        st[n] = stage_dma(e, n)
    stamp(e, 1)
    for n in range(7):
        e.wait(vm=st[n] if (n < 6 or CFG['S7F']) else st[7])
        e.wait_all(vm=False, lg=True)
        e("s_barrier")
        if n in (0, 4):
            stamp(e, 2 + n // 4)
        for k in range(n + 1, min(n + 3, 8)):
            if k not in st:
                st[k] = stage_dma(e, k)
        if n == 0:
            mt = misc_loads(e, True)
            l_addr2(e)
        if n == 2:
            misc_use(e, mt, True)
        if n == 3 and CFG["TOUCH"]:
            touch_loads(e)
        if n == 5:
            hct = hc_dma(e)
            conv_addr(e)
            kv_poll_issue(e)
            ur_zero(e)
    if CFG["S7F"]:
        e.wait(vm=st[7])
        e(f"s_add_u32 s{T[9]}, s{S_WAVE}, 32")
        lds_set(e, f"s{T[9]}")
    ge = Em()
    ge.label("L_l_g")
    misc_loads(ge, True)
    l_addr2(ge)
    ge.wait_all()
    ge("s_barrier")
    misc_use(ge, [], True)
    hc_dma(ge)
    conv_addr(ge)
    lds_wait4(ge, 8)
    kv_poll_issue(ge)
    ur_zero(ge)
    ge.wait_all()
    ge("s_branch L_l_join")
    e.L.append(("SUB", ge))
    e.label("L_l_join")
    stamp(e, 4)
    kt = kv_load(e, None)
    lwt = {}
    lw = {0: wd_dma(e, 7, 0), 1: wd_dma(e, 8, 1)}
    hc_fix(e, hct)
    kv_write(e, kt)
    e.wait_all(vm=False, lg=True)
    lds_set(e, f"s{S_WAVE}")
    if CFG["LPRIO"] and CFG["PRIO_AT"] == 0:
        e(f"s_setprio {CFG['LPRIO']}")
    lds_wait4(e, 0)
    stamp(e, 5)
    hr, ft = {}, {}
    for nn in range(4):
        for p in range(4):
            hr[(p, nn)] = conv_hraw(e, p, nn)
    for dl in range(4):
        ft[(0, dl)] = conv_f(e, 0, dl)
    for nn in range(3):
        for p in range(4):
            e.wait(lg=hr[(p, nn)] + hr[(p, nn + 1)][:1])
            conv_align(e, p, nn)
    stamp(e, 6)
    cg = [Em() for _ in range(160)]
    for tt in range(8):
        g0 = 20 * tt
        if tt + 4 <= 10:
            for p in range(4):
                hr[(p, tt + 4)] = conv_hraw(cg[g0 + p], p, tt + 4)
        if tt + 1 < 8:
            for dl in range(4):
                ft[(tt + 1, dl)] = conv_f(cg[g0 + 4 + dl], tt + 1, dl)
            g = cg[g0 + 11]
            g.wait(lg=[t for p in range(4) for t in hr[(p, tt + 3)] + hr[(p, tt + 4)][:1]])
            for p in range(4):
                conv_align(cg[g0 + 11 + 2 * p], p, tt + 3)
    G0, G1, G2, G3, G4 = CFG["LG"]
    g = cg[G0]
    for i in range(2):
        g.wait(vm=lw[i])
        lwt[i] = wd_tr(g, i, LW_SET[i])
    g = cg[G1]
    g.wait(lg=lwt[1])
    cw = wd_dma(g, 0, 0) + wd_dma(cg[G1 + 3], 1, 1)
    g = cg[G2]
    lds_wait4(g, 8)
    lw[2] = wd_dma(g, 9, 2)
    lw[3] = wd_dma(cg[G2 + 3], 10, 3)
    cw += wd_dma(cg[G2 + 6], 4, 4)
    g = cg[G3]
    for i in range(2, 4):
        g.wait(vm=lw[i])
        lwt[i] = wd_tr(g, i, LW_SET[i])
    g = cg[G3 + 6]
    g.wait(lg=lwt[3])
    cw += wd_dma(g, 2, 2) + wd_dma(cg[G3 + 9], 3, 3)
    g = cg[G4]
    g.wait(vm=cw)
    g(f"s_add_u32 s{T[9]}, s{S_WAVE}, 24")
    lds_set(g, f"s{T[9]}")
    for tt in range(8):
        idx = 0
        if tt == 4:
            stamp(e, 7)
        if CFG["LPRIO"] and CFG["PRIO_AT"] and tt == CFG["PRIO_AT"]:
            e(f"s_setprio {CFG['LPRIO']}")
        for dl in range(4):
            e.wait(lg=ft[(tt, dl)])
            for p in range(4 - dl):
                j = p + dl
                for bb in range(2):
                    acc = C_ACC + 8 * j + 4 * bb
                    h = C_H + 20 * p + 4 * ((tt + 2 * bb) % 5)
                    f = A_F + 16 * (tt % 2) + 4 * dl
                    c = "0" if (tt == 0 and dl == 0) else vr(acc)
                    e(f"v_mfma_f32_16x16x32_bf16 {vr(acc)}, {vr(h)}, {ar(f)}, {c}")
                    e.extend(cg[20 * tt + idx])
                    idx += 1
    stamp(e, 8)
    lds_wait4(e, 8)
    yst = conv_epilogue(e)
    e.wait_all(vm=False, lg=True)
    e(f"s_add_u32 s{T[9]}, s{S_WAVE}, 28")
    lds_set(e, f"s{T[9]}")
    y_flag(e, yst)
    if CFG["LPRIO"]:
        e("s_setprio 0")
    stamp(e, 9)
    lds_wait1i(e, 12)
    lds_wait1i(e, 16)
    h_poll(e, 2)
    hl = {}
    for i in range(4):
        hl[i] = h_loads(e, 7 + i, LH_SET[i], S_HOFF)
    qgt = qg_loads(e)
    stamp(e, 10)
    for i in range(4):
        g2_slot(e, i == 0, LW_SET[i], LH_SET[i], hl[i], lwt[i], "v", 32)
    stamp(e, 11)
    lds_wait4(e, 28)
    e(f"s_mul_i32 s{T[9]}, s{S_WAVE}, 17408")
    e(f"s_add_u32 s{T[9]}, s{T[9]}, {L_P2L}")
    partials(e, f"s{T[9]}", "v", 32)
    stamp(e, 12)
    if CFG["SHAREB"]:
        e.label("L_blend")
        e.wait_all()
    blend(e, qgt)
    stamp(e, 15)
    epoch_finish(e)
    return e


def resolve_sub(ge):
    own = {id(i) for i in ge.L}
    L = []
    for i in ge.L:
        if i.kind == "wait":
            L.append(Ins("", "wait", [t for t in i.vm if id(t) in own], [t for t in i.lg if id(t) in own]))
        else:
            L.append(i)
    return resolve_waits(L)


TAIL = []


def flatten(e):
    subs, L = {}, []
    for i in e.L:
        if isinstance(i, tuple):
            key = f";;SUB{len(subs)}"
            subs[key] = i[1]
            L.append(Ins(key))
        else:
            L.append(i)
    out = []
    for ln in resolve_waits(L):
        if ln in subs:
            TAIL.extend(resolve_sub(subs[ln]))
        else:
            out.append(ln)
    return out


def emit(path):
    _lbl[0] = 0
    TAIL.clear()
    e0 = Em()
    setup(e0)
    cb, lb = flatten(c_body()), flatten(l_body())
    k = cb.index(";;SPLIT")
    if CFG["LFIRST"]:
        lines = flatten(e0) + cb[:k] + ["s_branch L_compute"] + lb + ["s_branch L_fin", "L_compute:"] + cb[k + 1:]
    else:
        lines = flatten(e0) + cb[:k] + cb[k + 1:] + lb
    lines = lines + TAIL
    lines, npad = pad_hazards(lines)
    hdr = open("gated_mix__ssm_conv_h3__geglu_ffn__prompt.s.ref").read().split("; @launch")[0]
    txt = hdr
    txt += f"; @launch grid=(256,1,1) block=(512,1,1) lds={LDS_SIZE}\n"
    txt += '.amdgcn_target "amdgcn-amd-amdhsa--gfx950"\n.text\n'
    txt += f".globl {KNAME}\n.p2align 8\n.type {KNAME},@function\n{KNAME}:\n"
    for ln in lines:
        txt += ("" if ln.endswith(":") else "    ") + ln + "\n"
    txt += "L_fin:\nL_end:\n    s_endpgm\n"
    txt += f""".section .rodata,"a"
.p2align 6
.amdhsa_kernel {KNAME}
  .amdhsa_next_free_vgpr 256
  .amdhsa_next_free_sgpr 102
  .amdhsa_accum_offset 160
  .amdhsa_group_segment_fixed_size 0
  .amdhsa_kernarg_size 112
  .amdhsa_user_sgpr_count 2
  .amdhsa_user_sgpr_kernarg_segment_ptr 1
  .amdhsa_system_sgpr_workgroup_id_x 1
.end_amdhsa_kernel
"""
    open(path, "w").write(txt)
    return len(lines), npad


if __name__ == "__main__":
    out = sys.argv[1] if len(sys.argv) > 1 else "k6.s"
    for a in sys.argv[2:]:
        k, v = a.split("=")
        CFG[k] = eval(v)
    print(emit(out))
```
